```python
import torch

def _softmax(x, axis=-1):
    return torch.softmax(x, dim=axis)

def _gelu(x):
    return torch.nn.functional.gelu(x, approximate='tanh')

def _silu(x):
    return torch.nn.functional.silu(x)

def _sigmoid(x):
    return torch.sigmoid(x)

def _layernorm(x, axis=-1, eps=1e-05):
    m = x.mean(dim=axis, keepdim=True)
    v = x.var(dim=axis, keepdim=True, unbiased=False)
    return (x - m) / torch.sqrt(v + eps)

def _scatter_add(tgt, idx, src, axis=0):
    return tgt.clone().index_add_(axis, idx, src)

def _segment_sum(src, seg, n):
    out = torch.zeros((n,) + src.shape[1:], dtype=src.dtype)
    return out.index_add_(0, seg, src)

def _pad(x, pw):
    flat = tuple((v for pair in reversed(pw) for v in pair))
    return torch.nn.functional.pad(x, flat)
kernel_name = 'adaLN_cond__ssm_conv_h3__glu_gated_reglu__prompt'

def setup_inputs():

    _w = lambda a: (lambda t: t.to(torch.bfloat16) if t.is_floating_point() else t)(torch.as_tensor(a))

    def _A_setup():
        B, S, D = (1, 2048, 576)
        ks = 4
        return {'q': _w((lambda *s: torch.randn(*s, dtype=torch.bfloat16) * 0.05)(B, S, D)), 'k': _w((lambda *s: torch.randn(*s, dtype=torch.bfloat16) * 0.8)(B, S, D)), 'v': _w((lambda *s: torch.randn(*s, dtype=torch.bfloat16) * 0.8)(B, S, D)), 'shift_k': _w((lambda *s: torch.randn(*s, dtype=torch.bfloat16) * 0.8)(D, ks) * 0.5), 'ssm_k': _w((lambda *s: torch.randn(*s, dtype=torch.bfloat16) * 0.8)(D, S) * (1.0 / S ** 0.5)), 'ssm_D': _w((lambda *s: torch.randn(*s, dtype=torch.bfloat16) * 0.8)(D))}
    _A_in = _A_setup()

    def _B_setup():
        B, S, D, F = (1, 2048, 576, 4608)
        return {'x': _w((lambda *s: torch.randn(*s, dtype=torch.bfloat16) * 0.05)(B, S, D)), 'W_gate': _w((lambda *s: torch.randn(*s, dtype=torch.bfloat16) * 0.8)(D, F) * (2.0 / D) ** 0.5), 'W_up': _w((lambda *s: torch.randn(*s, dtype=torch.bfloat16) * 0.8)(D, F) * (2.0 / D) ** 0.5), 'W_down': _w((lambda *s: torch.randn(*s, dtype=torch.bfloat16) * 0.8)(F, D) * (1.0 / F) ** 0.5)}
    _B_in = _B_setup()
    return {'A_q': _A_in['q'], 'A_k': _A_in['k'], 'A_v': _A_in['v'], 'A_shift_k': _A_in['shift_k'], 'A_ssm_k': _A_in['ssm_k'], 'A_ssm_D': _A_in['ssm_D'], 'B_x': _B_in['x'], 'B_W_gate': _B_in['W_gate'], 'B_W_up': _B_in['W_up'], 'B_W_down': _B_in['W_down'], 'c': _w((lambda *s: torch.randn(*s, dtype=torch.bfloat16) * 0.2)(1, 576) * 8.0), 'w_mod': _w((lambda *s: torch.randn(*s, dtype=torch.bfloat16) * 0.2)(576, 6 * 576) * 576 ** (-0.5) * 8.0)}

def reference(A_q, A_k, A_v, A_shift_k, A_ssm_k, A_ssm_D, B_x, B_W_gate, B_W_up, B_W_down, c, w_mod):

    def _A_ref(q, k, v, shift_k, ssm_k, ssm_D):
        B, S, D = q.shape
        ks = shift_k.shape[-1]
        k_pad = _pad(k, ((0, 0), (ks - 1, 0), (0, 0)))
        k_shift = torch.zeros_like(k)
        for t in range(ks):
            k_shift = k_shift + k_pad[:, t:t + S, :] * shift_k[:, ks - 1 - t][None, None, :]
        kv = k_shift * v
        L = 2 * S
        kv_pad = _pad(kv, ((0, 0), (0, S), (0, 0)))
        kf_pad = _pad(ssm_k, ((0, 0), (0, S)))
        kv_f = (lambda x, axes=(-2, -1): torch.fft.rfft2(x.float(), dim=axes))(kv_pad[:, None, :, :], axes=(1, 2))
        kf_f = (lambda x, axes=(-2, -1): torch.fft.rfft2(x.float(), dim=axes))(kf_pad[:, None, :], axes=(1, 2))
        kf_f = (lambda x, *d: x.permute(*d))(kf_f, 1, 2, 0)
        y_f = kv_f * kf_f[None, :, :, :]
        y = (lambda x, s, axes=(-2, -1): torch.fft.irfft2(x, s=s, dim=axes).to(torch.bfloat16))(y_f, (1, L), axes=(1, 2))[:, 0, :S, :]
        y = y + kv * ssm_D[None, None, :]
        return q * y

    def _B_ref(x, W_gate, W_up, W_down):
        gate = torch.einsum('bsd,df->bsf', x, W_gate)
        up = torch.einsum('bsd,df->bsf', x, W_up)
        gate = gate * (lambda x, dt: x.to(dt))(gate > 0, gate.dtype)
        h = gate * up
        return torch.einsum('bsf,fd->bsd', h, W_down)
    x = A_q
    mod = (_silu(c) @ w_mod).reshape(c.shape[0], 6, 1, -1)
    sa, ca, ga, sb, cb, gb = (mod[:, 0].clone(), mod[:, 1].clone(), mod[:, 2].clone(), mod[:, 3].clone(), mod[:, 4].clone(), mod[:, 5].clone())
    h = _layernorm(x, axis=-1) * (1 + ca) + sa
    x = x + ga * _A_ref(h, A_k, A_v, A_shift_k, A_ssm_k, A_ssm_D)
    h = _layernorm(x, axis=-1) * (1 + cb) + sb
    x = x + gb * _B_ref(h, B_W_gate, B_W_up, B_W_down)
    return x
```

```python
import sys

S = 2048; D = 576; F = 4608
WS_MOD  = 0x0
WS_Y2T  = 0x10000
WS_H2F  = 0x300000
WS_X1   = 0x600000
WS_HID  = 0x1000000
WS_PART = 0x3000000
NB_ACT = S * D * 2

class Asm:
    def __init__(self):
        self.lines = []
    def __call__(self, s):
        for l in s.split("\n"):
            l = l.strip()
            if l:
                self.lines.append("    " + l if not l.endswith(":") else l)
    def label(self, l):
        self.lines.append(l + ":")
    def text(self):
        return "\n".join(self.lines) + "\n"

def srd(a, d, base, nbytes, off=0):
    if off:
        a(f"s_add_u32 s{d}, s{base}, {off}")
        a(f"s_addc_u32 s{d+1}, s{base+1}, 0")
    else:
        a(f"s_mov_b32 s{d}, s{base}")
        a(f"s_mov_b32 s{d+1}, s{base+1}")
    a(f"s_mov_b32 s{d+2}, {nbytes}")
    a(f"s_mov_b32 s{d+3}, 0x00020000")

STAMP = False
def stamp(a, idx):
    if not STAMP: return
    a("s_memtime s[78:79]")
    a("s_waitcnt lgkmcnt(0)")
    a(f"s_mov_b32 s{80+idx}, s78")
def stamp_flush(a, n, wg):
    if not STAMP: return
    lbl = f"STAMP_SKIP_{len(a.lines)}"
    a(f"s_cmp_lg_u32 s2, {wg}")
    a(f"s_cbranch_scc1 {lbl}")
    a("s_load_dwordx2 s[72:73], s[0:1], 104")
    a("s_waitcnt lgkmcnt(0)")
    a("s_mov_b32 s74, 256")
    a("s_mov_b32 s75, 0x00020000")
    a("v_lshrrev_b32 v1, 6, v0")
    a("v_lshlrev_b32 v1, 5, v1")
    for i in range(n):
        a(f"s_sub_u32 s76, s{80+i}, s80")
        a("v_mov_b32 v2, s76")
        a(f"buffer_store_dword v2, v1, s[72:75], 0 offen offset:{4*i}")
    a("s_waitcnt vmcnt(0)")
    a.label(lbl)

def kernel_header(a, name):
    a.lines.append(f".globl {name}")
    a.lines.append(".p2align 8")
    a.lines.append(f".type {name},@function")
    a.label(name)

def kernel_desc(name, vgpr, sgpr=102, accum=None):
    if accum is None:
        accum = (vgpr + 3) // 4 * 4
    return f""".p2align 6
.amdhsa_kernel {name}
  .amdhsa_next_free_vgpr {vgpr}
  .amdhsa_next_free_sgpr {sgpr}
  .amdhsa_accum_offset {accum}
  .amdhsa_group_segment_fixed_size 0
  .amdhsa_kernarg_size 120
  .amdhsa_user_sgpr_count 2
  .amdhsa_user_sgpr_kernarg_segment_ptr 1
  .amdhsa_system_sgpr_workgroup_id_x 1
.end_amdhsa_kernel
"""

K1_CH = 24832
K1_CP = 4160
K1_U = 16640
K1_LDS = 4 * K1_CH

def gen_k1(a):
    kernel_header(a, "k1_kernel")
    a("s_cmp_ge_u32 s2, 252")
    a("s_cbranch_scc1 K1_END")
    a("s_cmp_ge_u32 s2, 144")
    a("s_cbranch_scc1 K1_MOD")
    stamp(a, 0)
    a("s_load_dwordx4 s[4:7], s[0:1], 8")
    a("s_load_dwordx4 s[8:11], s[0:1], 24")
    a("s_load_dwordx2 s[12:13], s[0:1], 40")
    a("s_load_dwordx2 s[14:15], s[0:1], 112")
    a("s_and_b32 s3, s2, 7")
    a("s_mul_i32 s3, s3, 18")
    a("s_lshr_b32 s16, s2, 3")
    a("s_add_u32 s3, s3, s16")
    a("v_lshrrev_b32 v1, 6, v0")
    a("v_and_b32 v2, 63, v0")
    a("s_nop 0")
    a("v_readfirstlane_b32 s17, v1")
    a("s_waitcnt lgkmcnt(0)")
    srd(a, 20, 4, NB_ACT)
    srd(a, 24, 6, NB_ACT)
    srd(a, 28, 10, NB_ACT)
    srd(a, 32, 14, NB_ACT, WS_Y2T)
    a("s_lshl_b32 s16, s3, 5")
    a("s_add_u32 s8, s8, s16")
    a("s_addc_u32 s9, s9, 0")
    a("s_load_dwordx8 s[36:43], s[8:9], 0")
    a("s_lshl_b32 s16, s3, 3")
    a("s_add_u32 s12, s12, s16")
    a("s_addc_u32 s13, s13, 0")
    a("s_load_dwordx2 s[44:45], s[12:13], 0")
    a("s_movk_i32 s18, 9216")
    a("v_mul_lo_u32 v3, v0, s18")
    a("v_add_u32 v3, s16, v3")
    a("v_subrev_u32 v4, 3456, v3")
    a("s_movk_i32 s19, 4608")
    for i in range(3):
        a(f"buffer_load_dwordx2 v[{10+2*i}:{11+2*i}], v4, s[20:23], 0 offen offset:{i*1152}")
    for i in range(8):
        so = "0" if i < 4 else "s19"
        a(f"buffer_load_dwordx2 v[{16+2*i}:{17+2*i}], v3, s[20:23], {so} offen offset:{(i%4)*1152}")
    for i in range(8):
        so = "0" if i < 4 else "s19"
        a(f"buffer_load_dwordx2 v[{32+2*i}:{33+2*i}], v3, s[24:27], {so} offen offset:{(i%4)*1152}")
    a("s_lshl_b32 s46, s3, 2")
    a("s_add_u32 s46, s46, s17")
    a("s_lshl_b32 s46, s46, 12")
    a(f"s_mul_i32 s47, s17, {K1_CH}")
    a("v_lshlrev_b32 v5, 4, v2")
    a("v_add_u32 v5, s46, v5")
    for j in range(4):
        a(f"s_add_u32 m0, s47, {j*K1_CP + 64}")
        if j:
            a("v_add_u32 v5, 2, v5")
        else:
            a("s_nop 0")
        for i in range(4):
            a(f"buffer_load_dwordx4 v5, s[28:31], 0 offen offset:{i*1024} lds")
    a("v_lshrrev_b32 v6, 4, v2")
    a("v_and_b32 v7, 15, v2")
    a("v_lshlrev_b32 v8, 1, v7")
    a("v_add_u32 v8, v8, v6")
    a("v_subrev_u32 v8, 32, v8")
    a("v_add_u32 v9, 1, v8")
    a("v_lshlrev_b32 v48, 1, v8")
    a("v_add_u32 v48, s46, v48")
    a("v_lshlrev_b32 v49, 1, v9")
    a("v_add_u32 v49, s46, v49")
    a("v_mov_b32 v50, 0x7fffff00")
    a("v_cmp_gt_i32 vcc, 0, v8")
    a("s_nop 1")
    a("v_cndmask_b32 v48, v48, v50, vcc")
    a("v_cmp_gt_i32 vcc, 0, v9")
    a("s_nop 1")
    a("v_cndmask_b32 v49, v49, v50, vcc")
    a("buffer_load_ushort v51, v48, s[28:31], 0 offen")
    a("buffer_load_ushort v52, v49, s[28:31], 0 offen")
    a("v_mov_b32 v56, 0")
    a("v_mov_b32 v57, 0")
    a("v_mov_b32 v58, 0")
    a("v_mov_b32 v59, 0")
    a("v_lshlrev_b32 v53, 4, v2")
    a("v_add_u32 v53, s47, v53")
    for i in range(3):
        a(f"ds_write_b128 v53, v[56:59] offset:{K1_U + 5120 + i*1024}")
    a(f"v_mul_u32_u24 v54, {K1_CP}, v6")
    a("v_lshlrev_b32 v55, 2, v7")
    a("v_add3_u32 v54, v54, v55, s47")
    a("s_waitcnt lgkmcnt(0)")
    for c in range(4):
        a(f"s_lshl_b32 s{48+4*c}, s{36+2*c}, 16")
        a(f"s_and_b32 s{49+4*c}, s{36+2*c}, 0xffff0000")
        a(f"s_lshl_b32 s{50+4*c}, s{37+2*c}, 16")
        a(f"s_and_b32 s{51+4*c}, s{37+2*c}, 0xffff0000")
    a("s_cmp_lt_u32 s17, 2")
    a("s_cselect_b32 s64, s44, s45")
    a("s_and_b32 s65, s17, 1")
    a("s_cmp_eq_u32 s65, 0")
    a("s_cselect_b32 s65, 16, 0")
    a("s_lshl_b32 s64, s64, s65")
    a("s_and_b32 s64, s64, 0xffff0000")
    a("v_lshrrev_b32 v60, 3, v0")
    a("v_sub_u32 v60, 31, v60")
    a("v_mul_u32_u24 v60, 160, v60")
    a("v_and_b32 v61, 7, v0")
    a("v_lshlrev_b32 v61, 4, v61")
    a("v_sub_u32 v60, v60, v61")
    a(f"v_add_u32 v60, {K1_U + 112}, v60")
    a(f"v_add_u32 v62, {2*K1_CH}, v60")
    stamp(a, 1)
    a("s_waitcnt vmcnt(18)")
    stamp(a, 2)
    for c in range(4):
        dw = c >> 1
        for i in range(11):
            if c & 1:
                a(f"v_and_b32 v{64+i}, 0xffff0000, v{10+2*i+dw}")
            else:
                a(f"v_lshlrev_b32 v{64+i}, 16, v{10+2*i+dw}")
        for i in range(8):
            if c & 1:
                a(f"v_and_b32 v{76+i}, 0xffff0000, v{32+2*i+dw}")
            else:
                a(f"v_lshlrev_b32 v{76+i}, 16, v{32+2*i+dw}")
        for i in range(8):
            a(f"v_mul_f32 v{84+i}, s{48+4*c+3}, v{64+i}")
            a(f"v_fmac_f32 v{84+i}, s{48+4*c+2}, v{64+i+1}")
            a(f"v_fmac_f32 v{84+i}, s{48+4*c+1}, v{64+i+2}")
            a(f"v_fmac_f32 v{84+i}, s{48+4*c+0}, v{64+i+3}")
            a(f"v_mul_f32 v{84+i}, v{84+i}, v{76+i}")
        for q in range(4):
            a(f"v_cvt_pk_bf16_f32 v{92+4*c+q}, v{84+7-2*q}, v{84+6-2*q}")
        a(f"ds_write_b128 v{60 + 2*(c>>1)}, v[{92+4*c}:{95+4*c}] offset:{(c&1)*K1_CH}")
    a("s_waitcnt vmcnt(0)")
    a("v_lshl_or_b32 v51, v52, 16, v51")
    a("ds_write_b32 v54, v51")
    a("v_and_b32 v3, 15, v2")
    a("v_lshrrev_b32 v4, 4, v2")
    a("v_add_u32 v5, 1, v3")
    a("v_and_b32 v5, 3, v5")
    a("v_lshlrev_b32 v6, 3, v4")
    a("v_sub_u32 v6, v3, v6")
    a("v_sub_u32 v6, v6, v5")
    a("v_add_u32 v6, 25, v6")
    a("v_lshlrev_b32 v6, 1, v6")
    a(f"v_mul_u32_u24 v7, {K1_CP}, v5")
    a("v_add3_u32 v6, v6, v7, s47")
    a("v_sub_u32 v7, 15, v3")
    a("v_mul_u32_u24 v7, 160, v7")
    a("v_lshlrev_b32 v8, 4, v4")
    a("v_sub_u32 v7, v7, v8")
    a(f"v_add_u32 v7, {K1_U + 48}, v7")
    a("v_add_u32 v7, s47, v7")
    a("v_sub_u32 v8, 15, v3")
    a("v_mul_u32_u24 v8, 160, v8")
    a("v_lshlrev_b32 v9, 3, v4")
    a("v_sub_u32 v8, v8, v9")
    a(f"v_add_u32 v8, {K1_U + 24}, v8")
    a("v_add_u32 v8, s47, v8")
    a("s_mov_b32 s66, 73728")
    a("v_mul_lo_u32 v9, v3, s66")
    a("v_lshlrev_b32 v10, 3, v4")
    a("s_lshr_b32 s66, s46, 7")
    a("v_add3_u32 v9, v9, v10, s66")
    ACC = 16
    for r in range(32):
        a(f"v_mov_b32 v{ACC+r}, 0")
    a("s_waitcnt lgkmcnt(0)")
    stamp(a, 3)
    a("s_barrier")
    stamp(a, 4)
    AR = 48
    BR = 96
    def a_reg(p): return AR + (p % 12) * 4
    def b_reg(dl, ks, nt): return BR + (dl & 1) * 16 + (ks * 2 + nt) * 4
    def loads(dl):
        L = []
        ps = range(0, 4) if dl == 0 else range(4 * dl, 4 * dl + 4)
        nts = [0, 1] if dl < 16 else [1]
        for ks in range(2):
            for nt in nts:
                r = b_reg(dl, ks, nt)
                L.append(f"ds_read_b128 v[{r}:{r+3}], v7 offset:{(16 - 16*nt + dl)*160 + 64 - 64*ks}")
        for p in ps:
            r = a_reg(p)
            L.append(f"ds_read_b64 v[{r}:{r+1}], v6 offset:{32*p}")
            L.append(f"ds_read_b64 v[{r+2}:{r+3}], v6 offset:{32*p+8}")
        return L
    for l in loads(0): a(l)
    for dl in range(32):
        nxt = loads(dl + 1) if dl + 1 < 32 else []
        nts = [0, 1] if dl < 16 else [1]
        mf = []
        for ks in (1, 0):
            for mt in range(4):
                p = 4 * dl + mt - 2 * ks
                if p < 0: continue
                for nt in nts:
                    ac = ACC + (nt * 4 + mt) * 4
                    mf.append(f"v_mfma_f32_16x16x32_bf16 v[{ac}:{ac+3}], v[{a_reg(p)}:{a_reg(p)+3}], v[{b_reg(dl,ks,nt)}:{b_reg(dl,ks,nt)+3}], v[{ac}:{ac+3}]")
        pre = nxt[:2]; rest = nxt[2:]
        for l in pre: a(l)
        a(f"s_waitcnt lgkmcnt({len(pre)})")
        k = 0
        for i, m in enumerate(mf):
            a(m)
            n_to = (len(rest) * (i + 1) + len(mf) - 1) // len(mf)
            while k < min(n_to, len(rest)):
                a(rest[k]); k += 1
        while k < len(rest):
            a(rest[k]); k += 1
    stamp(a, 5)
    for nt in range(2):
        for mt in range(4):
            r = 48 + (nt * 4 + mt) * 2
            a(f"ds_read_b64 v[{r}:{r+1}], v8 offset:{(16-16*nt)*160 + 96 - 32*mt}")
    a("s_nop 7")
    a("s_waitcnt lgkmcnt(0)")
    for nt in range(2):
        for mt in range(4):
            r = 48 + (nt * 4 + mt) * 2
            ac = ACC + (nt * 4 + mt) * 4
            a(f"v_and_b32 v64, 0xffff0000, v{r+1}")
            a(f"v_lshlrev_b32 v65, 16, v{r+1}")
            a(f"v_and_b32 v66, 0xffff0000, v{r}")
            a(f"v_lshlrev_b32 v67, 16, v{r}")
            for q in range(4):
                a(f"v_fmac_f32 v{ac+q}, s64, v{64+q}")
            a(f"v_cvt_pk_bf16_f32 v{r}, v{ac}, v{ac+1}")
            a(f"v_cvt_pk_bf16_f32 v{r+1}, v{ac+2}, v{ac+3}")
            a(f"s_mov_b32 s66, {(nt*64+mt)*18432}")
            a(f"buffer_store_dwordx2 v[{r}:{r+1}], v9, s[32:35], s66 offen")
    if STAMP:
        a("s_waitcnt vmcnt(0)")
    stamp(a, 6)
    stamp_flush(a, 7, 77)
    a("s_endpgm")
    a.label("K1_MOD")
    a("s_load_dwordx4 s[4:7], s[0:1], 80")
    a("s_load_dwordx2 s[8:9], s[0:1], 112")
    a("s_sub_u32 s3, s2, 144")
    a("v_and_b32 v1, 3, v0")
    a("v_lshrrev_b32 v2, 2, v0")
    a("v_mul_u32_u24 v3, 18, v2")
    a("s_mov_b32 s16, 62208")
    a("v_mul_lo_u32 v4, v2, s16")
    a("v_lshlrev_b32 v5, 4, v1")
    a("s_lshl_b32 s17, s3, 6")
    a("v_add3_u32 v4, v4, v5, s17")
    a("s_waitcnt lgkmcnt(0)")
    srd(a, 20, 4, D * 2)
    srd(a, 24, 6, D * 6 * D * 2)
    srd(a, 28, 8, 6 * D * 2, WS_MOD)
    for i in range(9):
        a(f"buffer_load_ushort v{10+i}, v3, s[20:23], 0 offen offset:{2*i}")
    for i in range(9):
        a(f"s_mov_b32 s18, {i*6912}")
        a(f"buffer_load_dwordx4 v[{20+4*i}:{23+4*i}], v4, s[24:27], s18 offen")
    for r in range(8):
        a(f"v_mov_b32 v{60+r}, 0")
    a("s_waitcnt vmcnt(9)")
    a("s_mov_b32 s19, 0xbfb8aa3b")
    for i in range(9):
        a(f"v_lshlrev_b32 v{10+i}, 16, v{10+i}")
        a(f"v_mul_f32 v70, s19, v{10+i}")
        a("v_exp_f32 v70, v70")
        a("s_nop 0")
        a("v_add_f32 v70, 1.0, v70")
        a("v_rcp_f32 v70, v70")
        a("s_nop 0")
        a(f"v_mul_f32 v70, v70, v{10+i}")
        a("v_cvt_pk_bf16_f32 v70, v70, v70")
        a(f"v_lshlrev_b32 v{10+i}, 16, v70")
    for i in range(9):
        a(f"s_waitcnt vmcnt({8-i})")
        for q in range(4):
            a(f"v_lshlrev_b32 v70, 16, v{20+4*i+q}")
            a(f"v_and_b32 v71, 0xffff0000, v{20+4*i+q}")
            a(f"v_fmac_f32 v{60+2*q}, v70, v{10+i}")
            a(f"v_fmac_f32 v{61+2*q}, v71, v{10+i}")
    a("v_lshlrev_b32 v5, 5, v0")
    a("ds_write_b128 v5, v[60:63]")
    a("ds_write_b128 v5, v[64:67] offset:16")
    a("s_waitcnt lgkmcnt(0)")
    a("s_barrier")
    a("v_and_b32 v6, 31, v0")
    a("v_lshrrev_b32 v7, 5, v0")
    a("v_lshlrev_b32 v8, 10, v7")
    a("v_lshl_add_u32 v8, v6, 2, v8")
    for i in range(8):
        a(f"ds_read_b32 v{10+i}, v8 offset:{i*128}")
    a("s_waitcnt lgkmcnt(0)")
    for i in range(1, 8):
        a(f"v_add_f32 v10, v10, v{10+i}")
    a("v_lshlrev_b32 v9, 2, v0")
    a("ds_write_b32 v9, v10 offset:8192")
    a("s_waitcnt lgkmcnt(0)")
    a("s_barrier")
    a("v_lshlrev_b32 v8, 2, v6")
    for i in range(8):
        a(f"ds_read_b32 v{10+i}, v8 offset:{8192 + i*128}")
    a("s_waitcnt lgkmcnt(0)")
    for i in range(1, 8):
        a(f"v_add_f32 v10, v10, v{10+i}")
    a("v_cvt_pk_bf16_f32 v10, v10, v10")
    a("v_lshlrev_b32 v9, 1, v6")
    a("v_add_u32 v9, s17, v9")
    a("v_cmp_gt_u32 vcc, 32, v0")
    a("s_and_saveexec_b64 s[32:33], vcc")
    a("s_cbranch_execz K1_END")
    a("buffer_store_short v10, v9, s[28:31], 0 offen")
    a.label("K1_END")
    a("s_endpgm")

class Track:
    def __init__(self, a, name, maxn):
        self.a = a; self.name = name; self.maxn = maxn
        self.q = []
    def issue(self, tag):
        self.q.append(tag)
    def need(self, tag):
        idx = [i for i, t in enumerate(self.q) if t == tag]
        if not idx: return
        n = len(self.q) - 1 - idx[-1]
        n = min(n, self.maxn)
        self.a(f"s_waitcnt {self.name}({n})")
        self.q = self.q[len(self.q) - n:] if n else []
    def drain(self):
        self.a(f"s_waitcnt {self.name}(0)")
        self.q = []

def bf16_round(a, v, tmp=None):
    a(f"v_cvt_pk_bf16_f32 v{v}, v{v}, v{v}")
    a(f"v_lshlrev_b32 v{v}, 16, v{v}")

K2_LDS = 18432 + 4096
def gen_k2(a):
    kernel_header(a, "k2_kernel")
    a("s_cmp_ge_u32 s2, 128")
    a("s_cbranch_scc1 K2_END")
    a("s_load_dwordx2 s[4:5], s[0:1], 0")
    a("s_load_dwordx2 s[6:7], s[0:1], 112")
    a("v_lshrrev_b32 v1, 6, v0")
    a("v_and_b32 v2, 63, v0")
    a("s_nop 0")
    a("v_readfirstlane_b32 s17, v1")
    a("v_and_b32 v3, 15, v2")
    a("v_lshrrev_b32 v4, 4, v2")
    a("s_waitcnt lgkmcnt(0)")
    srd(a, 20, 4, NB_ACT)
    srd(a, 24, 6, NB_ACT, WS_Y2T)
    srd(a, 28, 6, 6 * D * 2, WS_MOD)
    srd(a, 32, 6, NB_ACT, WS_X1)
    srd(a, 36, 6, NB_ACT, WS_H2F)
    a("v_lshrrev_b32 v5, 1, v2")
    a("v_lshrrev_b32 v6, 4, v5")
    a("v_bfe_u32 v7, v5, 2, 2")
    a("v_and_b32 v8, 3, v5")
    a("v_lshlrev_b32 v7, 3, v7")
    a("v_lshl_add_u32 v7, v6, 2, v7")
    a("v_add_u32 v7, v7, v8")
    a("v_lshlrev_b32 v7, 5, v7")
    a("v_and_b32 v8, 1, v2")
    a("v_lshl_add_u32 v7, v8, 4, v7")
    a("s_mul_i32 s18, s2, 18432")
    a("s_lshl_b32 s19, s17, 11")
    a("s_add_u32 s18, s18, s19")
    a("s_mov_b32 m0, s19")
    a("s_nop 0")
    a("buffer_load_dwordx4 v7, s[24:27], s18 offen lds")
    a("buffer_load_dwordx4 v7, s[24:27], s18 offen offset:1024 lds")
    a("s_lshl_b32 s18, s2, 4")
    a("v_add_u32 v8, s18, v3")
    a("s_movk_i32 s18, 1152")
    a("v_mul_lo_u32 v8, v8, s18")
    a("v_lshlrev_b32 v9, 4, v4")
    a("s_lshl_b32 s18, s17, 7")
    a("v_add_u32 v9, s18, v9")
    a("v_add_u32 v8, v8, v9")
    a("buffer_load_dwordx4 v[12:15], v8, s[20:23], 0 offen")
    a("buffer_load_dwordx4 v[16:19], v8, s[20:23], 0 offen offset:64")
    for p in range(5):
        for kk in range(2):
            r = 20 + 8 * p + 4 * kk
            if p * 1152 + 64 * kk < 4096:
                a(f"buffer_load_dwordx4 v[{r}:{r+3}], v9, s[28:31], 0 offen offset:{p*1152 + 64*kk}")
            else:
                a("s_movk_i32 s18, 4608")
                a(f"buffer_load_dwordx4 v[{r}:{r+3}], v9, s[28:31], s18 offen offset:{64*kk}")
    a("v_lshlrev_b32 v10, 3, v2")
    a("v_add_u32 v10, s19, v10")
    a("v_lshlrev_b32 v11, 3, v3")
    a("v_add_u32 v11, 18432, v11")
    a("s_lshl_b32 s18, s17, 7")
    a("v_add_u32 v60, s18, v11")
    a("s_waitcnt vmcnt(10)")
    a("ds_read_b64_tr_b16 v[96:97], v10")
    a("ds_read_b64_tr_b16 v[98:99], v10 offset:512")
    a("ds_read_b64_tr_b16 v[100:101], v10 offset:1024")
    a("ds_read_b64_tr_b16 v[102:103], v10 offset:1536")
    for i in range(8):
        a(f"v_lshlrev_b32 v{64+2*i}, 16, v{12+i}")
        a(f"v_and_b32 v{65+2*i}, 0xffff0000, v{12+i}")
    def stats(src, rnd):
        a(f"v_add_f32 v62, v{src}, v{src+1}")
        a(f"v_mul_f32 v63, v{src}, v{src}")
        a(f"v_fmac_f32 v63, v{src+1}, v{src+1}")
        for i in range(2, 16):
            a(f"v_add_f32 v62, v62, v{src+i}")
            a(f"v_fmac_f32 v63, v{src+i}, v{src+i}")
        for sw in ("v_permlane16_swap_b32", "v_permlane32_swap_b32"):
            a("v_mov_b32 v104, v62")
            a("v_mov_b32 v105, v63")
            a("s_nop 1")
            a(f"{sw} v62, v104")
            a(f"{sw} v63, v105")
            a("s_nop 1")
            a("v_add_f32 v62, v62, v104")
            a("v_add_f32 v63, v63, v105")
        a(f"ds_write_b64 v60, v[62:63] offset:{rnd*2048}")
        a("s_waitcnt lgkmcnt(0)")
        a("s_barrier")
        for w in range(9):
            a(f"ds_read_b64 v[{106+2*w}:{107+2*w}], v11 offset:{rnd*2048 + w*128}")
        a("s_waitcnt lgkmcnt(0)")
        for w in range(1, 9):
            a(f"v_add_f32 v106, v106, v{106+2*w}")
            a(f"v_add_f32 v107, v107, v{107+2*w}")
        a("s_mov_b32 s18, 0x3ae38e39")
        a("v_mul_f32 v62, s18, v106")
        a("v_mul_f32 v63, s18, v107")
        a("v_fma_f32 v63, -v62, v62, v63")
        a("v_max_f32 v63, 0, v63")
        bf16_round(a, 62)
        bf16_round(a, 63)
        a("v_add_f32 v63, 0x3727c5ac, v63")
        bf16_round(a, 63)
        a("v_sqrt_f32 v63, v63")
        a("s_nop 0")
        bf16_round(a, 63)
        a("v_rcp_f32 v63, v63")
        a("s_nop 0")
    stats(64, 0)
    a("s_waitcnt vmcnt(0)")
    def punpack(dst, p, e):
        r = 20 + 8 * p + 4 * (e >> 3) + ((e & 7) >> 1)
        if e & 1: a(f"v_and_b32 v{dst}, 0xffff0000, v{r}")
        else: a(f"v_lshlrev_b32 v{dst}, 16, v{r}")
    for e in range(16):
        x = 64 + e
        yr = 96 + (e >> 1)
        punpack(104, 1, e)
        punpack(105, 0, e)
        punpack(106, 2, e)
        if e & 1: a(f"v_and_b32 v107, 0xffff0000, v{yr}")
        else: a(f"v_lshlrev_b32 v107, 16, v{yr}")
        a("v_add_f32 v104, 1.0, v104")
        a(f"v_sub_f32 v108, v{x}, v62")
        a("v_mul_f32 v108, v108, v63")
        a("v_fma_f32 v108, v108, v104, v105")
        a("v_mul_f32 v108, v108, v107")
        a(f"v_fma_f32 v{80+e}, v108, v106, v{x}")
    for i in range(8):
        a(f"v_cvt_pk_bf16_f32 v{12+i}, v{80+2*i}, v{81+2*i}")
    for i in range(8):
        a(f"v_lshlrev_b32 v{80+2*i}, 16, v{12+i}")
        a(f"v_and_b32 v{81+2*i}, 0xffff0000, v{12+i}")
    a("buffer_store_dwordx4 v[12:15], v8, s[32:35], 0 offen")
    a("buffer_store_dwordx4 v[16:19], v8, s[32:35], 0 offen offset:64")
    stats(80, 1)
    for e in range(16):
        punpack(104, 4, e)
        punpack(105, 3, e)
        a("v_add_f32 v104, 1.0, v104")
        a(f"v_sub_f32 v108, v{80+e}, v62")
        a("v_mul_f32 v108, v108, v63")
        a(f"v_fma_f32 v{64+e}, v108, v104, v105")
    for i in range(8):
        a(f"v_cvt_pk_bf16_f32 v{96+i}, v{64+2*i}, v{65+2*i}")
    a("s_mul_i32 s18, s2, 18432")
    a("s_add_u32 s18, s18, s19")
    a("v_lshlrev_b32 v9, 4, v2")
    a("buffer_store_dwordx4 v[96:99], v9, s[36:39], s18 offen")
    a("buffer_store_dwordx4 v[100:103], v9, s[36:39], s18 offen offset:1024")
    a.label("K2_END")
    a("s_endpgm")

ST_BYTES = 34816
G_LDS = 4 * ST_BYTES
NST = 18
def gen_gemm(a, mode):
    nm = "k3" if mode == 1 else "k4"
    kernel_header(a, nm + "_kernel")
    a("s_cmp_ge_u32 s2, 256")
    a(f"s_cbranch_scc1 {nm.upper()}_END")
    if mode == 1:
        a("s_load_dwordx4 s[4:7], s[0:1], 56")
    else:
        a("s_load_dwordx2 s[4:5], s[0:1], 72")
    a("s_load_dwordx2 s[8:9], s[0:1], 112")
    a("v_lshrrev_b32 v1, 6, v0")
    a("v_and_b32 v2, 63, v0")
    a("s_nop 0")
    a("v_readfirstlane_b32 s17, v1")
    a("s_and_b32 s10, s2, 7")
    a("s_lshr_b32 s11, s2, 3")
    a("s_and_b32 s12, s10, 1")
    a("s_lshr_b32 s13, s10, 1")
    if mode == 1:
        a("s_lshl_b32 s12, s12, 2")
        a("s_and_b32 s14, s11, 3")
        a("s_add_u32 s12, s12, s14")
        a("s_lshl_b32 s13, s13, 3")
        a("s_lshr_b32 s14, s11, 2")
        a("s_add_u32 s13, s13, s14")
    else:
        a("s_lshl_b32 s12, s12, 3")
        a("s_and_b32 s14, s11, 7")
        a("s_add_u32 s12, s12, s14")
        a("s_lshr_b32 s14, s11, 3")
    a("s_and_b32 s15, s17, 3")
    a("s_waitcnt lgkmcnt(0)")
    if mode == 1:
        srd(a, 20, 4, D * F * 2)
        srd(a, 24, 6, D * F * 2)
        srd(a, 28, 8, NB_ACT, WS_H2F)
        srd(a, 32, 8, S * F * 2, WS_HID)
        a("s_cmp_lt_u32 s15, 2")
        a("s_cselect_b32 s36, s4, s6")
        a("s_cselect_b32 s37, s5, s7")
        a(f"s_mov_b32 s38, {D*F*2}")
        a("s_mov_b32 s39, 0x00020000")
        pitch = 9216
    else:
        srd(a, 20, 4, D * F * 2)
        srd(a, 28, 8, S * F * 2, WS_HID)
        srd(a, 32, 8, 4 * S * D * 4, WS_PART)
        pitch = 1152
    a("v_lshlrev_b32 v3, 4, v2")
    if mode == 1:
        a("s_lshl_b32 s18, s15, 12")
    else:
        a("s_and_b32 s18, s15, 1")
        a("s_lshl_b32 s18, s18, 13")
        a("s_lshr_b32 s19, s15, 1")
        a("s_lshl_b32 s19, s19, 12")
        a("s_add_u32 s18, s18, s19")
    a("v_add_u32 v4, s18, v3")
    a("v_lshrrev_b32 v5, 2, v2")
    a("v_mul_u32_u24 v5, 288, v5")
    a("v_and_b32 v6, 3, v2")
    a("v_lshl_add_u32 v5, v6, 3, v5")
    a("v_add_u32 v5, 16384, v5")
    if mode == 1:
        a("s_and_b32 s16, s13, 1")
        a("s_lshl_b32 s18, s16, 5")
        a("v_add_u32 v6, s18, v5")
        a("s_cmp_eq_u32 s16, 0")
        a("s_cselect_b32 s18, 256, 0")
        a("v_add_u32 v7, s18, v5")
    else:
        a("s_and_b32 s18, s15, 1")
        a("s_mul_i32 s18, s18, 9216")
        a("v_add_u32 v6, s18, v5")
    a("s_cmp_ge_u32 s17, 4")
    a(f"s_cbranch_scc1 {nm.upper()}_TG1")
    for tg in range(2):
        if tg == 1:
            a.label(f"{nm.upper()}_TG1")
        gemm_body(a, mode, tg, pitch)
    a.label(f"{nm.upper()}_END")
    a("s_endpgm")

def gemm_body(a, mode, tg, pitch):
    nt = 5 if tg == 0 else 4
    vm = Track(a, "vmcnt", 63)
    lg = Track(a, "lgkmcnt", 15)
    if tg == 0:
        a("v_mov_b32 v8, v3")
        for i in range(4):
            if mode == 1:
                a("s_lshl_b32 s18, s12, 4")
                a("s_lshl_b32 s19, s15, 2")
                a("s_add_u32 s18, s18, s19")
                a(f"s_add_u32 s18, s18, {i}")
                a(f"s_mul_i32 s{40+i}, s18, 18432")
            else:
                a("s_and_b32 s18, s15, 1")
                a("s_lshl_b32 s18, s18, 2")
                a("s_lshl_b32 s19, s12, 3")
                a("s_add_u32 s18, s18, s19")
                a(f"s_add_u32 s18, s18, {i}")
                a("s_mul_i32 s18, s18, 144")
                a("s_mul_i32 s19, s13, 36")
                a("s_add_u32 s18, s18, s19")
                a("s_lshr_b32 s19, s15, 1")
                a("s_add_u32 s18, s18, s19")
                a(f"s_lshl_b32 s{40+i}, s18, 10")
        a("s_lshl_b32 s44, s15, 12")
        astep = 1024 if mode == 1 else 2048
        def dma(st):
            base = (st & 3) * ST_BYTES
            for i in range(4):
                a(f"s_add_u32 m0, s44, {base + i*1024}")
                a("s_nop 0")
                a(f"buffer_load_dwordx4 v8, s[28:31], s{40+i} offen lds")
                vm.issue(("d", st))
            a(f"v_add_u32 v8, {astep}, v8")
    else:
        def qaddr(dst):
            a(f"v_mul_u32_u24 v12, 3641, v{dst}")
            a("v_lshrrev_b32 v12, 16, v12")
            a("v_mul_u32_u24 v13, 18, v12")
            a(f"v_sub_u32 v13, v{dst}, v13")
            if mode == 1:
                a("v_lshrrev_b32 v14, 4, v12")
                a("v_bfe_u32 v15, v12, 2, 2")
                a("v_and_b32 v12, 3, v12")
                a("v_lshl_add_u32 v12, v15, 3, v12")
                a("v_lshl_add_u32 v12, v14, 2, v12")
            a(f"v_mul_u32_u24 v12, {pitch}, v12")
            a(f"v_lshl_add_u32 v{dst}, v13, 4, v12")
        a("s_lshl_b32 s18, s15, 7")
        a("v_add_u32 v8, s18, v2")
        a("v_add_u32 v9, 64, v8")
        a("s_and_b32 s18, s15, 1")
        a("s_lshl_b32 s18, s18, 5")
        a("s_add_u32 s18, s18, 512")
        a("v_add_u32 v10, s18, v2")
        qaddr(8); qaddr(9); qaddr(10)
        if mode == 1:
            a("s_mul_i32 s40, s13, 288")
        else:
            a(f"s_mul_i32 s40, s13, {1152*1152}")
            a("s_mul_i32 s18, s14, 288")
            a("s_add_u32 s40, s40, s18")
        a("s_lshl_b32 s44, s15, 11")
        a("s_lshr_b32 s45, s15, 1")
        a("s_mul_i32 s45, s45, 9216")
        a("s_and_b32 s18, s15, 1")
        a("s_lshl_b32 s18, s18, 9")
        a("s_add_u32 s45, s45, s18")
        if mode == 2:
            a("s_lshr_b32 s46, s15, 1")
            a(f"s_mul_i32 s46, s46, {32*pitch}")
        wstep = 32 * pitch if mode == 1 else 64 * pitch
        def dma(st):
            base = (st & 3) * ST_BYTES + 16384
            if mode == 2:
                a(f"s_add_u32 s41, s40, {32*pitch}")
                a("s_add_u32 s42, s40, s46")
            for blk in range(2):
                for j in range(2):
                    a(f"s_add_u32 m0, s44, {base + blk*9216 + j*1024}")
                    a("s_nop 0")
                    if mode == 1:
                        a(f"buffer_load_dwordx4 v{8+j}, s[{20+4*blk}:{23+4*blk}], s40 offen lds")
                    else:
                        a(f"buffer_load_dwordx4 v{8+j}, s[20:23], s{40+blk} offen lds")
                    vm.issue(("d", st))
            a(f"s_add_u32 m0, s45, {base + 8192}")
            a("s_mov_b64 exec, 0xffffffff")
            if mode == 1:
                a("buffer_load_dwordx4 v10, s[36:39], s40 offen lds")
            else:
                a("buffer_load_dwordx4 v10, s[20:23], s42 offen lds")
            vm.issue(("d", st))
            a("s_mov_b64 exec, -1")
            a(f"s_add_u32 s40, s40, {wstep}")
    AF = 16
    WR = 48
    ACC = 64
    nblk = 2 if mode == 1 else 1
    units = [(t, b) for t in range(nt) for b in range(nblk)]
    U = len(units)
    def acc(t, b, i): return ACC + ((t * nblk + b) * 4 + i) * 4
    nacc = U * 16
    for r in range(nacc):
        a(f"v_mov_b32 v{ACC+r}, 0")
    def w_addr(t, b):
        if mode == 1:
            if tg == 0:
                if t == 0: return 7, b * 9216
                return 6, b * 9216 + (t - 1) * 32
            return 6, b * 9216 + (4 + t) * 32
        else:
            return 6, (t if tg == 0 else 5 + t) * 32
    def read_w(gu):
        st, u = divmod(gu, U)
        if st >= NST: return
        t, b = units[u]
        vr, off = w_addr(t, b)
        off += (st & 3) * ST_BYTES
        r = WR + (gu & 3) * 4
        if off + 4608 >= 65536:
            vr2 = {6: 12, 7: 13}[vr]; off -= 65536 - 0
            vr = vr2
        a(f"ds_read_b64_tr_b16 v[{r}:{r+1}], v{vr} offset:{off}")
        lg.issue(("w", gu))
        a(f"ds_read_b64_tr_b16 v[{r+2}:{r+3}], v{vr} offset:{off+4608}")
        lg.issue(("w", gu))
    def read_a(st, i):
        if st >= NST: return
        off = (st & 3) * ST_BYTES + i * 1024
        vr = 4
        if off >= 65536 - 16384:
            vr = 14; off -= 65536
        r = AF + (st & 1) * 16 + i * 4
        a(f"ds_read_b128 v[{r}:{r+3}], v{vr} offset:{off}")
        lg.issue(("a", st, i))
    a("v_add_u32 v12, 0x10000, v6")
    if mode == 1 and tg == 0:
        a("v_add_u32 v13, 0x10000, v7")
    a("v_add_u32 v14, 0x10000, v4")
    dma(0); dma(1); dma(2)
    PD = 3
    first = True
    for st in range(NST):
        vm.need(("d", min(st + 1, NST - 1)))
        a("s_barrier")
        if st + 3 < NST:
            dma(st + 3)
        if st == 0:
            for i in range(4): read_a(0, i)
            for gu in range(PD): read_w(gu)
        for u in range(U):
            gu = st * U + u
            read_w(gu + PD)
            if u >= U - 4:
                read_a(st + 1, u - (U - 4))
            lg.need(("w", gu))
            if u == 0:
                lg.need(("a", st, 3))
            t, b = units[u]
            r = WR + (gu & 3) * 4
            for i in range(4):
                ar = AF + (st & 1) * 16 + i * 4
                ac = acc(t, b, i)
                a(f"v_mfma_f32_16x16x32_bf16 v[{ac}:{ac+3}], v[{r}:{r+3}], v[{ar}:{ar+3}], v[{ac}:{ac+3}]")
    a("s_nop 7")
    if mode == 1:
        a("s_mul_i32 s18, s13, 9")
        a("s_add_u32 s18, s18, s16")
        a("s_lshr_b32 s18, s18, 1")
        a("s_lshl_b32 s19, s12, 4")
        a("s_lshl_b32 s40, s15, 2")
        a("s_add_u32 s19, s19, s40")
        a("s_mul_i32 s19, s19, 144")
        a("s_add_u32 s40, s19, s18")
        a("s_lshl_b32 s40, s40, 10")
        if tg == 0:
            a("s_mul_i32 s41, s13, 9")
            a("s_cmp_eq_u32 s16, 0")
            a("s_cselect_b32 s42, 8, 0")
            a("s_add_u32 s41, s41, s42")
            a("s_lshr_b32 s41, s41, 1")
            a("s_add_u32 s41, s41, s19")
            a("s_lshl_b32 s41, s41, 10")
            a("s_lshl_b32 s42, s16, 3")
            a("s_add_u32 s41, s41, s42")
        def hid(t, i, dst):
            g = acc(t, 0, i); u_ = acc(t, 1, i)
            for q in range(4):
                a(f"v_max_f32 v{g+q}, 0, v{g+q}")
            for q in range(4):
                a(f"v_mul_f32 v{g+q}, v{g+q}, v{u_+q}")
            a(f"v_cvt_pk_bf16_f32 v{dst}, v{g}, v{g+1}")
            a(f"v_cvt_pk_bf16_f32 v{dst+1}, v{g+2}, v{g+3}")
        slot = 0
        for i in range(4):
            pairs = [(1, 2), (3, 4)] if tg == 0 else [(0, 1), (2, 3)]
            for pp, (t0, t1) in enumerate(pairs):
                dst = 16 + (slot % 8) * 4; slot += 1
                hid(t0, i, dst); hid(t1, i, dst + 2)
                po = (pp + (0 if tg == 0 else 2)) * 1024
                a(f"s_add_u32 s42, s40, {i*144*1024 + po}")
                a(f"buffer_store_dwordx4 v[{dst}:{dst+3}], v3, s[32:35], s42 offen")
            if tg == 0:
                dst = 16 + (slot % 8) * 4; slot += 1
                hid(0, i, dst)
                a(f"s_add_u32 s42, s41, {i*144*1024}")
                a(f"buffer_store_dwordx2 v[{dst}:{dst+1}], v3, s[32:35], s42 offen")
    else:
        a("s_barrier")
        a("s_lshr_b32 s18, s15, 1")
        a(f"s_add_u32 s18, s18, {tg*2}")
        a("s_lshl_b32 s18, s18, 1")
        a("s_and_b32 s16, s15, 1")
        a("s_add_u32 s19, s18, s16")
        a("s_mul_i32 s19, s19, 10240")
        a("s_xor_b32 s40, s16, 1")
        a("s_add_u32 s18, s18, s40")
        a("s_mul_i32 s18, s18, 10240")
        a("v_add_u32 v8, s19, v3")
        a("v_add_u32 v9, s18, v3")
        a("s_cmp_eq_u32 s16, 0")
        lbl = f"K4_EP{tg}"
        a(f"s_cbranch_scc0 {lbl}_B")
        for kg in range(2):
            if kg == 1: a.label(f"{lbl}_B")
            keep = [2 * kg, 2 * kg + 1]; send = [2 - 2 * kg, 3 - 2 * kg]
            for t in range(nt):
                for ii, i in enumerate(send):
                    ac = acc(t, 0, i)
                    a(f"ds_write_b128 v8, v[{ac}:{ac+3}] offset:{(t*2+ii)*1024}")
            a("s_waitcnt lgkmcnt(0)")
            a("s_barrier")
            a("s_lshl_b32 s40, s13, 7")
            a("s_lshl_b32 s41, s12, 3")
            a("s_add_u32 s40, s40, s41")
            a("s_lshr_b32 s41, s15, 1")
            a("s_lshl_b32 s41, s41, 2")
            a("s_add_u32 s40, s40, s41")
            a("s_mul_i32 s40, s40, 36")
            a("s_mul_i32 s41, s14, 9")
            a("s_add_u32 s40, s40, s41")
            a("s_lshl_b32 s40, s40, 10")
            for t in range(nt):
                for ii, i in enumerate(keep):
                    r = 16 + ((t * 2 + ii) % 10) * 4
                    a(f"ds_read_b128 v[{r}:{r+3}], v9 offset:{(t*2+ii)*1024}")
            for t in range(nt):
                for ii, i in enumerate(keep):
                    r = 16 + ((t * 2 + ii) % 10) * 4
                    ac = acc(t, 0, i)
                    a(f"s_waitcnt lgkmcnt({min(15, 2*nt - 1 - (t*2+ii))})")
                    for q in range(4):
                        a(f"v_add_f32 v{ac+q}, v{ac+q}, v{r+q}")
                    a(f"s_add_u32 s42, s40, {(i*36 + t + (0 if tg == 0 else 5))*1024}")
                    a(f"buffer_store_dwordx4 v[{ac}:{ac+3}], v3, s[32:35], s42 offen")
            a("s_endpgm")
    if mode == 1:
        a("s_endpgm")

def gen_k5(a):
    kernel_header(a, "k5_kernel")
    a("s_cmp_ge_u32 s2, 576")
    a("s_cbranch_scc1 K5_END")
    a("s_load_dwordx2 s[4:5], s[0:1], 96")
    a("s_load_dwordx2 s[6:7], s[0:1], 112")
    a("v_lshrrev_b32 v1, 6, v0")
    a("v_and_b32 v2, 63, v0")
    a("s_nop 0")
    a("v_readfirstlane_b32 s17, v1")
    a("s_waitcnt lgkmcnt(0)")
    srd(a, 20, 6, 4 * S * D * 4, WS_PART)
    srd(a, 24, 6, NB_ACT, WS_X1)
    srd(a, 28, 6, 6 * D * 2, WS_MOD)
    srd(a, 32, 4, NB_ACT)
    a("s_lshl_b32 s18, s2, 2")
    a("s_add_u32 s18, s18, s17")
    a("s_mul_i32 s19, s18, 3641")
    a("s_lshr_b32 s19, s19, 16")
    a("s_mul_i32 s16, s19, 18")
    a("s_sub_u32 s16, s18, s16")
    a("s_lshl_b32 s18, s18, 11")
    a("v_lshlrev_b32 v3, 4, v2")
    for sp in range(4):
        a(f"s_add_u32 s15, s18, {sp*S*D*4}")
        for t in range(2):
            r = 16 + (sp * 2 + t) * 4
            a(f"buffer_load_dwordx4 v[{r}:{r+3}], v3, s[20:23], s15 offen offset:{t*1024}")
    a("v_and_b32 v4, 15, v2")
    a("v_lshrrev_b32 v5, 4, v2")
    a("s_lshl_b32 s15, s19, 4")
    a("v_add_u32 v4, s15, v4")
    a("s_movk_i32 s15, 1152")
    a("v_mul_lo_u32 v4, v4, s15")
    a("v_lshlrev_b32 v5, 3, v5")
    a("s_lshl_b32 s15, s16, 6")
    a("v_add_u32 v5, s15, v5")
    a("v_add_u32 v4, v4, v5")
    a("buffer_load_dwordx2 v[48:49], v4, s[24:27], 0 offen")
    a("buffer_load_dwordx2 v[50:51], v4, s[24:27], 0 offen offset:32")
    a("s_movk_i32 s15, 5760")
    a("buffer_load_dwordx2 v[52:53], v5, s[28:31], s15 offen")
    a("buffer_load_dwordx2 v[54:55], v5, s[28:31], s15 offen offset:32")
    a("s_waitcnt vmcnt(4)")
    for t in range(2):
        for q in range(4):
            r = 16 + t * 4 + q
            a(f"v_add_f32 v{r}, v{r}, v{r+8}")
            a(f"v_add_f32 v{r+16}, v{r+16}, v{r+24}")
            a(f"v_add_f32 v{r}, v{r}, v{r+16}")
    a("s_waitcnt vmcnt(0)")
    for t in range(2):
        b = 16 + t * 4
        a(f"v_cvt_pk_bf16_f32 v56, v{b}, v{b+1}")
        a(f"v_cvt_pk_bf16_f32 v57, v{b+2}, v{b+3}")
        for q in range(4):
            src = 56 + (q >> 1); gbr = 52 + 2 * t + (q >> 1); xr = 48 + 2 * t + (q >> 1)
            if q & 1:
                a(f"v_and_b32 v58, 0xffff0000, v{src}")
                a(f"v_and_b32 v59, 0xffff0000, v{gbr}")
                a(f"v_and_b32 v60, 0xffff0000, v{xr}")
            else:
                a(f"v_lshlrev_b32 v58, 16, v{src}")
                a(f"v_lshlrev_b32 v59, 16, v{gbr}")
                a(f"v_lshlrev_b32 v60, 16, v{xr}")
            a("v_mul_f32 v58, v58, v59")
            a("v_cvt_pk_bf16_f32 v58, v58, v58")
            a("v_lshlrev_b32 v58, 16, v58")
            a(f"v_add_f32 v{b+q}, v58, v60")
        a(f"v_cvt_pk_bf16_f32 v{62+2*t}, v{b}, v{b+1}")
        a(f"v_cvt_pk_bf16_f32 v{63+2*t}, v{b+2}, v{b+3}")
        a(f"buffer_store_dwordx2 v[{62+2*t}:{63+2*t}], v4, s[32:35], 0 offen offset:{32*t}")
    a.label("K5_END")
    a("s_endpgm")

def main(out):
    a = Asm()
    hdr = open("adaLN_cond__ssm_conv_h3__glu_gated_reglu__prompt.s.ref").read().split("; Override launch geometry")[0]
    launches = [
        ("k1_kernel", 252, 256, K1_LDS),
        ("k2_kernel", 128, 576, K2_LDS),
        ("k3_kernel", 256, 512, G_LDS),
        ("k4_kernel", 256, 512, G_LDS),
        ("k5_kernel", 576, 256, 0),
    ]
    txt = hdr
    for (n, g, b, l) in launches:
        txt += f"; @launch kernel={n} grid=({g},1,1) block=({b},1,1) lds={l}\n"
    txt += '.amdgcn_target "amdgcn-amd-amdhsa--gfx950"\n.text\n'
    gen_k1(a)
    gen_k2(a)
    gen_gemm(a, 1)
    gen_gemm(a, 2)
    gen_k5(a)
    txt += a.text()
    txt += '.section .rodata,"a"\n'
    txt += kernel_desc("k1_kernel", 128)
    txt += kernel_desc("k2_kernel", 128)
    txt += kernel_desc("k3_kernel", 224)
    txt += kernel_desc("k4_kernel", 144)
    txt += kernel_desc("k5_kernel", 72)
    open(out, "w").write(txt)

if __name__ == "__main__":
    if len(sys.argv) > 2 and sys.argv[2] == "stamp":
        STAMP = True
    main(sys.argv[1] if len(sys.argv) > 1 else "k.s")
```

```python
import sys

S = 2048; D = 576; F = 4608
WS_MOD  = 0x0
WS_Y2T  = 0x10000
WS_H2F  = 0x300000
WS_X1   = 0x600000
WS_HID  = 0x1000000
WS_PART = 0x3000000
NB_ACT = S * D * 2

class Asm:
    def __init__(self):
        self.lines = []
    def __call__(self, s):
        for l in s.split("\n"):
            l = l.strip()
            if l:
                self.lines.append("    " + l if not l.endswith(":") else l)
    def label(self, l):
        self.lines.append(l + ":")
    def text(self):
        return "\n".join(self.lines) + "\n"

def srd(a, d, base, nbytes, off=0):
    if off:
        a(f"s_add_u32 s{d}, s{base}, {off}")
        a(f"s_addc_u32 s{d+1}, s{base+1}, 0")
    else:
        a(f"s_mov_b32 s{d}, s{base}")
        a(f"s_mov_b32 s{d+1}, s{base+1}")
    a(f"s_mov_b32 s{d+2}, {nbytes}")
    a(f"s_mov_b32 s{d+3}, 0x00020000")

STAMP = False
SV = 120
def stamp(a, idx):
    if not STAMP: return
    if idx == 0:
        a("s_memrealtime s[100:101]")
        a("s_waitcnt lgkmcnt(0)")
        a(f"v_mov_b32 v{SV+7}, s100")
    a("s_memtime s[100:101]")
    a("s_waitcnt lgkmcnt(0)")
    a(f"v_mov_b32 v{SV+idx}, s100")
def stamp_flush(a, n, wg):
    if not STAMP: return
    lbl = f"STAMP_SKIP_{len(a.lines)}"
    a(f"s_cmp_lg_u32 s2, {wg}")
    a(f"s_cbranch_scc1 {lbl}")
    a("s_memrealtime s[100:101]")
    a("s_load_dwordx2 s[72:73], s[0:1], 104")
    a("s_waitcnt lgkmcnt(0)")
    a("s_mov_b32 s74, 256")
    a("s_mov_b32 s75, 0x00020000")
    a("v_lshrrev_b32 v1, 6, v0")
    a("v_lshlrev_b32 v1, 5, v1")
    for i in range(n):
        a(f"v_sub_u32 v2, v{SV+i}, v{SV}")
        a(f"buffer_store_dword v2, v1, s[72:75], 0 offen offset:{4*i}")
    a(f"v_sub_u32 v2, s100, v{SV+7}")
    a(f"buffer_store_dword v2, v1, s[72:75], 0 offen offset:28")
    a("s_waitcnt vmcnt(0)")
    a.label(lbl)

def kernel_header(a, name):
    a.lines.append(f".globl {name}")
    a.lines.append(".p2align 8")
    a.lines.append(f".type {name},@function")
    a.label(name)

def kernel_desc(name, vgpr, sgpr=102, accum=None):
    if accum is None:
        accum = (vgpr + 3) // 4 * 4
    return f""".p2align 6
.amdhsa_kernel {name}
  .amdhsa_next_free_vgpr {vgpr}
  .amdhsa_next_free_sgpr {sgpr}
  .amdhsa_accum_offset {accum}
  .amdhsa_group_segment_fixed_size 0
  .amdhsa_kernarg_size 120
  .amdhsa_user_sgpr_count 2
  .amdhsa_user_sgpr_kernarg_segment_ptr 1
  .amdhsa_system_sgpr_workgroup_id_x 1
.end_amdhsa_kernel
"""

K1_CH = 24832
K1_CP = 4160
K1_U = 16640
K1_LDS = 4 * K1_CH + 4 * 1088

def gen_k1(a):
    kernel_header(a, "k1_kernel")
    a("s_cmp_ge_u32 s2, 252")
    a("s_cbranch_scc1 K1_END")
    a("s_cmp_ge_u32 s2, 144")
    a("s_cbranch_scc1 K1_MOD")
    stamp(a, 0)
    a("s_load_dwordx4 s[4:7], s[0:1], 8")
    a("s_load_dwordx4 s[8:11], s[0:1], 24")
    a("s_load_dwordx2 s[12:13], s[0:1], 40")
    a("s_load_dwordx2 s[14:15], s[0:1], 112")
    a("s_and_b32 s3, s2, 7")
    a("s_mul_i32 s3, s3, 18")
    a("s_lshr_b32 s16, s2, 3")
    a("s_add_u32 s3, s3, s16")
    a("v_lshrrev_b32 v1, 6, v0")
    a("v_and_b32 v2, 63, v0")
    a("s_nop 0")
    a("v_readfirstlane_b32 s17, v1")
    a("s_waitcnt lgkmcnt(0)")
    stamp(a, 1)
    srd(a, 20, 4, NB_ACT)
    srd(a, 24, 6, NB_ACT)
    srd(a, 28, 10, NB_ACT)
    srd(a, 32, 14, NB_ACT, WS_Y2T)
    a("s_cmp_ge_u32 s17, 4")
    a("s_cbranch_scc1 K1_LOADER")
    a("s_lshl_b32 s16, s3, 3")
    a("s_add_u32 s12, s12, s16")
    a("s_addc_u32 s13, s13, 0")
    a("s_load_dwordx2 s[44:45], s[12:13], 0")
    a("s_lshl_b32 s46, s3, 2")
    a("s_add_u32 s46, s46, s17")
    a("s_lshl_b32 s46, s46, 12")
    a(f"s_mul_i32 s47, s17, {K1_CH}")
    a("v_lshlrev_b32 v11, 4, v2")
    a("v_add_u32 v5, s46, v11")
    a("s_add_u32 m0, s47, 64")
    a("s_nop 0")
    for i in range(4):
        a(f"buffer_load_dwordx4 v5, s[28:31], 0 offen offset:{i*1024} lds")
    stamp(a, 2)
    for r in range(4):
        a(f"v_mov_b32 v{56+r}, 0")
    a("v_add_u32 v11, s47, v11")
    for i in range(3):
        a(f"ds_write_b128 v11, v[56:59] offset:{K1_U + 5120 + i*1024}")
    a("v_lshrrev_b32 v54, 2, v2")
    a(f"v_mul_u32_u24 v54, {K1_CP}, v54")
    a("v_and_b32 v55, 3, v2")
    a("v_lshlrev_b32 v55, 4, v55")
    a("v_add3_u32 v54, v54, v55, s47")
    a("s_mov_b64 exec, 0xffff")
    a("ds_write_b128 v54, v[56:59]")
    a("s_mov_b64 exec, -1")
    a("v_and_b32 v3, 15, v2")
    a("v_lshrrev_b32 v4, 4, v2")
    a("v_add_u32 v5, 1, v3")
    a("v_and_b32 v5, 3, v5")
    a("v_lshlrev_b32 v6, 3, v4")
    a("v_sub_u32 v6, v3, v6")
    a("v_sub_u32 v6, v6, v5")
    a("v_add_u32 v6, 25, v6")
    a("v_lshlrev_b32 v6, 1, v6")
    a(f"v_mul_u32_u24 v7, {K1_CP}, v5")
    a("v_add3_u32 v6, v6, v7, s47")
    a("v_sub_u32 v7, 15, v3")
    a("v_mul_u32_u24 v7, 160, v7")
    a("v_lshlrev_b32 v8, 4, v4")
    a("v_sub_u32 v7, v7, v8")
    a(f"v_add_u32 v7, {K1_U + 48}, v7")
    a("v_add_u32 v7, s47, v7")
    a("v_sub_u32 v8, 15, v3")
    a("v_mul_u32_u24 v8, 160, v8")
    a("v_lshlrev_b32 v9, 3, v4")
    a("v_sub_u32 v8, v8, v9")
    a(f"v_add_u32 v8, {K1_U + 24}, v8")
    a("v_add_u32 v8, s47, v8")
    a("s_mov_b32 s66, 73728")
    a("v_mul_lo_u32 v9, v3, s66")
    a("v_lshlrev_b32 v10, 3, v4")
    a("s_lshr_b32 s66, s46, 7")
    a("v_add3_u32 v9, v9, v10, s66")
    ACC = 16
    for r in range(32):
        a(f"v_mov_b32 v{ACC+r}, 0")
    a("s_waitcnt lgkmcnt(0)")
    a("s_cmp_lt_u32 s17, 2")
    a("s_cselect_b32 s64, s44, s45")
    a("s_and_b32 s65, s17, 1")
    a("s_cmp_eq_u32 s65, 0")
    a("s_cselect_b32 s65, 16, 0")
    a("s_lshl_b32 s64, s64, s65")
    a("s_and_b32 s64, s64, 0xffff0000")
    a("s_waitcnt vmcnt(0)")
    bases = [-1, 63, 127, 191, 192]
    for i, ub in enumerate(bases):
        r = 48 + 8 * i
        a(f"ds_read_b128 v[{r}:{r+3}], v11 offset:{64 + ub*16}")
        a(f"ds_read_b64 v[{r+4}:{r+5}], v11 offset:{64 + ub*16 + 16}")
    for i, ub in enumerate(bases):
        r = 48 + 8 * i
        a(f"s_waitcnt lgkmcnt({min(15, 2*(4-i) + 3*i)})")
        t = 96 + 12 * (i & 1)
        for q in range(4):
            a(f"v_alignbit_b32 v{t+q}, v{r+q+1}, v{r+q}, 16")
            a(f"v_mov_b32 v{t+4+q}, v{r+q+1}")
            a(f"v_alignbit_b32 v{t+8+q}, v{r+q+2}, v{r+q+1}, 16")
        for j in range(1, 4):
            a(f"ds_write_b128 v11, v[{t+4*(j-1)}:{t+4*(j-1)+3}] offset:{j*K1_CP + 64 + ub*16}")
    a("s_waitcnt lgkmcnt(0)")
    stamp(a, 3)
    AR = 48
    BR = 96
    lg = Track(a, "lgkmcnt", 15)
    phases = []
    for q in range(8):
        st = []
        if q < 4:
            st += [(0, d) for d in range(12 - 4*q, 16 - 4*q)]
        st += [(1, d) for d in range(28 - 4*q, 32 - 4*q)]
        phases.append(st)
    slot_of = {}
    state = {"next": 0, "cnt": 0}
    def a_loads(p, key):
        sl = state["next"] % 12; state["next"] += 1
        slot_of[(key, p)] = sl
        r = AR + sl * 4
        return [(f"ds_read_b64 v[{r}:{r+1}], v6 offset:{32*p}", ("A", key, p)),
                (f"ds_read_b64 v[{r+2}:{r+3}], v6 offset:{32*p+8}", ("A", key, p))]
    def step_loads(steps, i, key, a_only=False, b_only=False):
        nt, dl = steps[i]
        L = []
        if not a_only:
            for ks in range(2):
                r = BR + (i & 1) * 8 + ks * 4
                L.append((f"ds_read_b128 v[{r}:{r+3}], v7 offset:{(16 - 16*nt + dl)*160 + 64 - 64*ks}", ("B", key, i)))
        if not b_only:
            run_start = (i % 4 == 0)
            ps = range(4 * dl - 2, 4 * dl + 4) if run_start else range(4 * dl, 4 * dl + 4)
            for p in ps:
                if p >= 0:
                    L += a_loads(p, (key, i // 4))
        return L
    def emit(L):
        for (t, tag) in L:
            a(t); lg.issue(tag)
    for ph, steps in enumerate(phases):
        emit(step_loads(steps, 0, ph, a_only=True))
        a("s_barrier")
        if ph == 0: stamp(a, 4)
        if ph == 7: stamp(a, 5)
        emit(step_loads(steps, 0, ph, b_only=True))
        for i, (nt, dl) in enumerate(steps):
            nxt = step_loads(steps, i + 1, ph) if i + 1 < len(steps) else []
            mf = []
            for ks in (1, 0):
                for mt in range(4):
                    p = 4 * dl + mt - 2 * ks
                    if p < 0: continue
                    ac = ACC + (nt * 4 + mt) * 4
                    ar = AR + slot_of[((ph, i // 4), p)] * 4
                    br = BR + (i & 1) * 8 + ks * 4
                    mf.append((f"v_mfma_f32_16x16x32_bf16 v[{ac}:{ac+3}], v[{ar}:{ar+3}], v[{br}:{br+3}], v[{ac}:{ac+3}]", p))
            pre = nxt[:2]; rest = nxt[2:]
            emit(pre)
            lg.need(("B", ph, i))
            lg.need(("A", (ph, i // 4), 4 * dl + 3))
            k = 0
            for j, (m, p) in enumerate(mf):
                a(m)
                n_to = (len(rest) * (j + 1) + len(mf) - 1) // len(mf)
                while k < min(n_to, len(rest)):
                    emit([rest[k]]); k += 1
            while k < len(rest):
                emit([rest[k]]); k += 1
    for nt in range(2):
        for mt in range(4):
            r = 48 + (nt * 4 + mt) * 2
            a(f"ds_read_b64 v[{r}:{r+1}], v8 offset:{(16-16*nt)*160 + 96 - 32*mt}")
    a("s_nop 7")
    a("s_waitcnt lgkmcnt(0)")
    for nt in range(2):
        for mt in range(4):
            r = 48 + (nt * 4 + mt) * 2
            ac = ACC + (nt * 4 + mt) * 4
            a(f"v_and_b32 v64, 0xffff0000, v{r+1}")
            a(f"v_lshlrev_b32 v65, 16, v{r+1}")
            a(f"v_and_b32 v66, 0xffff0000, v{r}")
            a(f"v_lshlrev_b32 v67, 16, v{r}")
            for q in range(4):
                a(f"v_fmac_f32 v{ac+q}, s64, v{64+q}")
            a(f"v_cvt_pk_bf16_f32 v{r}, v{ac}, v{ac+1}")
            a(f"v_cvt_pk_bf16_f32 v{r+1}, v{ac+2}, v{ac+3}")
            a(f"s_mov_b32 s66, {(nt*64+mt)*18432}")
            a(f"buffer_store_dwordx2 v[{r}:{r+1}], v9, s[32:35], s66 offen")
    stamp(a, 6)
    stamp_flush(a, 7, 77)
    a("s_endpgm")
    a.label("K1_LOADER")
    NCK = 8
    a("s_sub_u32 s17, s17, 4")
    a("s_lshl_b32 s16, s3, 3")
    a("s_mul_i32 s18, s17, 73728")
    a("s_add_u32 s18, s18, s16")
    a("s_add_u32 s42, s4, s18")
    a("s_addc_u32 s43, s5, 0")
    for i in range(6):
        a(f"s_mov_b32 s{48+i}, 0")
    a("s_cmp_eq_u32 s17, 0")
    a("s_cbranch_scc1 K1_NOHALO")
    a("s_sub_u32 s44, s42, 3456")
    a("s_subb_u32 s45, s43, 0")
    for i in range(3):
        a(f"s_load_dwordx2 s[{48+2*i}:{49+2*i}], s[44:45], {i*1152}")
    a.label("K1_NOHALO")
    srd(a, 36, 8, D * 8)
    a("s_lshl_b32 s18, s17, 6")
    a("v_add_u32 v8, s18, v2")
    a("s_movk_i32 s18, 1152")
    a("v_mul_lo_u32 v8, v8, s18")
    a("v_add_u32 v8, s16, v8")
    vm = Track(a, "vmcnt", 63)
    def issue_chunk(c):
        b = 16 + (c % 3) * 4
        a(f"s_mov_b32 s40, {c*294912}")
        a(f"buffer_load_dwordx2 v[{b}:{b+1}], v8, s[20:23], s40 offen"); vm.issue(f"c{c}")
        a(f"buffer_load_dwordx2 v[{b+2}:{b+3}], v8, s[24:27], s40 offen"); vm.issue(f"c{c}")
    issue_chunk(0)
    a("v_and_b32 v3, 7, v2")
    a("v_bfe_u32 v4, v2, 3, 2")
    a("s_lshl_b32 s18, s3, 5")
    a("v_lshl_add_u32 v5, v4, 3, s18")
    a("buffer_load_dwordx2 v[6:7], v5, s[36:39], 0 offen")
    vm.issue("taps")
    for c in range(1, NCK):
        a(f"s_add_u32 s44, s42, {c*294912 - 3456}")
        a(f"s_addc_u32 s45, s43, 0")
        for i in range(3):
            a(f"s_load_dwordx2 s[{48+6*c+2*i}:{49+6*c+2*i}], s[44:45], {i*1152}")
    a(f"s_mul_i32 s46, s17, 1088")
    a(f"s_add_u32 s46, s46, {4*K1_CH}")
    a("v_lshlrev_b32 v9, 2, v2")
    a("v_add_u32 v9, s46, v9")
    a("v_and_b32 v10, 1, v2")
    a("v_mul_u32_u24 v10, 272, v10")
    a("v_lshrrev_b32 v11, 1, v2")
    a("v_lshl_add_u32 v10, v11, 2, v10")
    a("v_add_u32 v10, 4, v10")
    a("v_add_u32 v10, s46, v10")
    a("v_lshrrev_b32 v11, 1, v4")
    a("v_mul_u32_u24 v12, 272, v11")
    a("v_lshl_add_u32 v12, v3, 5, v12")
    a("v_add_u32 v12, s46, v12")
    a("v_lshlrev_b32 v13, 8, v11")
    a("v_lshl_add_u32 v13, v3, 5, v13")
    a("v_add_u32 v13, s46, v13")
    a("v_and_b32 v14, 1, v4")
    a("v_mul_u32_u24 v14, 0x0202, v14")
    a("v_lshlrev_b32 v14, 16, v14")
    a("v_add_u32 v14, 0x01000c0c, v14")
    a("s_sub_u32 s18, 3, s17")
    a("s_mul_i32 s18, s18, 160")
    a(f"s_add_u32 s18, s18, {K1_U + 112}")
    a(f"s_mov_b32 s19, {K1_CH}")
    a("v_mul_lo_u32 v60, v4, s19")
    a("v_lshlrev_b32 v61, 4, v3")
    a("v_sub_u32 v60, v60, v61")
    a("v_add_u32 v60, s18, v60")
    issue_chunk(1)
    stamp(a, 2)
    vm.need("taps")
    a("v_lshlrev_b32 v56, 16, v6")
    a("v_and_b32 v57, 0xffff0000, v6")
    a("v_lshlrev_b32 v58, 16, v7")
    a("v_and_b32 v59, 0xffff0000, v7")
    a("s_waitcnt lgkmcnt(0)")
    stamp(a, 3)
    for ck in range(NCK):
        b = 16 + (ck % 3) * 4
        for j in range(6):
            a(f"v_writelane_b32 v62, s{48+6*ck+j}, {j}")
        vm.need(f"c{ck}")
        if ck == 0: stamp(a, 4)
        if ck == 1: stamp(a, 6)
        a(f"ds_write2_b32 v9, v{b}, v{b+1} offset0:4 offset1:72")
        a(f"ds_write2_b32 v9, v{b+2}, v{b+3} offset0:136 offset1:200")
        a("s_mov_b64 exec, 0x3f")
        a("ds_write_b32 v10, v62")
        a("s_mov_b64 exec, -1")
        a("s_waitcnt lgkmcnt(0)")
        for i in range(3):
            a(f"ds_read_b128 v[{32+4*i}:{35+4*i}], v12 offset:{16*i}")
        for i in range(2):
            a(f"ds_read_b128 v[{44+4*i}:{47+4*i}], v13 offset:{544+16*i}")
        a("s_waitcnt lgkmcnt(2)")
        for i in range(11):
            a(f"v_perm_b32 v{64+i}, v{33+i}, v{33+i}, v14")
        a("s_waitcnt lgkmcnt(0)")
        for i in range(8):
            a(f"v_perm_b32 v{76+i}, v{44+i}, v{44+i}, v14")
        for i in range(8):
            a(f"v_mul_f32 v{84+i}, v59, v{64+i}")
            a(f"v_fmac_f32 v{84+i}, v58, v{64+i+1}")
            a(f"v_fmac_f32 v{84+i}, v57, v{64+i+2}")
            a(f"v_fmac_f32 v{84+i}, v56, v{64+i+3}")
            a(f"v_mul_f32 v{84+i}, v{84+i}, v{76+i}")
        for q in range(4):
            a(f"v_cvt_pk_bf16_f32 v{92+q}, v{84+7-2*q}, v{84+6-2*q}")
        a(f"ds_write_b128 v60, v[92:95] offset:{(NCK-1-ck)*640}")
        a("s_waitcnt lgkmcnt(0)")
        if ck == 0: stamp(a, 5)
        a("s_barrier")
        if ck + 2 < NCK:
            issue_chunk(ck + 2)
    stamp_flush(a, 7, 77)
    a("s_endpgm")
    a.label("K1_MOD")
    a("s_load_dwordx4 s[4:7], s[0:1], 80")
    a("s_load_dwordx2 s[8:9], s[0:1], 112")
    a("s_load_dwordx4 s[40:43], s[0:1], 56")
    a("s_load_dwordx2 s[44:45], s[0:1], 72")
    a("s_load_dwordx2 s[46:47], s[0:1], 0")
    a("s_load_dwordx4 s[48:51], s[0:1], 8")
    a("s_sub_u32 s3, s2, 144")
    a("v_lshrrev_b32 v1, 6, v0")
    a("s_nop 0")
    a("v_readfirstlane_b32 s17, v1")
    a("s_cmp_ge_u32 s17, 4")
    a("s_cbranch_scc1 K1_PF")
    a("v_and_b32 v1, 3, v0")
    a("v_lshrrev_b32 v2, 2, v0")
    a("v_mul_u32_u24 v3, 18, v2")
    a("s_mov_b32 s16, 62208")
    a("v_mul_lo_u32 v4, v2, s16")
    a("v_lshlrev_b32 v5, 4, v1")
    a("s_lshl_b32 s17, s3, 6")
    a("v_add3_u32 v4, v4, v5, s17")
    a("s_waitcnt lgkmcnt(0)")
    srd(a, 20, 4, D * 2)
    srd(a, 24, 6, D * 6 * D * 2)
    srd(a, 28, 8, 6 * D * 2, WS_MOD)
    for i in range(9):
        a(f"buffer_load_ushort v{10+i}, v3, s[20:23], 0 offen offset:{2*i}")
    for i in range(9):
        a(f"s_mov_b32 s18, {i*6912}")
        a(f"buffer_load_dwordx4 v[{20+4*i}:{23+4*i}], v4, s[24:27], s18 offen")
    for r in range(8):
        a(f"v_mov_b32 v{60+r}, 0")
    a("s_waitcnt vmcnt(9)")
    a("s_mov_b32 s19, 0xbfb8aa3b")
    for i in range(9):
        a(f"v_lshlrev_b32 v{10+i}, 16, v{10+i}")
        a(f"v_mul_f32 v70, s19, v{10+i}")
        a("v_exp_f32 v70, v70")
        a("s_nop 0")
        a("v_add_f32 v70, 1.0, v70")
        a("v_rcp_f32 v70, v70")
        a("s_nop 0")
        a(f"v_mul_f32 v70, v70, v{10+i}")
        a("v_cvt_pk_bf16_f32 v70, v70, v70")
        a(f"v_lshlrev_b32 v{10+i}, 16, v70")
    for i in range(9):
        a(f"s_waitcnt vmcnt({8-i})")
        for q in range(4):
            a(f"v_lshlrev_b32 v70, 16, v{20+4*i+q}")
            a(f"v_and_b32 v71, 0xffff0000, v{20+4*i+q}")
            a(f"v_fmac_f32 v{60+2*q}, v70, v{10+i}")
            a(f"v_fmac_f32 v{61+2*q}, v71, v{10+i}")
    a("v_lshlrev_b32 v5, 5, v0")
    a("ds_write_b128 v5, v[60:63]")
    a("ds_write_b128 v5, v[64:67] offset:16")
    a("s_waitcnt lgkmcnt(0)")
    a("s_barrier")
    a("v_and_b32 v6, 31, v0")
    a("v_lshrrev_b32 v7, 5, v0")
    a("v_lshlrev_b32 v8, 10, v7")
    a("v_lshl_add_u32 v8, v6, 2, v8")
    for i in range(8):
        a(f"ds_read_b32 v{10+i}, v8 offset:{i*128}")
    a("s_waitcnt lgkmcnt(0)")
    for i in range(1, 8):
        a(f"v_add_f32 v10, v10, v{10+i}")
    a("v_lshlrev_b32 v9, 2, v0")
    a("ds_write_b32 v9, v10 offset:8192")
    a("s_waitcnt lgkmcnt(0)")
    a("s_barrier")
    a("v_lshlrev_b32 v8, 2, v6")
    for i in range(8):
        a(f"ds_read_b32 v{10+i}, v8 offset:{8192 + i*128}")
    a("s_waitcnt lgkmcnt(0)")
    for i in range(1, 8):
        a(f"v_add_f32 v10, v10, v{10+i}")
    a("v_cvt_pk_bf16_f32 v10, v10, v10")
    a("v_lshlrev_b32 v9, 1, v6")
    a("v_add_u32 v9, s17, v9")
    a("v_cmp_gt_u32 vcc, 32, v0")
    a("s_and_saveexec_b64 s[32:33], vcc")
    a("s_cbranch_execz K1_END")
    a("buffer_store_short v10, v9, s[28:31], 0 offen")
    a("s_endpgm")
    a.label("K1_PF")
    a("v_subrev_u32 v1, 256, v0")
    a("s_lshl_b32 s16, s3, 8")
    a("v_add_u32 v1, s16, v1")
    a("v_lshlrev_b32 v1, 4, v1")
    a("s_waitcnt lgkmcnt(0)")
    srd(a, 20, 46, NB_ACT)
    srd(a, 24, 40, D * F * 2)
    srd(a, 28, 42, D * F * 2)
    srd(a, 32, 44, D * F * 2)
    srd(a, 52, 48, NB_ACT)
    srd(a, 56, 50, NB_ACT)
    a("v_subrev_u32 v2, 256, v0")
    a("s_lshr_b32 s16, s3, 3")
    a("s_lshl_b32 s16, s16, 8")
    a("v_add_u32 v2, s16, v2")
    a("v_lshrrev_b32 v3, 1, v2")
    a("s_movk_i32 s16, 1152")
    a("v_mul_lo_u32 v3, v3, s16")
    a("v_and_b32 v2, 1, v2")
    a("v_mul_u32_u24 v2, 140, v2")
    a("s_and_b32 s16, s3, 7")
    a("s_mul_i32 s16, s16, 144")
    a("v_add3_u32 v3, v3, v2, s16")
    a(f"s_mov_b32 s18, {1664*1152}")
    a("buffer_load_dword v70, v3, s[52:55], 0 offen")
    a("buffer_load_dword v71, v3, s[56:59], 0 offen")
    a("buffer_load_dword v72, v3, s[52:55], s18 offen")
    a("buffer_load_dword v73, v3, s[56:59], s18 offen")
    PASS = 108 * 256 * 16
    n = 0
    for (sr, nb) in ((20, NB_ACT), (24, D*F*2), (28, D*F*2), (32, D*F*2)):
        for i in range((nb + PASS - 1) // PASS):
            a(f"s_mov_b32 s18, {i*PASS}")
            r = 4 + 4 * (n % 16); n += 1
            a(f"buffer_load_dwordx4 v[{r}:{r+3}], v1, s[{sr}:{sr+3}], s18 offen")
    a("s_waitcnt vmcnt(0)")
    a.label("K1_END")
    a("s_endpgm")

class Track:
    def __init__(self, a, name, maxn):
        self.a = a; self.name = name; self.maxn = maxn
        self.q = []
    def issue(self, tag):
        self.q.append(tag)
    def need(self, tag):
        idx = [i for i, t in enumerate(self.q) if t == tag]
        if not idx: return
        n = len(self.q) - 1 - idx[-1]
        n = min(n, self.maxn)
        self.a(f"s_waitcnt {self.name}({n})")
        self.q = self.q[len(self.q) - n:] if n else []
    def drain(self):
        self.a(f"s_waitcnt {self.name}(0)")
        self.q = []

def bf16_round(a, v, tmp=None):
    a(f"v_cvt_pk_bf16_f32 v{v}, v{v}, v{v}")
    a(f"v_lshlrev_b32 v{v}, 16, v{v}")

K2_LDS = 18432 + 4096
def gen_k2(a):
    kernel_header(a, "k2_kernel")
    a("s_cmp_ge_u32 s2, 128")
    a("s_cbranch_scc1 K2_END")
    a("s_load_dwordx2 s[4:5], s[0:1], 0")
    a("s_load_dwordx2 s[6:7], s[0:1], 112")
    a("v_lshrrev_b32 v1, 6, v0")
    a("v_and_b32 v2, 63, v0")
    a("s_nop 0")
    a("v_readfirstlane_b32 s17, v1")
    a("v_and_b32 v3, 15, v2")
    a("v_lshrrev_b32 v4, 4, v2")
    a("s_waitcnt lgkmcnt(0)")
    srd(a, 20, 4, NB_ACT)
    srd(a, 24, 6, NB_ACT, WS_Y2T)
    srd(a, 28, 6, 6 * D * 2, WS_MOD)
    srd(a, 32, 6, NB_ACT, WS_X1)
    srd(a, 36, 6, NB_ACT, WS_H2F)
    a("v_lshrrev_b32 v5, 1, v2")
    a("v_lshrrev_b32 v6, 4, v5")
    a("v_bfe_u32 v7, v5, 2, 2")
    a("v_and_b32 v8, 3, v5")
    a("v_lshlrev_b32 v7, 3, v7")
    a("v_lshl_add_u32 v7, v6, 2, v7")
    a("v_add_u32 v7, v7, v8")
    a("v_lshlrev_b32 v7, 5, v7")
    a("v_and_b32 v8, 1, v2")
    a("v_lshl_add_u32 v7, v8, 4, v7")
    a("s_mul_i32 s18, s2, 18432")
    a("s_lshl_b32 s19, s17, 11")
    a("s_add_u32 s18, s18, s19")
    a("s_mov_b32 m0, s19")
    a("s_nop 0")
    a("buffer_load_dwordx4 v7, s[24:27], s18 offen lds")
    a("buffer_load_dwordx4 v7, s[24:27], s18 offen offset:1024 lds")
    a("s_lshl_b32 s18, s2, 4")
    a("v_add_u32 v8, s18, v3")
    a("s_movk_i32 s18, 1152")
    a("v_mul_lo_u32 v8, v8, s18")
    a("v_lshlrev_b32 v9, 4, v4")
    a("s_lshl_b32 s18, s17, 7")
    a("v_add_u32 v9, s18, v9")
    a("v_add_u32 v8, v8, v9")
    a("buffer_load_dwordx4 v[12:15], v8, s[20:23], 0 offen")
    a("buffer_load_dwordx4 v[16:19], v8, s[20:23], 0 offen offset:64")
    for p in range(5):
        for kk in range(2):
            r = 20 + 8 * p + 4 * kk
            if p * 1152 + 64 * kk < 4096:
                a(f"buffer_load_dwordx4 v[{r}:{r+3}], v9, s[28:31], 0 offen offset:{p*1152 + 64*kk}")
            else:
                a("s_movk_i32 s18, 4608")
                a(f"buffer_load_dwordx4 v[{r}:{r+3}], v9, s[28:31], s18 offen offset:{64*kk}")
    a("v_lshlrev_b32 v10, 3, v2")
    a("v_add_u32 v10, s19, v10")
    a("v_lshlrev_b32 v11, 3, v3")
    a("v_add_u32 v11, 18432, v11")
    a("s_lshl_b32 s18, s17, 7")
    a("v_add_u32 v60, s18, v11")
    a("s_waitcnt vmcnt(10)")
    a("ds_read_b64_tr_b16 v[96:97], v10")
    a("ds_read_b64_tr_b16 v[98:99], v10 offset:512")
    a("ds_read_b64_tr_b16 v[100:101], v10 offset:1024")
    a("ds_read_b64_tr_b16 v[102:103], v10 offset:1536")
    for i in range(8):
        a(f"v_lshlrev_b32 v{64+2*i}, 16, v{12+i}")
        a(f"v_and_b32 v{65+2*i}, 0xffff0000, v{12+i}")
    def stats(src, rnd):
        a(f"v_add_f32 v62, v{src}, v{src+1}")
        a(f"v_mul_f32 v63, v{src}, v{src}")
        a(f"v_fmac_f32 v63, v{src+1}, v{src+1}")
        for i in range(2, 16):
            a(f"v_add_f32 v62, v62, v{src+i}")
            a(f"v_fmac_f32 v63, v{src+i}, v{src+i}")
        for sw in ("v_permlane16_swap_b32", "v_permlane32_swap_b32"):
            a("v_mov_b32 v104, v62")
            a("v_mov_b32 v105, v63")
            a("s_nop 1")
            a(f"{sw} v62, v104")
            a(f"{sw} v63, v105")
            a("s_nop 1")
            a("v_add_f32 v62, v62, v104")
            a("v_add_f32 v63, v63, v105")
        a(f"ds_write_b64 v60, v[62:63] offset:{rnd*2048}")
        a("s_waitcnt lgkmcnt(0)")
        a("s_barrier")
        for w in range(9):
            a(f"ds_read_b64 v[{106+2*w}:{107+2*w}], v11 offset:{rnd*2048 + w*128}")
        a("s_waitcnt lgkmcnt(0)")
        for w in range(1, 9):
            a(f"v_add_f32 v106, v106, v{106+2*w}")
            a(f"v_add_f32 v107, v107, v{107+2*w}")
        a("s_mov_b32 s18, 0x3ae38e39")
        a("v_mul_f32 v62, s18, v106")
        a("v_mul_f32 v63, s18, v107")
        a("v_fma_f32 v63, -v62, v62, v63")
        a("v_max_f32 v63, 0, v63")
        bf16_round(a, 62)
        bf16_round(a, 63)
        a("v_add_f32 v63, 0x3727c5ac, v63")
        bf16_round(a, 63)
        a("v_sqrt_f32 v63, v63")
        a("s_nop 0")
        bf16_round(a, 63)
        a("v_rcp_f32 v63, v63")
        a("s_nop 0")
    stats(64, 0)
    a("s_waitcnt vmcnt(0)")
    def punpack(dst, p, e):
        r = 20 + 8 * p + 4 * (e >> 3) + ((e & 7) >> 1)
        if e & 1: a(f"v_and_b32 v{dst}, 0xffff0000, v{r}")
        else: a(f"v_lshlrev_b32 v{dst}, 16, v{r}")
    for e in range(16):
        x = 64 + e
        yr = 96 + (e >> 1)
        punpack(104, 1, e)
        punpack(105, 0, e)
        punpack(106, 2, e)
        if e & 1: a(f"v_and_b32 v107, 0xffff0000, v{yr}")
        else: a(f"v_lshlrev_b32 v107, 16, v{yr}")
        a("v_add_f32 v104, 1.0, v104")
        a(f"v_sub_f32 v108, v{x}, v62")
        a("v_mul_f32 v108, v108, v63")
        a("v_fma_f32 v108, v108, v104, v105")
        a("v_mul_f32 v108, v108, v107")
        a(f"v_fma_f32 v{80+e}, v108, v106, v{x}")
    for i in range(8):
        a(f"v_cvt_pk_bf16_f32 v{12+i}, v{80+2*i}, v{81+2*i}")
    for i in range(8):
        a(f"v_lshlrev_b32 v{80+2*i}, 16, v{12+i}")
        a(f"v_and_b32 v{81+2*i}, 0xffff0000, v{12+i}")
    a("buffer_store_dwordx4 v[12:15], v8, s[32:35], 0 offen")
    a("buffer_store_dwordx4 v[16:19], v8, s[32:35], 0 offen offset:64")
    stats(80, 1)
    for e in range(16):
        punpack(104, 4, e)
        punpack(105, 3, e)
        a("v_add_f32 v104, 1.0, v104")
        a(f"v_sub_f32 v108, v{80+e}, v62")
        a("v_mul_f32 v108, v108, v63")
        a(f"v_fma_f32 v{64+e}, v108, v104, v105")
    for i in range(8):
        a(f"v_cvt_pk_bf16_f32 v{96+i}, v{64+2*i}, v{65+2*i}")
    a("s_mul_i32 s18, s2, 18432")
    a("s_add_u32 s18, s18, s19")
    a("v_lshlrev_b32 v9, 4, v2")
    a("buffer_store_dwordx4 v[96:99], v9, s[36:39], s18 offen")
    a("buffer_store_dwordx4 v[100:103], v9, s[36:39], s18 offen offset:1024")
    a.label("K2_END")
    a("s_endpgm")

ST_BYTES = 34816
G_LDS = 4 * ST_BYTES
NST = 18
def gen_gemm(a, mode):
    nm = "k3" if mode == 1 else "k4"
    kernel_header(a, nm + "_kernel")
    a("s_cmp_ge_u32 s2, 256")
    a(f"s_cbranch_scc1 {nm.upper()}_END")
    stamp(a, 0)
    if mode == 1:
        a("s_load_dwordx4 s[4:7], s[0:1], 56")
    else:
        a("s_load_dwordx2 s[4:5], s[0:1], 72")
    a("s_load_dwordx2 s[8:9], s[0:1], 112")
    a("v_lshrrev_b32 v1, 6, v0")
    a("v_and_b32 v2, 63, v0")
    a("s_nop 0")
    a("v_readfirstlane_b32 s17, v1")
    a("s_and_b32 s10, s2, 7")
    a("s_lshr_b32 s11, s2, 3")
    a("s_and_b32 s12, s10, 1")
    a("s_lshr_b32 s13, s10, 1")
    if mode == 1:
        a("s_lshl_b32 s12, s12, 2")
        a("s_and_b32 s14, s11, 3")
        a("s_add_u32 s12, s12, s14")
        a("s_lshl_b32 s13, s13, 3")
        a("s_lshr_b32 s14, s11, 2")
        a("s_add_u32 s13, s13, s14")
    else:
        a("s_lshl_b32 s12, s12, 3")
        a("s_and_b32 s14, s11, 7")
        a("s_add_u32 s12, s12, s14")
        a("s_lshr_b32 s14, s11, 3")
    a("s_and_b32 s15, s17, 3")
    a("s_waitcnt lgkmcnt(0)")
    if mode == 1:
        srd(a, 20, 4, D * F * 2)
        srd(a, 24, 6, D * F * 2)
        srd(a, 28, 8, NB_ACT, WS_H2F)
        srd(a, 32, 8, S * F * 2, WS_HID)
        a("s_cmp_lt_u32 s15, 2")
        a("s_cselect_b32 s36, s4, s6")
        a("s_cselect_b32 s37, s5, s7")
        a(f"s_mov_b32 s38, {D*F*2}")
        a("s_mov_b32 s39, 0x00020000")
        pitch = 9216
    else:
        srd(a, 20, 4, D * F * 2)
        srd(a, 28, 8, S * F * 2, WS_HID)
        srd(a, 32, 8, 4 * S * D * 4, WS_PART)
        pitch = 1152
    a("v_lshlrev_b32 v3, 4, v2")
    if mode == 1:
        a("s_lshl_b32 s18, s15, 12")
    else:
        a("s_and_b32 s18, s15, 1")
        a("s_lshl_b32 s18, s18, 13")
        a("s_lshr_b32 s19, s15, 1")
        a("s_lshl_b32 s19, s19, 12")
        a("s_add_u32 s18, s18, s19")
    a("v_add_u32 v4, s18, v3")
    a("v_lshrrev_b32 v5, 2, v2")
    a("v_mul_u32_u24 v5, 288, v5")
    a("v_and_b32 v6, 3, v2")
    a("v_lshl_add_u32 v5, v6, 3, v5")
    a("v_add_u32 v5, 16384, v5")
    if mode == 1:
        a("s_and_b32 s16, s13, 1")
        a("s_lshl_b32 s18, s16, 5")
        a("v_add_u32 v6, s18, v5")
        a("s_cmp_eq_u32 s16, 0")
        a("s_cselect_b32 s18, 256, 0")
        a("v_add_u32 v7, s18, v5")
    else:
        a("s_and_b32 s18, s15, 1")
        a("s_mul_i32 s18, s18, 9216")
        a("v_add_u32 v6, s18, v5")
    a("s_cmp_ge_u32 s17, 4")
    a(f"s_cbranch_scc1 {nm.upper()}_TG1")
    for tg in range(2):
        if tg == 1:
            a.label(f"{nm.upper()}_TG1")
        gemm_body(a, mode, tg, pitch)
    a.label(f"{nm.upper()}_END")
    a("s_endpgm")

def gemm_body(a, mode, tg, pitch):
    nt = 5 if tg == 0 else 4
    vm = Track(a, "vmcnt", 63)
    lg = Track(a, "lgkmcnt", 15)
    if tg == 0:
        a("v_mov_b32 v8, v3")
        for i in range(4):
            if mode == 1:
                a("s_lshl_b32 s18, s12, 4")
                a("s_lshl_b32 s19, s15, 2")
                a("s_add_u32 s18, s18, s19")
                a(f"s_add_u32 s18, s18, {i}")
                a(f"s_mul_i32 s{40+i}, s18, 18432")
            else:
                a("s_and_b32 s18, s15, 1")
                a("s_lshl_b32 s18, s18, 2")
                a("s_lshl_b32 s19, s12, 3")
                a("s_add_u32 s18, s18, s19")
                a(f"s_add_u32 s18, s18, {i}")
                a("s_mul_i32 s18, s18, 144")
                a("s_mul_i32 s19, s13, 36")
                a("s_add_u32 s18, s18, s19")
                a("s_lshr_b32 s19, s15, 1")
                a("s_add_u32 s18, s18, s19")
                a(f"s_lshl_b32 s{40+i}, s18, 10")
        a("s_lshl_b32 s44, s15, 12")
        astep = 1024 if mode == 1 else 2048
        def dma(st):
            base = (st & 3) * ST_BYTES
            for i in range(4):
                a(f"s_add_u32 m0, s44, {base + i*1024}")
                a("s_nop 0")
                a(f"buffer_load_dwordx4 v8, s[28:31], s{40+i} offen lds")
                vm.issue(("d", st))
            a(f"v_add_u32 v8, {astep}, v8")
    else:
        def qaddr(dst):
            a(f"v_mul_u32_u24 v12, 3641, v{dst}")
            a("v_lshrrev_b32 v12, 16, v12")
            a("v_mul_u32_u24 v13, 18, v12")
            a(f"v_sub_u32 v13, v{dst}, v13")
            if mode == 1:
                a("v_lshrrev_b32 v14, 4, v12")
                a("v_bfe_u32 v15, v12, 2, 2")
                a("v_and_b32 v12, 3, v12")
                a("v_lshl_add_u32 v12, v15, 3, v12")
                a("v_lshl_add_u32 v12, v14, 2, v12")
            a(f"v_mul_u32_u24 v12, {pitch}, v12")
            a(f"v_lshl_add_u32 v{dst}, v13, 4, v12")
        a("s_lshl_b32 s18, s15, 7")
        a("v_add_u32 v8, s18, v2")
        a("v_add_u32 v9, 64, v8")
        a("s_and_b32 s18, s15, 1")
        a("s_lshl_b32 s18, s18, 5")
        a("s_add_u32 s18, s18, 512")
        a("v_add_u32 v10, s18, v2")
        qaddr(8); qaddr(9); qaddr(10)
        if mode == 1:
            a("s_mul_i32 s40, s13, 288")
        else:
            a(f"s_mul_i32 s40, s13, {1152*1152}")
            a("s_mul_i32 s18, s14, 288")
            a("s_add_u32 s40, s40, s18")
        a("s_lshl_b32 s44, s15, 11")
        a("s_lshr_b32 s45, s15, 1")
        a("s_mul_i32 s45, s45, 9216")
        a("s_and_b32 s18, s15, 1")
        a("s_lshl_b32 s18, s18, 9")
        a("s_add_u32 s45, s45, s18")
        if mode == 2:
            a("s_lshr_b32 s46, s15, 1")
            a(f"s_mul_i32 s46, s46, {32*pitch}")
        wstep = 32 * pitch if mode == 1 else 64 * pitch
        def dma(st):
            base = (st & 3) * ST_BYTES + 16384
            if mode == 2:
                a(f"s_add_u32 s41, s40, {32*pitch}")
                a("s_add_u32 s42, s40, s46")
            for blk in range(2):
                for j in range(2):
                    a(f"s_add_u32 m0, s44, {base + blk*9216 + j*1024}")
                    a("s_nop 0")
                    if mode == 1:
                        a(f"buffer_load_dwordx4 v{8+j}, s[{20+4*blk}:{23+4*blk}], s40 offen lds")
                    else:
                        a(f"buffer_load_dwordx4 v{8+j}, s[20:23], s{40+blk} offen lds")
                    vm.issue(("d", st))
            a(f"s_add_u32 m0, s45, {base + 8192}")
            a("s_mov_b64 exec, 0xffffffff")
            if mode == 1:
                a("buffer_load_dwordx4 v10, s[36:39], s40 offen lds")
            else:
                a("buffer_load_dwordx4 v10, s[20:23], s42 offen lds")
            vm.issue(("d", st))
            a("s_mov_b64 exec, -1")
            a(f"s_add_u32 s40, s40, {wstep}")
    AF = 16
    WR = 48
    ACC = 64
    nblk = 2 if mode == 1 else 1
    units = [(t, b) for t in range(nt) for b in range(nblk)]
    U = len(units)
    def acc(t, b, i): return ACC + ((t * nblk + b) * 4 + i) * 4
    nacc = U * 16
    for r in range(nacc):
        a(f"v_mov_b32 v{ACC+r}, 0")
    def w_addr(t, b):
        if mode == 1:
            if tg == 0:
                if t == 0: return 7, b * 9216
                return 6, b * 9216 + (t - 1) * 32
            return 6, b * 9216 + (4 + t) * 32
        else:
            return 6, (t if tg == 0 else 5 + t) * 32
    def read_w(gu):
        st, u = divmod(gu, U)
        if st >= NST: return
        t, b = units[u]
        vr, off = w_addr(t, b)
        off += (st & 3) * ST_BYTES
        r = WR + (gu & 3) * 4
        if off + 4608 >= 65536:
            vr2 = {6: 12, 7: 13}[vr]; off -= 65536 - 0
            vr = vr2
        a(f"ds_read_b64_tr_b16 v[{r}:{r+1}], v{vr} offset:{off}")
        lg.issue(("w", gu))
        a(f"ds_read_b64_tr_b16 v[{r+2}:{r+3}], v{vr} offset:{off+4608}")
        lg.issue(("w", gu))
    def read_a(st, i):
        if st >= NST: return
        off = (st & 3) * ST_BYTES + i * 1024
        vr = 4
        if off >= 65536 - 16384:
            vr = 14; off -= 65536
        r = AF + (st & 1) * 16 + i * 4
        a(f"ds_read_b128 v[{r}:{r+3}], v{vr} offset:{off}")
        lg.issue(("a", st, i))
    a("v_add_u32 v12, 0x10000, v6")
    if mode == 1 and tg == 0:
        a("v_add_u32 v13, 0x10000, v7")
    a("v_add_u32 v14, 0x10000, v4")
    dma(0); dma(1); dma(2)
    PD = 3
    first = True
    for st in range(NST):
        vm.need(("d", min(st + 1, NST - 1)))
        a("s_barrier")
        if st in (0, 3, 9, 15):
            stamp(a, {0:1, 3:2, 9:3, 15:4}[st])
        if st + 3 < NST:
            dma(st + 3)
        if st == 0:
            for i in range(4): read_a(0, i)
            for gu in range(PD): read_w(gu)
        for u in range(U):
            gu = st * U + u
            read_w(gu + PD)
            if u >= U - 4:
                read_a(st + 1, u - (U - 4))
            lg.need(("w", gu))
            if u == 0:
                lg.need(("a", st, 3))
            t, b = units[u]
            r = WR + (gu & 3) * 4
            for i in range(4):
                ar = AF + (st & 1) * 16 + i * 4
                ac = acc(t, b, i)
                a(f"v_mfma_f32_16x16x32_bf16 v[{ac}:{ac+3}], v[{r}:{r+3}], v[{ar}:{ar+3}], v[{ac}:{ac+3}]")
    a("s_nop 7")
    stamp(a, 5)
    if mode == 1:
        a("s_mul_i32 s18, s13, 9")
        a("s_add_u32 s18, s18, s16")
        a("s_lshr_b32 s18, s18, 1")
        a("s_lshl_b32 s19, s12, 4")
        a("s_lshl_b32 s40, s15, 2")
        a("s_add_u32 s19, s19, s40")
        a("s_mul_i32 s19, s19, 144")
        a("s_add_u32 s40, s19, s18")
        a("s_lshl_b32 s40, s40, 10")
        if tg == 0:
            a("s_mul_i32 s41, s13, 9")
            a("s_cmp_eq_u32 s16, 0")
            a("s_cselect_b32 s42, 8, 0")
            a("s_add_u32 s41, s41, s42")
            a("s_lshr_b32 s41, s41, 1")
            a("s_add_u32 s41, s41, s19")
            a("s_lshl_b32 s41, s41, 10")
            a("s_lshl_b32 s42, s16, 3")
            a("s_add_u32 s41, s41, s42")
        def hid(t, i, dst):
            g = acc(t, 0, i); u_ = acc(t, 1, i)
            for q in range(4):
                a(f"v_max_f32 v{g+q}, 0, v{g+q}")
            for q in range(4):
                a(f"v_mul_f32 v{g+q}, v{g+q}, v{u_+q}")
            a(f"v_cvt_pk_bf16_f32 v{dst}, v{g}, v{g+1}")
            a(f"v_cvt_pk_bf16_f32 v{dst+1}, v{g+2}, v{g+3}")
        slot = 0
        for i in range(4):
            pairs = [(1, 2), (3, 4)] if tg == 0 else [(0, 1), (2, 3)]
            for pp, (t0, t1) in enumerate(pairs):
                dst = 16 + (slot % 8) * 4; slot += 1
                hid(t0, i, dst); hid(t1, i, dst + 2)
                po = (pp + (0 if tg == 0 else 2)) * 1024
                a(f"s_add_u32 s42, s40, {i*144*1024 + po}")
                a(f"buffer_store_dwordx4 v[{dst}:{dst+3}], v3, s[32:35], s42 offen")
            if tg == 0:
                dst = 16 + (slot % 8) * 4; slot += 1
                hid(0, i, dst)
                a(f"s_add_u32 s42, s41, {i*144*1024}")
                a(f"buffer_store_dwordx2 v[{dst}:{dst+1}], v3, s[32:35], s42 offen")
    else:
        a("s_barrier")
        a("s_lshr_b32 s18, s15, 1")
        a(f"s_add_u32 s18, s18, {tg*2}")
        a("s_lshl_b32 s18, s18, 1")
        a("s_and_b32 s16, s15, 1")
        a("s_add_u32 s19, s18, s16")
        a("s_mul_i32 s19, s19, 10240")
        a("s_xor_b32 s40, s16, 1")
        a("s_add_u32 s18, s18, s40")
        a("s_mul_i32 s18, s18, 10240")
        a("v_add_u32 v8, s19, v3")
        a("v_add_u32 v9, s18, v3")
        a("s_cmp_eq_u32 s16, 0")
        lbl = f"K4_EP{tg}"
        a(f"s_cbranch_scc0 {lbl}_B")
        for kg in range(2):
            if kg == 1: a.label(f"{lbl}_B")
            keep = [2 * kg, 2 * kg + 1]; send = [2 - 2 * kg, 3 - 2 * kg]
            for t in range(nt):
                for ii, i in enumerate(send):
                    ac = acc(t, 0, i)
                    a(f"ds_write_b128 v8, v[{ac}:{ac+3}] offset:{(t*2+ii)*1024}")
            a("s_waitcnt lgkmcnt(0)")
            a("s_barrier")
            a("s_lshl_b32 s40, s13, 7")
            a("s_lshl_b32 s41, s12, 3")
            a("s_add_u32 s40, s40, s41")
            a("s_lshr_b32 s41, s15, 1")
            a("s_lshl_b32 s41, s41, 2")
            a("s_add_u32 s40, s40, s41")
            a("s_mul_i32 s40, s40, 36")
            a("s_mul_i32 s41, s14, 9")
            a("s_add_u32 s40, s40, s41")
            a("s_lshl_b32 s40, s40, 10")
            for t in range(nt):
                for ii, i in enumerate(keep):
                    r = 16 + ((t * 2 + ii) % 10) * 4
                    a(f"ds_read_b128 v[{r}:{r+3}], v9 offset:{(t*2+ii)*1024}")
            for t in range(nt):
                for ii, i in enumerate(keep):
                    r = 16 + ((t * 2 + ii) % 10) * 4
                    ac = acc(t, 0, i)
                    a(f"s_waitcnt lgkmcnt({min(15, 2*nt - 1 - (t*2+ii))})")
                    for q in range(4):
                        a(f"v_add_f32 v{ac+q}, v{ac+q}, v{r+q}")
                    a(f"s_add_u32 s42, s40, {(i*36 + t + (0 if tg == 0 else 5))*1024}")
                    a(f"buffer_store_dwordx4 v[{ac}:{ac+3}], v3, s[32:35], s42 offen")
            if STAMP: a("s_waitcnt vmcnt(0)")
            stamp(a, 6)
            stamp_flush(a, 7, 77)
            a("s_endpgm")
    if mode == 1:
        if STAMP: a("s_waitcnt vmcnt(0)")
        stamp(a, 6)
        stamp_flush(a, 7, 77)
        a("s_endpgm")

def gen_k5(a):
    kernel_header(a, "k5_kernel")
    a("s_cmp_ge_u32 s2, 576")
    a("s_cbranch_scc1 K5_END")
    a("s_load_dwordx2 s[4:5], s[0:1], 96")
    a("s_load_dwordx2 s[6:7], s[0:1], 112")
    a("v_lshrrev_b32 v1, 6, v0")
    a("v_and_b32 v2, 63, v0")
    a("s_nop 0")
    a("v_readfirstlane_b32 s17, v1")
    a("s_waitcnt lgkmcnt(0)")
    srd(a, 20, 6, 4 * S * D * 4, WS_PART)
    srd(a, 24, 6, NB_ACT, WS_X1)
    srd(a, 28, 6, 6 * D * 2, WS_MOD)
    srd(a, 32, 4, NB_ACT)
    a("s_lshl_b32 s18, s2, 2")
    a("s_add_u32 s18, s18, s17")
    a("s_mul_i32 s19, s18, 3641")
    a("s_lshr_b32 s19, s19, 16")
    a("s_mul_i32 s16, s19, 18")
    a("s_sub_u32 s16, s18, s16")
    a("s_lshl_b32 s18, s18, 11")
    a("v_lshlrev_b32 v3, 4, v2")
    for sp in range(4):
        a(f"s_add_u32 s15, s18, {sp*S*D*4}")
        for t in range(2):
            r = 16 + (sp * 2 + t) * 4
            a(f"buffer_load_dwordx4 v[{r}:{r+3}], v3, s[20:23], s15 offen offset:{t*1024}")
    a("v_and_b32 v4, 15, v2")
    a("v_lshrrev_b32 v5, 4, v2")
    a("s_lshl_b32 s15, s19, 4")
    a("v_add_u32 v4, s15, v4")
    a("s_movk_i32 s15, 1152")
    a("v_mul_lo_u32 v4, v4, s15")
    a("v_lshlrev_b32 v5, 3, v5")
    a("s_lshl_b32 s15, s16, 6")
    a("v_add_u32 v5, s15, v5")
    a("v_add_u32 v4, v4, v5")
    a("buffer_load_dwordx2 v[48:49], v4, s[24:27], 0 offen")
    a("buffer_load_dwordx2 v[50:51], v4, s[24:27], 0 offen offset:32")
    a("s_movk_i32 s15, 5760")
    a("buffer_load_dwordx2 v[52:53], v5, s[28:31], s15 offen")
    a("buffer_load_dwordx2 v[54:55], v5, s[28:31], s15 offen offset:32")
    a("s_waitcnt vmcnt(4)")
    for t in range(2):
        for q in range(4):
            r = 16 + t * 4 + q
            a(f"v_add_f32 v{r}, v{r}, v{r+8}")
            a(f"v_add_f32 v{r+16}, v{r+16}, v{r+24}")
            a(f"v_add_f32 v{r}, v{r}, v{r+16}")
    a("s_waitcnt vmcnt(0)")
    for t in range(2):
        b = 16 + t * 4
        a(f"v_cvt_pk_bf16_f32 v56, v{b}, v{b+1}")
        a(f"v_cvt_pk_bf16_f32 v57, v{b+2}, v{b+3}")
        for q in range(4):
            src = 56 + (q >> 1); gbr = 52 + 2 * t + (q >> 1); xr = 48 + 2 * t + (q >> 1)
            if q & 1:
                a(f"v_and_b32 v58, 0xffff0000, v{src}")
                a(f"v_and_b32 v59, 0xffff0000, v{gbr}")
                a(f"v_and_b32 v60, 0xffff0000, v{xr}")
            else:
                a(f"v_lshlrev_b32 v58, 16, v{src}")
                a(f"v_lshlrev_b32 v59, 16, v{gbr}")
                a(f"v_lshlrev_b32 v60, 16, v{xr}")
            a("v_mul_f32 v58, v58, v59")
            a("v_cvt_pk_bf16_f32 v58, v58, v58")
            a("v_lshlrev_b32 v58, 16, v58")
            a(f"v_add_f32 v{b+q}, v58, v60")
        a(f"v_cvt_pk_bf16_f32 v{62+2*t}, v{b}, v{b+1}")
        a(f"v_cvt_pk_bf16_f32 v{63+2*t}, v{b+2}, v{b+3}")
        a(f"buffer_store_dwordx2 v[{62+2*t}:{63+2*t}], v4, s[32:35], 0 offen offset:{32*t}")
    a.label("K5_END")
    a("s_endpgm")

def main(out):
    a = Asm()
    hdr = open("adaLN_cond__ssm_conv_h3__glu_gated_reglu__prompt.s.ref").read().split("; Override launch geometry")[0]
    launches = [
        ("k1_kernel", 252, 512, K1_LDS),
        ("k2_kernel", 128, 576, K2_LDS),
        ("k3_kernel", 256, 512, G_LDS),
        ("k4_kernel", 256, 512, G_LDS),
        ("k5_kernel", 576, 256, 0),
    ]
    txt = hdr
    for (n, g, b, l) in launches:
        txt += f"; @launch kernel={n} grid=({g},1,1) block=({b},1,1) lds={l}\n"
    txt += '.amdgcn_target "amdgcn-amd-amdhsa--gfx950"\n.text\n'
    global SV
    SV = 120
    gen_k1(a)
    SV = 128
    gen_k2(a)
    SV = 240
    gen_gemm(a, 1)
    gen_gemm(a, 2)
    gen_k5(a)
    txt += a.text()
    txt += '.section .rodata,"a"\n'
    txt += kernel_desc("k1_kernel", 128)
    txt += kernel_desc("k2_kernel", 136 if STAMP else 128)
    txt += kernel_desc("k3_kernel", 248 if STAMP else 224)
    txt += kernel_desc("k4_kernel", 248 if STAMP else 144)
    txt += kernel_desc("k5_kernel", 72)
    open(out, "w").write(txt)

if __name__ == "__main__":
    if len(sys.argv) > 2 and sys.argv[2] == "stamp":
        STAMP = True
    main(sys.argv[1] if len(sys.argv) > 1 else "k.s")
```

```python
import sys

S = 2048; D = 576; F = 4608
WS_MOD  = 0x0
WS_Y2T  = 0x10000
WS_H2F  = 0x300000
WS_X1   = 0x600000
WS_HID  = 0x1000000
WS_PART = 0x3000000
NB_ACT = S * D * 2
WS_END = WS_PART + 4 * S * D * 4
PF_CODE = True
PF_TLB = True

class Asm:
    def __init__(self):
        self.lines = []
    def __call__(self, s):
        for l in s.split("\n"):
            l = l.strip()
            if l:
                self.lines.append("    " + l if not l.endswith(":") else l)
    def label(self, l):
        self.lines.append(l + ":")
    def text(self):
        return "\n".join(self.lines) + "\n"

def srd(a, d, base, nbytes, off=0):
    if off:
        a(f"s_add_u32 s{d}, s{base}, {off}")
        a(f"s_addc_u32 s{d+1}, s{base+1}, 0")
    else:
        a(f"s_mov_b32 s{d}, s{base}")
        a(f"s_mov_b32 s{d+1}, s{base+1}")
    a(f"s_mov_b32 s{d+2}, {nbytes}")
    a(f"s_mov_b32 s{d+3}, 0x00020000")

STAMP = False
SV = 120
def stamp(a, idx):
    if not STAMP: return
    if idx == 0:
        a("s_memrealtime s[100:101]")
        a("s_waitcnt lgkmcnt(0)")
        a(f"v_mov_b32 v{SV+7}, s100")
    a("s_memtime s[100:101]")
    a("s_waitcnt lgkmcnt(0)")
    a(f"v_mov_b32 v{SV+idx}, s100")
def stamp_flush(a, n, wg):
    if not STAMP: return
    lbl = f"STAMP_SKIP_{len(a.lines)}"
    a(f"s_cmp_lg_u32 s2, {wg}")
    a(f"s_cbranch_scc1 {lbl}")
    a("s_memrealtime s[100:101]")
    a("s_load_dwordx2 s[72:73], s[0:1], 104")
    a("s_waitcnt lgkmcnt(0)")
    a("s_mov_b32 s74, 256")
    a("s_mov_b32 s75, 0x00020000")
    a("v_lshrrev_b32 v1, 6, v0")
    a("v_lshlrev_b32 v1, 5, v1")
    for i in range(n):
        a(f"v_sub_u32 v2, v{SV+i}, v{SV}")
        a(f"buffer_store_dword v2, v1, s[72:75], 0 offen offset:{4*i}")
    a(f"v_sub_u32 v2, s100, v{SV+7}")
    a(f"buffer_store_dword v2, v1, s[72:75], 0 offen offset:28")
    a("s_waitcnt vmcnt(0)")
    a.label(lbl)

def kernel_header(a, name):
    a.lines.append(f".globl {name}")
    a.lines.append(".p2align 8")
    a.lines.append(f".type {name},@function")
    a.label(name)

def kernel_desc(name, vgpr, sgpr=102, accum=None):
    if accum is None:
        accum = (vgpr + 3) // 4 * 4
    return f""".p2align 6
.amdhsa_kernel {name}
  .amdhsa_next_free_vgpr {vgpr}
  .amdhsa_next_free_sgpr {sgpr}
  .amdhsa_accum_offset {accum}
  .amdhsa_group_segment_fixed_size 0
  .amdhsa_kernarg_size 120
  .amdhsa_user_sgpr_count 2
  .amdhsa_user_sgpr_kernarg_segment_ptr 1
  .amdhsa_system_sgpr_workgroup_id_x 1
.end_amdhsa_kernel
"""

K1_CH = 24832
K1_CP = 4160
K1_U = 16640
K1_LDS = 4 * K1_CH + 4 * 1088

def gen_k1(a):
    kernel_header(a, "k1_kernel")
    a("s_cmp_ge_u32 s2, 252")
    a("s_cbranch_scc1 K1_END")
    a("s_cmp_ge_u32 s2, 144")
    a("s_cbranch_scc1 K1_MOD")
    stamp(a, 0)
    a("s_load_dwordx4 s[4:7], s[0:1], 8")
    a("s_load_dwordx4 s[8:11], s[0:1], 24")
    a("s_load_dwordx2 s[12:13], s[0:1], 40")
    a("s_load_dwordx2 s[14:15], s[0:1], 112")
    a("s_and_b32 s3, s2, 7")
    a("s_mul_i32 s3, s3, 18")
    a("s_lshr_b32 s16, s2, 3")
    a("s_add_u32 s3, s3, s16")
    a("v_lshrrev_b32 v1, 6, v0")
    a("v_and_b32 v2, 63, v0")
    a("s_nop 0")
    a("v_readfirstlane_b32 s17, v1")
    a("s_waitcnt lgkmcnt(0)")
    stamp(a, 1)
    srd(a, 20, 4, NB_ACT)
    srd(a, 24, 6, NB_ACT)
    srd(a, 28, 10, NB_ACT)
    srd(a, 32, 14, NB_ACT, WS_Y2T)
    a("s_cmp_ge_u32 s17, 4")
    a("s_cbranch_scc1 K1_LOADER")
    a("s_lshl_b32 s16, s3, 3")
    a("s_add_u32 s12, s12, s16")
    a("s_addc_u32 s13, s13, 0")
    a("s_load_dwordx2 s[44:45], s[12:13], 0")
    a("s_lshl_b32 s46, s3, 2")
    a("s_add_u32 s46, s46, s17")
    a("s_lshl_b32 s46, s46, 12")
    a(f"s_mul_i32 s47, s17, {K1_CH}")
    a("v_lshlrev_b32 v11, 4, v2")
    a("v_add_u32 v5, s46, v11")
    a("s_add_u32 m0, s47, 64")
    a("s_nop 0")
    for i in range(4):
        a(f"buffer_load_dwordx4 v5, s[28:31], 0 offen offset:{i*1024} lds")
    stamp(a, 2)
    for r in range(4):
        a(f"v_mov_b32 v{56+r}, 0")
    a("v_add_u32 v11, s47, v11")
    for i in range(3):
        a(f"ds_write_b128 v11, v[56:59] offset:{K1_U + 5120 + i*1024}")
    a("v_lshrrev_b32 v54, 2, v2")
    a(f"v_mul_u32_u24 v54, {K1_CP}, v54")
    a("v_and_b32 v55, 3, v2")
    a("v_lshlrev_b32 v55, 4, v55")
    a("v_add3_u32 v54, v54, v55, s47")
    a("s_mov_b64 exec, 0xffff")
    a("ds_write_b128 v54, v[56:59]")
    a("s_mov_b64 exec, -1")
    a("v_and_b32 v3, 15, v2")
    a("v_lshrrev_b32 v4, 4, v2")
    a("v_add_u32 v5, 1, v3")
    a("v_and_b32 v5, 3, v5")
    a("v_lshlrev_b32 v6, 3, v4")
    a("v_sub_u32 v6, v3, v6")
    a("v_sub_u32 v6, v6, v5")
    a("v_add_u32 v6, 25, v6")
    a("v_lshlrev_b32 v6, 1, v6")
    a(f"v_mul_u32_u24 v7, {K1_CP}, v5")
    a("v_add3_u32 v6, v6, v7, s47")
    a("v_sub_u32 v7, 15, v3")
    a("v_mul_u32_u24 v7, 160, v7")
    a("v_lshlrev_b32 v8, 4, v4")
    a("v_sub_u32 v7, v7, v8")
    a(f"v_add_u32 v7, {K1_U + 48}, v7")
    a("v_add_u32 v7, s47, v7")
    a("v_sub_u32 v8, 15, v3")
    a("v_mul_u32_u24 v8, 160, v8")
    a("v_lshlrev_b32 v9, 3, v4")
    a("v_sub_u32 v8, v8, v9")
    a(f"v_add_u32 v8, {K1_U + 24}, v8")
    a("v_add_u32 v8, s47, v8")
    a("s_mov_b32 s66, 73728")
    a("v_mul_lo_u32 v9, v3, s66")
    a("v_lshlrev_b32 v10, 3, v4")
    a("s_lshr_b32 s66, s46, 7")
    a("v_add3_u32 v9, v9, v10, s66")
    ACC = 16
    for r in range(32):
        a(f"v_mov_b32 v{ACC+r}, 0")
    a("s_waitcnt lgkmcnt(0)")
    a("s_cmp_lt_u32 s17, 2")
    a("s_cselect_b32 s64, s44, s45")
    a("s_and_b32 s65, s17, 1")
    a("s_cmp_eq_u32 s65, 0")
    a("s_cselect_b32 s65, 16, 0")
    a("s_lshl_b32 s64, s64, s65")
    a("s_and_b32 s64, s64, 0xffff0000")
    a("s_waitcnt vmcnt(0)")
    bases = [-1, 63, 127, 191, 192]
    for i, ub in enumerate(bases):
        r = 48 + 8 * i
        a(f"ds_read_b128 v[{r}:{r+3}], v11 offset:{64 + ub*16}")
        a(f"ds_read_b64 v[{r+4}:{r+5}], v11 offset:{64 + ub*16 + 16}")
    for i, ub in enumerate(bases):
        r = 48 + 8 * i
        a(f"s_waitcnt lgkmcnt({min(15, 2*(4-i) + 3*i)})")
        t = 96 + 12 * (i & 1)
        for q in range(4):
            a(f"v_alignbit_b32 v{t+q}, v{r+q+1}, v{r+q}, 16")
            a(f"v_mov_b32 v{t+4+q}, v{r+q+1}")
            a(f"v_alignbit_b32 v{t+8+q}, v{r+q+2}, v{r+q+1}, 16")
        for j in range(1, 4):
            a(f"ds_write_b128 v11, v[{t+4*(j-1)}:{t+4*(j-1)+3}] offset:{j*K1_CP + 64 + ub*16}")
    a("s_waitcnt lgkmcnt(0)")
    stamp(a, 3)
    AR = 48
    BR = 96
    lg = Track(a, "lgkmcnt", 15)
    phases = []
    for q in range(8):
        st = []
        if q < 4:
            st += [(0, d) for d in range(12 - 4*q, 16 - 4*q)]
        st += [(1, d) for d in range(28 - 4*q, 32 - 4*q)]
        phases.append(st)
    slot_of = {}
    state = {"next": 0, "cnt": 0}
    def a_loads(p, key):
        sl = state["next"] % 12; state["next"] += 1
        slot_of[(key, p)] = sl
        r = AR + sl * 4
        return [(f"ds_read_b64 v[{r}:{r+1}], v6 offset:{32*p}", ("A", key, p)),
                (f"ds_read_b64 v[{r+2}:{r+3}], v6 offset:{32*p+8}", ("A", key, p))]
    def step_loads(steps, i, key, a_only=False, b_only=False):
        nt, dl = steps[i]
        L = []
        if not a_only:
            for ks in range(2):
                r = BR + (i & 1) * 8 + ks * 4
                L.append((f"ds_read_b128 v[{r}:{r+3}], v7 offset:{(16 - 16*nt + dl)*160 + 64 - 64*ks}", ("B", key, i)))
        if not b_only:
            run_start = (i % 4 == 0)
            ps = range(4 * dl - 2, 4 * dl + 4) if run_start else range(4 * dl, 4 * dl + 4)
            for p in ps:
                if p >= 0:
                    L += a_loads(p, (key, i // 4))
        return L
    def emit(L):
        for (t, tag) in L:
            a(t); lg.issue(tag)
    for ph, steps in enumerate(phases):
        emit(step_loads(steps, 0, ph, a_only=True))
        a("s_barrier")
        if ph == 0: stamp(a, 4)
        if ph == 7: stamp(a, 5)
        emit(step_loads(steps, 0, ph, b_only=True))
        for i, (nt, dl) in enumerate(steps):
            nxt = step_loads(steps, i + 1, ph) if i + 1 < len(steps) else []
            mf = []
            for ks in (1, 0):
                for mt in range(4):
                    p = 4 * dl + mt - 2 * ks
                    if p < 0: continue
                    ac = ACC + (nt * 4 + mt) * 4
                    ar = AR + slot_of[((ph, i // 4), p)] * 4
                    br = BR + (i & 1) * 8 + ks * 4
                    mf.append((f"v_mfma_f32_16x16x32_bf16 v[{ac}:{ac+3}], v[{ar}:{ar+3}], v[{br}:{br+3}], v[{ac}:{ac+3}]", p))
            pre = nxt[:2]; rest = nxt[2:]
            emit(pre)
            lg.need(("B", ph, i))
            lg.need(("A", (ph, i // 4), 4 * dl + 3))
            k = 0
            for j, (m, p) in enumerate(mf):
                a(m)
                n_to = (len(rest) * (j + 1) + len(mf) - 1) // len(mf)
                while k < min(n_to, len(rest)):
                    emit([rest[k]]); k += 1
            while k < len(rest):
                emit([rest[k]]); k += 1
    for nt in range(2):
        for mt in range(4):
            r = 48 + (nt * 4 + mt) * 2
            a(f"ds_read_b64 v[{r}:{r+1}], v8 offset:{(16-16*nt)*160 + 96 - 32*mt}")
    a("s_nop 7")
    a("s_waitcnt lgkmcnt(0)")
    for nt in range(2):
        for mt in range(4):
            r = 48 + (nt * 4 + mt) * 2
            ac = ACC + (nt * 4 + mt) * 4
            a(f"v_and_b32 v64, 0xffff0000, v{r+1}")
            a(f"v_lshlrev_b32 v65, 16, v{r+1}")
            a(f"v_and_b32 v66, 0xffff0000, v{r}")
            a(f"v_lshlrev_b32 v67, 16, v{r}")
            for q in range(4):
                a(f"v_fmac_f32 v{ac+q}, s64, v{64+q}")
            a(f"v_cvt_pk_bf16_f32 v{r}, v{ac}, v{ac+1}")
            a(f"v_cvt_pk_bf16_f32 v{r+1}, v{ac+2}, v{ac+3}")
            a(f"s_mov_b32 s66, {(nt*64+mt)*18432}")
            a(f"buffer_store_dwordx2 v[{r}:{r+1}], v9, s[32:35], s66 offen")
    stamp(a, 6)
    stamp_flush(a, 7, 77)
    a("s_endpgm")
    a.label("K1_LOADER")
    NCK = 8
    a("s_sub_u32 s17, s17, 4")
    a("s_lshl_b32 s16, s3, 3")
    a("s_mul_i32 s18, s17, 73728")
    a("s_add_u32 s18, s18, s16")
    a("s_add_u32 s42, s4, s18")
    a("s_addc_u32 s43, s5, 0")
    for i in range(6):
        a(f"s_mov_b32 s{48+i}, 0")
    a("s_cmp_eq_u32 s17, 0")
    a("s_cbranch_scc1 K1_NOHALO")
    a("s_sub_u32 s44, s42, 3456")
    a("s_subb_u32 s45, s43, 0")
    for i in range(3):
        a(f"s_load_dwordx2 s[{48+2*i}:{49+2*i}], s[44:45], {i*1152}")
    a.label("K1_NOHALO")
    srd(a, 36, 8, D * 8)
    a("s_lshl_b32 s18, s17, 6")
    a("v_add_u32 v8, s18, v2")
    a("s_movk_i32 s18, 1152")
    a("v_mul_lo_u32 v8, v8, s18")
    a("v_add_u32 v8, s16, v8")
    vm = Track(a, "vmcnt", 63)
    def issue_chunk(c):
        b = 16 + (c % 3) * 4
        a(f"s_mov_b32 s40, {c*294912}")
        a(f"buffer_load_dwordx2 v[{b}:{b+1}], v8, s[20:23], s40 offen"); vm.issue(f"c{c}")
        a(f"buffer_load_dwordx2 v[{b+2}:{b+3}], v8, s[24:27], s40 offen"); vm.issue(f"c{c}")
    issue_chunk(0)
    a("v_and_b32 v3, 7, v2")
    a("v_bfe_u32 v4, v2, 3, 2")
    a("s_lshl_b32 s18, s3, 5")
    a("v_lshl_add_u32 v5, v4, 3, s18")
    a("buffer_load_dwordx2 v[6:7], v5, s[36:39], 0 offen")
    vm.issue("taps")
    for c in range(1, NCK):
        a(f"s_add_u32 s44, s42, {c*294912 - 3456}")
        a(f"s_addc_u32 s45, s43, 0")
        for i in range(3):
            a(f"s_load_dwordx2 s[{48+6*c+2*i}:{49+6*c+2*i}], s[44:45], {i*1152}")
    a(f"s_mul_i32 s46, s17, 1088")
    a(f"s_add_u32 s46, s46, {4*K1_CH}")
    a("v_lshlrev_b32 v9, 2, v2")
    a("v_add_u32 v9, s46, v9")
    a("v_and_b32 v10, 1, v2")
    a("v_mul_u32_u24 v10, 272, v10")
    a("v_lshrrev_b32 v11, 1, v2")
    a("v_lshl_add_u32 v10, v11, 2, v10")
    a("v_add_u32 v10, 4, v10")
    a("v_add_u32 v10, s46, v10")
    a("v_lshrrev_b32 v11, 1, v4")
    a("v_mul_u32_u24 v12, 272, v11")
    a("v_lshl_add_u32 v12, v3, 5, v12")
    a("v_add_u32 v12, s46, v12")
    a("v_lshlrev_b32 v13, 8, v11")
    a("v_lshl_add_u32 v13, v3, 5, v13")
    a("v_add_u32 v13, s46, v13")
    a("v_and_b32 v14, 1, v4")
    a("v_mul_u32_u24 v14, 0x0202, v14")
    a("v_lshlrev_b32 v14, 16, v14")
    a("v_add_u32 v14, 0x01000c0c, v14")
    a("s_sub_u32 s18, 3, s17")
    a("s_mul_i32 s18, s18, 160")
    a(f"s_add_u32 s18, s18, {K1_U + 112}")
    a(f"s_mov_b32 s19, {K1_CH}")
    a("v_mul_lo_u32 v60, v4, s19")
    a("v_lshlrev_b32 v61, 4, v3")
    a("v_sub_u32 v60, v60, v61")
    a("v_add_u32 v60, s18, v60")
    issue_chunk(1)
    stamp(a, 2)
    vm.need("taps")
    a("v_lshlrev_b32 v56, 16, v6")
    a("v_and_b32 v57, 0xffff0000, v6")
    a("v_lshlrev_b32 v58, 16, v7")
    a("v_and_b32 v59, 0xffff0000, v7")
    a("s_waitcnt lgkmcnt(0)")
    stamp(a, 3)
    for ck in range(NCK):
        b = 16 + (ck % 3) * 4
        for j in range(6):
            a(f"v_writelane_b32 v62, s{48+6*ck+j}, {j}")
        vm.need(f"c{ck}")
        if ck == 0: stamp(a, 4)
        if ck == 1: stamp(a, 6)
        a(f"ds_write2_b32 v9, v{b}, v{b+1} offset0:4 offset1:72")
        a(f"ds_write2_b32 v9, v{b+2}, v{b+3} offset0:136 offset1:200")
        a("s_mov_b64 exec, 0x3f")
        a("ds_write_b32 v10, v62")
        a("s_mov_b64 exec, -1")
        a("s_waitcnt lgkmcnt(0)")
        for i in range(3):
            a(f"ds_read_b128 v[{32+4*i}:{35+4*i}], v12 offset:{16*i}")
        for i in range(2):
            a(f"ds_read_b128 v[{44+4*i}:{47+4*i}], v13 offset:{544+16*i}")
        a("s_waitcnt lgkmcnt(2)")
        for i in range(11):
            a(f"v_perm_b32 v{64+i}, v{33+i}, v{33+i}, v14")
        a("s_waitcnt lgkmcnt(0)")
        for i in range(8):
            a(f"v_perm_b32 v{76+i}, v{44+i}, v{44+i}, v14")
        for i in range(8):
            a(f"v_mul_f32 v{84+i}, v59, v{64+i}")
            a(f"v_fmac_f32 v{84+i}, v58, v{64+i+1}")
            a(f"v_fmac_f32 v{84+i}, v57, v{64+i+2}")
            a(f"v_fmac_f32 v{84+i}, v56, v{64+i+3}")
            a(f"v_mul_f32 v{84+i}, v{84+i}, v{76+i}")
        for q in range(4):
            a(f"v_cvt_pk_bf16_f32 v{92+q}, v{84+7-2*q}, v{84+6-2*q}")
        a(f"ds_write_b128 v60, v[92:95] offset:{(NCK-1-ck)*640}")
        a("s_waitcnt lgkmcnt(0)")
        if ck == 0: stamp(a, 5)
        a("s_barrier")
        if ck + 2 < NCK:
            issue_chunk(ck + 2)
    stamp_flush(a, 7, 77)
    a("s_endpgm")
    a.label("K1_MOD")
    a("s_load_dwordx4 s[4:7], s[0:1], 80")
    a("s_load_dwordx2 s[8:9], s[0:1], 112")
    a("s_load_dwordx4 s[40:43], s[0:1], 56")
    a("s_load_dwordx2 s[44:45], s[0:1], 72")
    a("s_load_dwordx2 s[46:47], s[0:1], 0")
    a("s_load_dwordx4 s[48:51], s[0:1], 8")
    a("s_sub_u32 s3, s2, 144")
    a("v_lshrrev_b32 v1, 6, v0")
    a("s_nop 0")
    a("v_readfirstlane_b32 s17, v1")
    a("s_cmp_ge_u32 s17, 4")
    a("s_cbranch_scc1 K1_PF")
    a("v_and_b32 v1, 3, v0")
    a("v_lshrrev_b32 v2, 2, v0")
    a("v_mul_u32_u24 v3, 18, v2")
    a("s_mov_b32 s16, 62208")
    a("v_mul_lo_u32 v4, v2, s16")
    a("v_lshlrev_b32 v5, 4, v1")
    a("s_lshl_b32 s17, s3, 6")
    a("v_add3_u32 v4, v4, v5, s17")
    a("s_waitcnt lgkmcnt(0)")
    srd(a, 20, 4, D * 2)
    srd(a, 24, 6, D * 6 * D * 2)
    srd(a, 28, 8, 6 * D * 2, WS_MOD)
    for i in range(9):
        a(f"buffer_load_ushort v{10+i}, v3, s[20:23], 0 offen offset:{2*i}")
    for i in range(9):
        a(f"s_mov_b32 s18, {i*6912}")
        a(f"buffer_load_dwordx4 v[{20+4*i}:{23+4*i}], v4, s[24:27], s18 offen")
    for r in range(8):
        a(f"v_mov_b32 v{60+r}, 0")
    a("s_waitcnt vmcnt(9)")
    a("s_mov_b32 s19, 0xbfb8aa3b")
    for i in range(9):
        a(f"v_lshlrev_b32 v{10+i}, 16, v{10+i}")
        a(f"v_mul_f32 v70, s19, v{10+i}")
        a("v_exp_f32 v70, v70")
        a("s_nop 0")
        a("v_add_f32 v70, 1.0, v70")
        a("v_rcp_f32 v70, v70")
        a("s_nop 0")
        a(f"v_mul_f32 v70, v70, v{10+i}")
        a("v_cvt_pk_bf16_f32 v70, v70, v70")
        a(f"v_lshlrev_b32 v{10+i}, 16, v70")
    for i in range(9):
        a(f"s_waitcnt vmcnt({8-i})")
        for q in range(4):
            a(f"v_lshlrev_b32 v70, 16, v{20+4*i+q}")
            a(f"v_and_b32 v71, 0xffff0000, v{20+4*i+q}")
            a(f"v_fmac_f32 v{60+2*q}, v70, v{10+i}")
            a(f"v_fmac_f32 v{61+2*q}, v71, v{10+i}")
    a("v_lshlrev_b32 v5, 5, v0")
    a("ds_write_b128 v5, v[60:63]")
    a("ds_write_b128 v5, v[64:67] offset:16")
    a("s_waitcnt lgkmcnt(0)")
    a("s_barrier")
    a("v_and_b32 v6, 31, v0")
    a("v_lshrrev_b32 v7, 5, v0")
    a("v_lshlrev_b32 v8, 10, v7")
    a("v_lshl_add_u32 v8, v6, 2, v8")
    for i in range(8):
        a(f"ds_read_b32 v{10+i}, v8 offset:{i*128}")
    a("s_waitcnt lgkmcnt(0)")
    for i in range(1, 8):
        a(f"v_add_f32 v10, v10, v{10+i}")
    a("v_lshlrev_b32 v9, 2, v0")
    a("ds_write_b32 v9, v10 offset:8192")
    a("s_waitcnt lgkmcnt(0)")
    a("s_barrier")
    a("v_lshlrev_b32 v8, 2, v6")
    for i in range(8):
        a(f"ds_read_b32 v{10+i}, v8 offset:{8192 + i*128}")
    a("s_waitcnt lgkmcnt(0)")
    for i in range(1, 8):
        a(f"v_add_f32 v10, v10, v{10+i}")
    a("v_cvt_pk_bf16_f32 v10, v10, v10")
    a("v_lshlrev_b32 v9, 1, v6")
    a("v_add_u32 v9, s17, v9")
    a("v_cmp_gt_u32 vcc, 32, v0")
    a("s_and_saveexec_b64 s[32:33], vcc")
    a("s_cbranch_execz K1_END")
    a("buffer_store_short v10, v9, s[28:31], 0 offen")
    a("s_endpgm")
    a.label("K1_PF")
    a("v_subrev_u32 v1, 256, v0")
    a("s_lshl_b32 s16, s3, 8")
    a("v_add_u32 v1, s16, v1")
    a("v_lshlrev_b32 v1, 4, v1")
    a("s_waitcnt lgkmcnt(0)")
    srd(a, 20, 46, NB_ACT)
    srd(a, 24, 40, D * F * 2)
    srd(a, 28, 42, D * F * 2)
    srd(a, 32, 44, D * F * 2)
    srd(a, 52, 48, NB_ACT)
    srd(a, 56, 50, NB_ACT)
    a("v_subrev_u32 v2, 256, v0")
    a("s_lshr_b32 s16, s3, 3")
    a("s_lshl_b32 s16, s16, 8")
    a("v_add_u32 v2, s16, v2")
    a("v_lshrrev_b32 v3, 1, v2")
    a("s_movk_i32 s16, 1152")
    a("v_mul_lo_u32 v3, v3, s16")
    a("v_and_b32 v2, 1, v2")
    a("v_mul_u32_u24 v2, 140, v2")
    a("s_and_b32 s16, s3, 7")
    a("s_mul_i32 s16, s16, 144")
    a("v_add3_u32 v3, v3, v2, s16")
    a(f"s_mov_b32 s18, {1664*1152}")
    a("buffer_load_dword v70, v3, s[52:55], 0 offen")
    a("buffer_load_dword v71, v3, s[56:59], 0 offen")
    a("buffer_load_dword v72, v3, s[52:55], s18 offen")
    a("buffer_load_dword v73, v3, s[56:59], s18 offen")
    if PF_CODE:
        a("s_getpc_b64 s[60:61]")
        a.label("K1_PC")
        a("s_sub_u32 s60, s60, K1_PC-k1_kernel")
        a("s_subb_u32 s61, s61, 0")
        a("s_mov_b32 s62, CODE_END-k1_kernel")
        a("s_mov_b32 s63, 0x00020000")
        a("v_subrev_u32 v2, 256, v0")
        a("s_lshr_b32 s16, s3, 3")
        a("s_lshl_b32 s16, s16, 8")
        a("v_add_u32 v2, s16, v2")
        a("v_lshlrev_b32 v3, 4, v2")
        a("buffer_load_dwordx4 v[76:79], v3, s[60:63], 0 offen")
        a("s_mov_b32 s18, 53248")
        a("buffer_load_dwordx4 v[80:83], v3, s[60:63], s18 offen")
    if PF_TLB:
        srd(a, 64, 8, WS_END)
        a("v_lshlrev_b32 v3, 15, v2")
        a("buffer_load_dword v84, v3, s[64:67], 0 offen")
    PASS = 108 * 256 * 16
    n = 0
    for (sr, nb) in ((20, NB_ACT), (24, D*F*2), (28, D*F*2), (32, D*F*2)):
        for i in range((nb + PASS - 1) // PASS):
            a(f"s_mov_b32 s18, {i*PASS}")
            r = 4 + 4 * (n % 16); n += 1
            a(f"buffer_load_dwordx4 v[{r}:{r+3}], v1, s[{sr}:{sr+3}], s18 offen")
    a("s_waitcnt vmcnt(0)")
    a.label("K1_END")
    a("s_endpgm")

class Track:
    def __init__(self, a, name, maxn):
        self.a = a; self.name = name; self.maxn = maxn
        self.q = []
    def issue(self, tag):
        self.q.append(tag)
    def need(self, tag):
        idx = [i for i, t in enumerate(self.q) if t == tag]
        if not idx: return
        n = len(self.q) - 1 - idx[-1]
        n = min(n, self.maxn)
        self.a(f"s_waitcnt {self.name}({n})")
        self.q = self.q[len(self.q) - n:] if n else []
    def drain(self):
        self.a(f"s_waitcnt {self.name}(0)")
        self.q = []

def bf16_round(a, v, tmp=None):
    a(f"v_cvt_pk_bf16_f32 v{v}, v{v}, v{v}")
    a(f"v_lshlrev_b32 v{v}, 16, v{v}")

K2_LDS = 18432 + 4096
def gen_k2(a):
    kernel_header(a, "k2_kernel")
    a("s_cmp_ge_u32 s2, 128")
    a("s_cbranch_scc1 K2_END")
    a("s_load_dwordx2 s[4:5], s[0:1], 0")
    a("s_load_dwordx2 s[6:7], s[0:1], 112")
    a("v_lshrrev_b32 v1, 6, v0")
    a("v_and_b32 v2, 63, v0")
    a("s_nop 0")
    a("v_readfirstlane_b32 s17, v1")
    a("v_and_b32 v3, 15, v2")
    a("v_lshrrev_b32 v4, 4, v2")
    a("s_waitcnt lgkmcnt(0)")
    srd(a, 20, 4, NB_ACT)
    srd(a, 24, 6, NB_ACT, WS_Y2T)
    srd(a, 28, 6, 6 * D * 2, WS_MOD)
    srd(a, 32, 6, NB_ACT, WS_X1)
    srd(a, 36, 6, NB_ACT, WS_H2F)
    a("v_lshrrev_b32 v5, 1, v2")
    a("v_lshrrev_b32 v6, 4, v5")
    a("v_bfe_u32 v7, v5, 2, 2")
    a("v_and_b32 v8, 3, v5")
    a("v_lshlrev_b32 v7, 3, v7")
    a("v_lshl_add_u32 v7, v6, 2, v7")
    a("v_add_u32 v7, v7, v8")
    a("v_lshlrev_b32 v7, 5, v7")
    a("v_and_b32 v8, 1, v2")
    a("v_lshl_add_u32 v7, v8, 4, v7")
    a("s_mul_i32 s18, s2, 18432")
    a("s_lshl_b32 s19, s17, 11")
    a("s_add_u32 s18, s18, s19")
    a("s_mov_b32 m0, s19")
    a("s_nop 0")
    a("buffer_load_dwordx4 v7, s[24:27], s18 offen lds")
    a("buffer_load_dwordx4 v7, s[24:27], s18 offen offset:1024 lds")
    a("s_lshl_b32 s18, s2, 4")
    a("v_add_u32 v8, s18, v3")
    a("s_movk_i32 s18, 1152")
    a("v_mul_lo_u32 v8, v8, s18")
    a("v_lshlrev_b32 v9, 4, v4")
    a("s_lshl_b32 s18, s17, 7")
    a("v_add_u32 v9, s18, v9")
    a("v_add_u32 v8, v8, v9")
    a("buffer_load_dwordx4 v[12:15], v8, s[20:23], 0 offen")
    a("buffer_load_dwordx4 v[16:19], v8, s[20:23], 0 offen offset:64")
    for p in range(5):
        for kk in range(2):
            r = 20 + 8 * p + 4 * kk
            if p * 1152 + 64 * kk < 4096:
                a(f"buffer_load_dwordx4 v[{r}:{r+3}], v9, s[28:31], 0 offen offset:{p*1152 + 64*kk}")
            else:
                a("s_movk_i32 s18, 4608")
                a(f"buffer_load_dwordx4 v[{r}:{r+3}], v9, s[28:31], s18 offen offset:{64*kk}")
    a("v_lshlrev_b32 v10, 3, v2")
    a("v_add_u32 v10, s19, v10")
    a("v_lshlrev_b32 v11, 3, v3")
    a("v_add_u32 v11, 18432, v11")
    a("s_lshl_b32 s18, s17, 7")
    a("v_add_u32 v60, s18, v11")
    a("s_waitcnt vmcnt(10)")
    a("ds_read_b64_tr_b16 v[96:97], v10")
    a("ds_read_b64_tr_b16 v[98:99], v10 offset:512")
    a("ds_read_b64_tr_b16 v[100:101], v10 offset:1024")
    a("ds_read_b64_tr_b16 v[102:103], v10 offset:1536")
    for i in range(8):
        a(f"v_lshlrev_b32 v{64+2*i}, 16, v{12+i}")
        a(f"v_and_b32 v{65+2*i}, 0xffff0000, v{12+i}")
    def stats(src, rnd):
        a(f"v_add_f32 v62, v{src}, v{src+1}")
        a(f"v_mul_f32 v63, v{src}, v{src}")
        a(f"v_fmac_f32 v63, v{src+1}, v{src+1}")
        for i in range(2, 16):
            a(f"v_add_f32 v62, v62, v{src+i}")
            a(f"v_fmac_f32 v63, v{src+i}, v{src+i}")
        for sw in ("v_permlane16_swap_b32", "v_permlane32_swap_b32"):
            a("v_mov_b32 v104, v62")
            a("v_mov_b32 v105, v63")
            a("s_nop 1")
            a(f"{sw} v62, v104")
            a(f"{sw} v63, v105")
            a("s_nop 1")
            a("v_add_f32 v62, v62, v104")
            a("v_add_f32 v63, v63, v105")
        a(f"ds_write_b64 v60, v[62:63] offset:{rnd*2048}")
        a("s_waitcnt lgkmcnt(0)")
        a("s_barrier")
        for w in range(9):
            a(f"ds_read_b64 v[{106+2*w}:{107+2*w}], v11 offset:{rnd*2048 + w*128}")
        a("s_waitcnt lgkmcnt(0)")
        for w in range(1, 9):
            a(f"v_add_f32 v106, v106, v{106+2*w}")
            a(f"v_add_f32 v107, v107, v{107+2*w}")
        a("s_mov_b32 s18, 0x3ae38e39")
        a("v_mul_f32 v62, s18, v106")
        a("v_mul_f32 v63, s18, v107")
        a("v_fma_f32 v63, -v62, v62, v63")
        a("v_max_f32 v63, 0, v63")
        bf16_round(a, 62)
        bf16_round(a, 63)
        a("v_add_f32 v63, 0x3727c5ac, v63")
        bf16_round(a, 63)
        a("v_sqrt_f32 v63, v63")
        a("s_nop 0")
        bf16_round(a, 63)
        a("v_rcp_f32 v63, v63")
        a("s_nop 0")
    stats(64, 0)
    a("s_waitcnt vmcnt(0)")
    def punpack(dst, p, e):
        r = 20 + 8 * p + 4 * (e >> 3) + ((e & 7) >> 1)
        if e & 1: a(f"v_and_b32 v{dst}, 0xffff0000, v{r}")
        else: a(f"v_lshlrev_b32 v{dst}, 16, v{r}")
    for e in range(16):
        x = 64 + e
        yr = 96 + (e >> 1)
        punpack(104, 1, e)
        punpack(105, 0, e)
        punpack(106, 2, e)
        if e & 1: a(f"v_and_b32 v107, 0xffff0000, v{yr}")
        else: a(f"v_lshlrev_b32 v107, 16, v{yr}")
        a("v_add_f32 v104, 1.0, v104")
        a(f"v_sub_f32 v108, v{x}, v62")
        a("v_mul_f32 v108, v108, v63")
        a("v_fma_f32 v108, v108, v104, v105")
        a("v_mul_f32 v108, v108, v107")
        a(f"v_fma_f32 v{80+e}, v108, v106, v{x}")
    for i in range(8):
        a(f"v_cvt_pk_bf16_f32 v{12+i}, v{80+2*i}, v{81+2*i}")
    for i in range(8):
        a(f"v_lshlrev_b32 v{80+2*i}, 16, v{12+i}")
        a(f"v_and_b32 v{81+2*i}, 0xffff0000, v{12+i}")
    a("buffer_store_dwordx4 v[12:15], v8, s[32:35], 0 offen")
    a("buffer_store_dwordx4 v[16:19], v8, s[32:35], 0 offen offset:64")
    stats(80, 1)
    for e in range(16):
        punpack(104, 4, e)
        punpack(105, 3, e)
        a("v_add_f32 v104, 1.0, v104")
        a(f"v_sub_f32 v108, v{80+e}, v62")
        a("v_mul_f32 v108, v108, v63")
        a(f"v_fma_f32 v{64+e}, v108, v104, v105")
    for i in range(8):
        a(f"v_cvt_pk_bf16_f32 v{96+i}, v{64+2*i}, v{65+2*i}")
    a("s_mul_i32 s18, s2, 18432")
    a("s_add_u32 s18, s18, s19")
    a("v_lshlrev_b32 v9, 4, v2")
    a("buffer_store_dwordx4 v[96:99], v9, s[36:39], s18 offen")
    a("buffer_store_dwordx4 v[100:103], v9, s[36:39], s18 offen offset:1024")
    a.label("K2_END")
    a("s_endpgm")

ST_BYTES = 34816
G_LDS = 4 * ST_BYTES
NST = 18
def gen_gemm(a, mode):
    nm = "k3" if mode == 1 else "k4"
    kernel_header(a, nm + "_kernel")
    a("s_cmp_ge_u32 s2, 256")
    a(f"s_cbranch_scc1 {nm.upper()}_END")
    stamp(a, 0)
    if mode == 1:
        a("s_load_dwordx4 s[4:7], s[0:1], 56")
    else:
        a("s_load_dwordx2 s[4:5], s[0:1], 72")
    a("s_load_dwordx2 s[8:9], s[0:1], 112")
    a("v_lshrrev_b32 v1, 6, v0")
    a("v_and_b32 v2, 63, v0")
    a("s_nop 0")
    a("v_readfirstlane_b32 s17, v1")
    a("s_and_b32 s10, s2, 7")
    a("s_lshr_b32 s11, s2, 3")
    a("s_and_b32 s12, s10, 1")
    a("s_lshr_b32 s13, s10, 1")
    if mode == 1:
        a("s_lshl_b32 s12, s12, 2")
        a("s_and_b32 s14, s11, 3")
        a("s_add_u32 s12, s12, s14")
        a("s_lshl_b32 s13, s13, 3")
        a("s_lshr_b32 s14, s11, 2")
        a("s_add_u32 s13, s13, s14")
    else:
        a("s_lshl_b32 s12, s12, 3")
        a("s_and_b32 s14, s11, 7")
        a("s_add_u32 s12, s12, s14")
        a("s_lshr_b32 s14, s11, 3")
    a("s_and_b32 s15, s17, 3")
    a("s_waitcnt lgkmcnt(0)")
    if mode == 1:
        srd(a, 20, 4, D * F * 2)
        srd(a, 24, 6, D * F * 2)
        srd(a, 28, 8, NB_ACT, WS_H2F)
        srd(a, 32, 8, S * F * 2, WS_HID)
        a("s_cmp_lt_u32 s15, 2")
        a("s_cselect_b32 s36, s4, s6")
        a("s_cselect_b32 s37, s5, s7")
        a(f"s_mov_b32 s38, {D*F*2}")
        a("s_mov_b32 s39, 0x00020000")
        pitch = 9216
    else:
        srd(a, 20, 4, D * F * 2)
        srd(a, 28, 8, S * F * 2, WS_HID)
        srd(a, 32, 8, 4 * S * D * 4, WS_PART)
        pitch = 1152
    a("v_lshlrev_b32 v3, 4, v2")
    if mode == 1:
        a("s_lshl_b32 s18, s15, 12")
    else:
        a("s_and_b32 s18, s15, 1")
        a("s_lshl_b32 s18, s18, 13")
        a("s_lshr_b32 s19, s15, 1")
        a("s_lshl_b32 s19, s19, 12")
        a("s_add_u32 s18, s18, s19")
    a("v_add_u32 v4, s18, v3")
    a("v_lshrrev_b32 v5, 2, v2")
    a("v_mul_u32_u24 v5, 288, v5")
    a("v_and_b32 v6, 3, v2")
    a("v_lshl_add_u32 v5, v6, 3, v5")
    a("v_add_u32 v5, 16384, v5")
    if mode == 1:
        a("s_and_b32 s16, s13, 1")
        a("s_lshl_b32 s18, s16, 5")
        a("v_add_u32 v6, s18, v5")
        a("s_cmp_eq_u32 s16, 0")
        a("s_cselect_b32 s18, 256, 0")
        a("v_add_u32 v7, s18, v5")
    else:
        a("s_and_b32 s18, s15, 1")
        a("s_mul_i32 s18, s18, 9216")
        a("v_add_u32 v6, s18, v5")
    a("s_cmp_ge_u32 s17, 4")
    a(f"s_cbranch_scc1 {nm.upper()}_TG1")
    for tg in range(2):
        if tg == 1:
            a.label(f"{nm.upper()}_TG1")
        gemm_body(a, mode, tg, pitch)
    a.label(f"{nm.upper()}_END")
    a("s_endpgm")

def gemm_body(a, mode, tg, pitch):
    nt = 5 if tg == 0 else 4
    vm = Track(a, "vmcnt", 63)
    lg = Track(a, "lgkmcnt", 15)
    if tg == 0:
        a("v_mov_b32 v8, v3")
        for i in range(4):
            if mode == 1:
                a("s_lshl_b32 s18, s12, 4")
                a("s_lshl_b32 s19, s15, 2")
                a("s_add_u32 s18, s18, s19")
                a(f"s_add_u32 s18, s18, {i}")
                a(f"s_mul_i32 s{40+i}, s18, 18432")
            else:
                a("s_and_b32 s18, s15, 1")
                a("s_lshl_b32 s18, s18, 2")
                a("s_lshl_b32 s19, s12, 3")
                a("s_add_u32 s18, s18, s19")
                a(f"s_add_u32 s18, s18, {i}")
                a("s_mul_i32 s18, s18, 144")
                a("s_mul_i32 s19, s13, 36")
                a("s_add_u32 s18, s18, s19")
                a("s_lshr_b32 s19, s15, 1")
                a("s_add_u32 s18, s18, s19")
                a(f"s_lshl_b32 s{40+i}, s18, 10")
        a("s_lshl_b32 s44, s15, 12")
        astep = 1024 if mode == 1 else 2048
        def dma(st):
            base = (st & 3) * ST_BYTES
            for i in range(4):
                a(f"s_add_u32 m0, s44, {base + i*1024}")
                a("s_nop 0")
                a(f"buffer_load_dwordx4 v8, s[28:31], s{40+i} offen lds")
                vm.issue(("d", st))
            a(f"v_add_u32 v8, {astep}, v8")
    else:
        def qaddr(dst):
            a(f"v_mul_u32_u24 v12, 3641, v{dst}")
            a("v_lshrrev_b32 v12, 16, v12")
            a("v_mul_u32_u24 v13, 18, v12")
            a(f"v_sub_u32 v13, v{dst}, v13")
            if mode == 1:
                a("v_lshrrev_b32 v14, 4, v12")
                a("v_bfe_u32 v15, v12, 2, 2")
                a("v_and_b32 v12, 3, v12")
                a("v_lshl_add_u32 v12, v15, 3, v12")
                a("v_lshl_add_u32 v12, v14, 2, v12")
            a(f"v_mul_u32_u24 v12, {pitch}, v12")
            a(f"v_lshl_add_u32 v{dst}, v13, 4, v12")
        a("s_lshl_b32 s18, s15, 7")
        a("v_add_u32 v8, s18, v2")
        a("v_add_u32 v9, 64, v8")
        a("s_and_b32 s18, s15, 1")
        a("s_lshl_b32 s18, s18, 5")
        a("s_add_u32 s18, s18, 512")
        a("v_add_u32 v10, s18, v2")
        qaddr(8); qaddr(9); qaddr(10)
        if mode == 1:
            a("s_mul_i32 s40, s13, 288")
        else:
            a(f"s_mul_i32 s40, s13, {1152*1152}")
            a("s_mul_i32 s18, s14, 288")
            a("s_add_u32 s40, s40, s18")
        a("s_lshl_b32 s44, s15, 11")
        a("s_lshr_b32 s45, s15, 1")
        a("s_mul_i32 s45, s45, 9216")
        a("s_and_b32 s18, s15, 1")
        a("s_lshl_b32 s18, s18, 9")
        a("s_add_u32 s45, s45, s18")
        if mode == 2:
            a("s_lshr_b32 s46, s15, 1")
            a(f"s_mul_i32 s46, s46, {32*pitch}")
        wstep = 32 * pitch if mode == 1 else 64 * pitch
        def dma(st):
            base = (st & 3) * ST_BYTES + 16384
            if mode == 2:
                a(f"s_add_u32 s41, s40, {32*pitch}")
                a("s_add_u32 s42, s40, s46")
            for blk in range(2):
                for j in range(2):
                    a(f"s_add_u32 m0, s44, {base + blk*9216 + j*1024}")
                    a("s_nop 0")
                    if mode == 1:
                        a(f"buffer_load_dwordx4 v{8+j}, s[{20+4*blk}:{23+4*blk}], s40 offen lds")
                    else:
                        a(f"buffer_load_dwordx4 v{8+j}, s[20:23], s{40+blk} offen lds")
                    vm.issue(("d", st))
            a(f"s_add_u32 m0, s45, {base + 8192}")
            a("s_mov_b64 exec, 0xffffffff")
            if mode == 1:
                a("buffer_load_dwordx4 v10, s[36:39], s40 offen lds")
            else:
                a("buffer_load_dwordx4 v10, s[20:23], s42 offen lds")
            vm.issue(("d", st))
            a("s_mov_b64 exec, -1")
            a(f"s_add_u32 s40, s40, {wstep}")
    AF = 16
    WR = 48
    ACC = 64
    nblk = 2 if mode == 1 else 1
    units = [(t, b) for t in range(nt) for b in range(nblk)]
    U = len(units)
    def acc(t, b, i): return ACC + ((t * nblk + b) * 4 + i) * 4
    nacc = U * 16
    for r in range(nacc):
        a(f"v_mov_b32 v{ACC+r}, 0")
    def w_addr(t, b):
        if mode == 1:
            if tg == 0:
                if t == 0: return 7, b * 9216
                return 6, b * 9216 + (t - 1) * 32
            return 6, b * 9216 + (4 + t) * 32
        else:
            return 6, (t if tg == 0 else 5 + t) * 32
    def read_w(gu):
        st, u = divmod(gu, U)
        if st >= NST: return
        t, b = units[u]
        vr, off = w_addr(t, b)
        off += (st & 3) * ST_BYTES
        r = WR + (gu & 3) * 4
        if off + 4608 >= 65536:
            vr2 = {6: 12, 7: 13}[vr]; off -= 65536 - 0
            vr = vr2
        a(f"ds_read_b64_tr_b16 v[{r}:{r+1}], v{vr} offset:{off}")
        lg.issue(("w", gu))
        a(f"ds_read_b64_tr_b16 v[{r+2}:{r+3}], v{vr} offset:{off+4608}")
        lg.issue(("w", gu))
    def read_a(st, i):
        if st >= NST: return
        off = (st & 3) * ST_BYTES + i * 1024
        vr = 4
        if off >= 65536 - 16384:
            vr = 14; off -= 65536
        r = AF + (st & 1) * 16 + i * 4
        a(f"ds_read_b128 v[{r}:{r+3}], v{vr} offset:{off}")
        lg.issue(("a", st, i))
    a("v_add_u32 v12, 0x10000, v6")
    if mode == 1 and tg == 0:
        a("v_add_u32 v13, 0x10000, v7")
    a("v_add_u32 v14, 0x10000, v4")
    dma(0); dma(1); dma(2)
    PD = 3
    first = True
    for st in range(NST):
        vm.need(("d", min(st + 1, NST - 1)))
        a("s_barrier")
        if st in (0, 3, 9, 15):
            stamp(a, {0:1, 3:2, 9:3, 15:4}[st])
        if st + 3 < NST:
            dma(st + 3)
        if st == 0:
            for i in range(4): read_a(0, i)
            for gu in range(PD): read_w(gu)
        for u in range(U):
            gu = st * U + u
            read_w(gu + PD)
            if u >= U - 4:
                read_a(st + 1, u - (U - 4))
            lg.need(("w", gu))
            if u == 0:
                lg.need(("a", st, 3))
            t, b = units[u]
            r = WR + (gu & 3) * 4
            for i in range(4):
                ar = AF + (st & 1) * 16 + i * 4
                ac = acc(t, b, i)
                a(f"v_mfma_f32_16x16x32_bf16 v[{ac}:{ac+3}], v[{r}:{r+3}], v[{ar}:{ar+3}], v[{ac}:{ac+3}]")
    a("s_nop 7")
    stamp(a, 5)
    if mode == 1:
        a("s_mul_i32 s18, s13, 9")
        a("s_add_u32 s18, s18, s16")
        a("s_lshr_b32 s18, s18, 1")
        a("s_lshl_b32 s19, s12, 4")
        a("s_lshl_b32 s40, s15, 2")
        a("s_add_u32 s19, s19, s40")
        a("s_mul_i32 s19, s19, 144")
        a("s_add_u32 s40, s19, s18")
        a("s_lshl_b32 s40, s40, 10")
        if tg == 0:
            a("s_mul_i32 s41, s13, 9")
            a("s_cmp_eq_u32 s16, 0")
            a("s_cselect_b32 s42, 8, 0")
            a("s_add_u32 s41, s41, s42")
            a("s_lshr_b32 s41, s41, 1")
            a("s_add_u32 s41, s41, s19")
            a("s_lshl_b32 s41, s41, 10")
            a("s_lshl_b32 s42, s16, 3")
            a("s_add_u32 s41, s41, s42")
        def hid(t, i, dst):
            g = acc(t, 0, i); u_ = acc(t, 1, i)
            for q in range(4):
                a(f"v_max_f32 v{g+q}, 0, v{g+q}")
            for q in range(4):
                a(f"v_mul_f32 v{g+q}, v{g+q}, v{u_+q}")
            a(f"v_cvt_pk_bf16_f32 v{dst}, v{g}, v{g+1}")
            a(f"v_cvt_pk_bf16_f32 v{dst+1}, v{g+2}, v{g+3}")
        slot = 0
        for i in range(4):
            pairs = [(1, 2), (3, 4)] if tg == 0 else [(0, 1), (2, 3)]
            for pp, (t0, t1) in enumerate(pairs):
                dst = 16 + (slot % 8) * 4; slot += 1
                hid(t0, i, dst); hid(t1, i, dst + 2)
                po = (pp + (0 if tg == 0 else 2)) * 1024
                a(f"s_add_u32 s42, s40, {i*144*1024 + po}")
                a(f"buffer_store_dwordx4 v[{dst}:{dst+3}], v3, s[32:35], s42 offen sc1")
            if tg == 0:
                dst = 16 + (slot % 8) * 4; slot += 1
                hid(0, i, dst)
                a(f"s_add_u32 s42, s41, {i*144*1024}")
                a(f"buffer_store_dwordx2 v[{dst}:{dst+1}], v3, s[32:35], s42 offen sc1")
    else:
        a("s_barrier")
        a("s_lshr_b32 s18, s15, 1")
        a(f"s_add_u32 s18, s18, {tg*2}")
        a("s_lshl_b32 s18, s18, 1")
        a("s_and_b32 s16, s15, 1")
        a("s_add_u32 s19, s18, s16")
        a("s_mul_i32 s19, s19, 10240")
        a("s_xor_b32 s40, s16, 1")
        a("s_add_u32 s18, s18, s40")
        a("s_mul_i32 s18, s18, 10240")
        a("v_add_u32 v8, s19, v3")
        a("v_add_u32 v9, s18, v3")
        a("s_cmp_eq_u32 s16, 0")
        lbl = f"K4_EP{tg}"
        a(f"s_cbranch_scc0 {lbl}_B")
        for kg in range(2):
            if kg == 1: a.label(f"{lbl}_B")
            keep = [2 * kg, 2 * kg + 1]; send = [2 - 2 * kg, 3 - 2 * kg]
            for t in range(nt):
                for ii, i in enumerate(send):
                    ac = acc(t, 0, i)
                    a(f"ds_write_b128 v8, v[{ac}:{ac+3}] offset:{(t*2+ii)*1024}")
            a("s_waitcnt lgkmcnt(0)")
            a("s_barrier")
            a("s_lshl_b32 s40, s13, 7")
            a("s_lshl_b32 s41, s12, 3")
            a("s_add_u32 s40, s40, s41")
            a("s_lshr_b32 s41, s15, 1")
            a("s_lshl_b32 s41, s41, 2")
            a("s_add_u32 s40, s40, s41")
            a("s_mul_i32 s40, s40, 36")
            a("s_mul_i32 s41, s14, 9")
            a("s_add_u32 s40, s40, s41")
            a("s_lshl_b32 s40, s40, 10")
            for t in range(nt):
                for ii, i in enumerate(keep):
                    r = 16 + ((t * 2 + ii) % 10) * 4
                    a(f"ds_read_b128 v[{r}:{r+3}], v9 offset:{(t*2+ii)*1024}")
            for t in range(nt):
                for ii, i in enumerate(keep):
                    r = 16 + ((t * 2 + ii) % 10) * 4
                    ac = acc(t, 0, i)
                    a(f"s_waitcnt lgkmcnt({min(15, 2*nt - 1 - (t*2+ii))})")
                    for q in range(4):
                        a(f"v_add_f32 v{ac+q}, v{ac+q}, v{r+q}")
                    a(f"s_add_u32 s42, s40, {(i*36 + t + (0 if tg == 0 else 5))*1024}")
                    a(f"buffer_store_dwordx4 v[{ac}:{ac+3}], v3, s[32:35], s42 offen sc1")
            if STAMP: a("s_waitcnt vmcnt(0)")
            stamp(a, 6)
            stamp_flush(a, 7, 77)
            a("s_endpgm")
    if mode == 1:
        if STAMP: a("s_waitcnt vmcnt(0)")
        stamp(a, 6)
        stamp_flush(a, 7, 77)
        a("s_endpgm")

def gen_k5(a):
    kernel_header(a, "k5_kernel")
    a("s_cmp_ge_u32 s2, 576")
    a("s_cbranch_scc1 K5_END")
    a("s_load_dwordx2 s[4:5], s[0:1], 96")
    a("s_load_dwordx2 s[6:7], s[0:1], 112")
    a("v_lshrrev_b32 v1, 6, v0")
    a("v_and_b32 v2, 63, v0")
    a("s_nop 0")
    a("v_readfirstlane_b32 s17, v1")
    a("s_waitcnt lgkmcnt(0)")
    srd(a, 20, 6, 4 * S * D * 4, WS_PART)
    srd(a, 24, 6, NB_ACT, WS_X1)
    srd(a, 28, 6, 6 * D * 2, WS_MOD)
    srd(a, 32, 4, NB_ACT)
    a("s_lshl_b32 s18, s2, 2")
    a("s_add_u32 s18, s18, s17")
    a("s_mul_i32 s19, s18, 3641")
    a("s_lshr_b32 s19, s19, 16")
    a("s_mul_i32 s16, s19, 18")
    a("s_sub_u32 s16, s18, s16")
    a("s_lshl_b32 s18, s18, 11")
    a("v_lshlrev_b32 v3, 4, v2")
    for sp in range(4):
        a(f"s_add_u32 s15, s18, {sp*S*D*4}")
        for t in range(2):
            r = 16 + (sp * 2 + t) * 4
            a(f"buffer_load_dwordx4 v[{r}:{r+3}], v3, s[20:23], s15 offen offset:{t*1024}")
    a("v_and_b32 v4, 15, v2")
    a("v_lshrrev_b32 v5, 4, v2")
    a("s_lshl_b32 s15, s19, 4")
    a("v_add_u32 v4, s15, v4")
    a("s_movk_i32 s15, 1152")
    a("v_mul_lo_u32 v4, v4, s15")
    a("v_lshlrev_b32 v5, 3, v5")
    a("s_lshl_b32 s15, s16, 6")
    a("v_add_u32 v5, s15, v5")
    a("v_add_u32 v4, v4, v5")
    a("buffer_load_dwordx2 v[48:49], v4, s[24:27], 0 offen")
    a("buffer_load_dwordx2 v[50:51], v4, s[24:27], 0 offen offset:32")
    a("s_movk_i32 s15, 5760")
    a("buffer_load_dwordx2 v[52:53], v5, s[28:31], s15 offen")
    a("buffer_load_dwordx2 v[54:55], v5, s[28:31], s15 offen offset:32")
    a("s_waitcnt vmcnt(4)")
    for t in range(2):
        for q in range(4):
            r = 16 + t * 4 + q
            a(f"v_add_f32 v{r}, v{r}, v{r+8}")
            a(f"v_add_f32 v{r+16}, v{r+16}, v{r+24}")
            a(f"v_add_f32 v{r}, v{r}, v{r+16}")
    a("s_waitcnt vmcnt(0)")
    for t in range(2):
        b = 16 + t * 4
        a(f"v_cvt_pk_bf16_f32 v56, v{b}, v{b+1}")
        a(f"v_cvt_pk_bf16_f32 v57, v{b+2}, v{b+3}")
        for q in range(4):
            src = 56 + (q >> 1); gbr = 52 + 2 * t + (q >> 1); xr = 48 + 2 * t + (q >> 1)
            if q & 1:
                a(f"v_and_b32 v58, 0xffff0000, v{src}")
                a(f"v_and_b32 v59, 0xffff0000, v{gbr}")
                a(f"v_and_b32 v60, 0xffff0000, v{xr}")
            else:
                a(f"v_lshlrev_b32 v58, 16, v{src}")
                a(f"v_lshlrev_b32 v59, 16, v{gbr}")
                a(f"v_lshlrev_b32 v60, 16, v{xr}")
            a("v_mul_f32 v58, v58, v59")
            a("v_cvt_pk_bf16_f32 v58, v58, v58")
            a("v_lshlrev_b32 v58, 16, v58")
            a(f"v_add_f32 v{b+q}, v58, v60")
        a(f"v_cvt_pk_bf16_f32 v{62+2*t}, v{b}, v{b+1}")
        a(f"v_cvt_pk_bf16_f32 v{63+2*t}, v{b+2}, v{b+3}")
        a(f"buffer_store_dwordx2 v[{62+2*t}:{63+2*t}], v4, s[32:35], 0 offen offset:{32*t}")
    a.label("K5_END")
    a("s_endpgm")

def main(out):
    a = Asm()
    hdr = open("adaLN_cond__ssm_conv_h3__glu_gated_reglu__prompt.s.ref").read().split("; Override launch geometry")[0]
    launches = [
        ("k1_kernel", 252, 512, K1_LDS),
        ("k2_kernel", 128, 576, K2_LDS),
        ("k3_kernel", 256, 512, G_LDS),
        ("k4_kernel", 256, 512, G_LDS),
        ("k5_kernel", 576, 256, 0),
    ]
    txt = hdr
    for (n, g, b, l) in launches:
        txt += f"; @launch kernel={n} grid=({g},1,1) block=({b},1,1) lds={l}\n"
    txt += '.amdgcn_target "amdgcn-amd-amdhsa--gfx950"\n.text\n'
    global SV
    SV = 120
    gen_k1(a)
    SV = 128
    gen_k2(a)
    SV = 240
    gen_gemm(a, 1)
    gen_gemm(a, 2)
    gen_k5(a)
    a.label("CODE_END")
    a("s_endpgm")
    txt += a.text()
    txt += '.section .rodata,"a"\n'
    txt += kernel_desc("k1_kernel", 128)
    txt += kernel_desc("k2_kernel", 136 if STAMP else 128)
    txt += kernel_desc("k3_kernel", 248 if STAMP else 224)
    txt += kernel_desc("k4_kernel", 248 if STAMP else 144)
    txt += kernel_desc("k5_kernel", 72)
    open(out, "w").write(txt)

if __name__ == "__main__":
    for arg in sys.argv[2:]:
        if arg == "stamp": STAMP = True
        elif "=" in arg:
            k_, v_ = arg.split("="); globals()[k_] = eval(v_)
    main(sys.argv[1] if len(sys.argv) > 1 else "k.s")
```

```python
import sys

S = 2048; D = 576; F = 4608
WS_BASE = int(__import__("os").environ.get("WS_BASE", "0"), 0)
WS_MOD  = WS_BASE + 0x0
WS_Y2T  = WS_BASE + 0x10000
WS_H2F  = WS_BASE + 0x250000
WS_X1   = WS_BASE + 0x490000
WS_HID  = WS_BASE + 0x700000
WS_PART = WS_BASE + 0x1900000
NB_ACT = S * D * 2
WS_END = WS_PART + 4 * S * D * 4
PF_CODE = True
PF_TLB = False

class Asm:
    def __init__(self):
        self.lines = []
    def __call__(self, s):
        for l in s.split("\n"):
            l = l.strip()
            if l:
                self.lines.append("    " + l if not l.endswith(":") else l)
    def label(self, l):
        self.lines.append(l + ":")
    def text(self):
        return "\n".join(self.lines) + "\n"

def srd(a, d, base, nbytes, off=0):
    if off:
        a(f"s_add_u32 s{d}, s{base}, {off}")
        a(f"s_addc_u32 s{d+1}, s{base+1}, 0")
    else:
        a(f"s_mov_b32 s{d}, s{base}")
        a(f"s_mov_b32 s{d+1}, s{base+1}")
    a(f"s_mov_b32 s{d+2}, {nbytes}")
    a(f"s_mov_b32 s{d+3}, 0x00020000")

STAMP = False
SV = 120
def stamp(a, idx):
    if not STAMP: return
    if idx == 0:
        a("s_memrealtime s[100:101]")
        a("s_waitcnt lgkmcnt(0)")
        a(f"v_mov_b32 v{SV+7}, s100")
    a("s_memtime s[100:101]")
    a("s_waitcnt lgkmcnt(0)")
    a(f"v_mov_b32 v{SV+idx}, s100")
def stamp_flush(a, n, wg):
    if not STAMP: return
    lbl = f"STAMP_SKIP_{len(a.lines)}"
    a(f"s_cmp_lg_u32 s2, {wg}")
    a(f"s_cbranch_scc1 {lbl}")
    a("s_memrealtime s[100:101]")
    a("s_load_dwordx2 s[72:73], s[0:1], 104")
    a("s_waitcnt lgkmcnt(0)")
    a("s_mov_b32 s74, 256")
    a("s_mov_b32 s75, 0x00020000")
    a("v_lshrrev_b32 v1, 6, v0")
    a("v_lshlrev_b32 v1, 5, v1")
    for i in range(n):
        a(f"v_sub_u32 v2, v{SV+i}, v{SV}")
        a(f"buffer_store_dword v2, v1, s[72:75], 0 offen offset:{4*i}")
    a(f"v_sub_u32 v2, s100, v{SV+7}")
    a(f"buffer_store_dword v2, v1, s[72:75], 0 offen offset:28")
    a("s_waitcnt vmcnt(0)")
    a.label(lbl)

def kernel_header(a, name):
    a.lines.append(f".globl {name}")
    a.lines.append(".p2align 8")
    a.lines.append(f".type {name},@function")
    a.label(name)

def kernel_desc(name, vgpr, sgpr=102, accum=None):
    if accum is None:
        accum = (vgpr + 3) // 4 * 4
    return f""".p2align 6
.amdhsa_kernel {name}
  .amdhsa_next_free_vgpr {vgpr}
  .amdhsa_next_free_sgpr {sgpr}
  .amdhsa_accum_offset {accum}
  .amdhsa_group_segment_fixed_size 0
  .amdhsa_kernarg_size 120
  .amdhsa_user_sgpr_count 2
  .amdhsa_user_sgpr_kernarg_segment_ptr 1
  .amdhsa_system_sgpr_workgroup_id_x 1
.end_amdhsa_kernel
"""

K1_CH = 24832
K1_CP = 4160
K1_U = 16640
K1_LDS = 4 * K1_CH + 4 * 1088

def gen_k1(a):
    kernel_header(a, "k1_kernel")
    a("s_cmp_ge_u32 s2, 252")
    a("s_cbranch_scc1 K1_END")
    a("s_cmp_ge_u32 s2, 144")
    a("s_cbranch_scc1 K1_MOD")
    stamp(a, 0)
    a("s_load_dwordx4 s[4:7], s[0:1], 8")
    a("s_load_dwordx4 s[8:11], s[0:1], 24")
    a("s_load_dwordx2 s[12:13], s[0:1], 40")
    a("s_load_dwordx2 s[14:15], s[0:1], 112")
    a("s_and_b32 s3, s2, 7")
    a("s_mul_i32 s3, s3, 18")
    a("s_lshr_b32 s16, s2, 3")
    a("s_add_u32 s3, s3, s16")
    a("v_lshrrev_b32 v1, 6, v0")
    a("v_and_b32 v2, 63, v0")
    a("s_nop 0")
    a("v_readfirstlane_b32 s17, v1")
    a("s_waitcnt lgkmcnt(0)")
    stamp(a, 1)
    srd(a, 20, 4, NB_ACT)
    srd(a, 24, 6, NB_ACT)
    srd(a, 28, 10, NB_ACT)
    srd(a, 32, 14, NB_ACT, WS_Y2T)
    a("s_cmp_ge_u32 s17, 4")
    a("s_cbranch_scc1 K1_LOADER")
    a("s_lshl_b32 s16, s3, 3")
    a("s_add_u32 s12, s12, s16")
    a("s_addc_u32 s13, s13, 0")
    a("s_load_dwordx2 s[44:45], s[12:13], 0")
    a("s_lshl_b32 s46, s3, 2")
    a("s_add_u32 s46, s46, s17")
    a("s_lshl_b32 s46, s46, 12")
    a(f"s_mul_i32 s47, s17, {K1_CH}")
    a("v_lshlrev_b32 v11, 4, v2")
    a("v_add_u32 v5, s46, v11")
    a("s_add_u32 m0, s47, 64")
    a("s_nop 0")
    for i in range(4):
        a(f"buffer_load_dwordx4 v5, s[28:31], 0 offen offset:{i*1024} lds")
    stamp(a, 2)
    for r in range(4):
        a(f"v_mov_b32 v{56+r}, 0")
    a("v_add_u32 v11, s47, v11")
    for i in range(3):
        a(f"ds_write_b128 v11, v[56:59] offset:{K1_U + 5120 + i*1024}")
    a("v_lshrrev_b32 v54, 2, v2")
    a(f"v_mul_u32_u24 v54, {K1_CP}, v54")
    a("v_and_b32 v55, 3, v2")
    a("v_lshlrev_b32 v55, 4, v55")
    a("v_add3_u32 v54, v54, v55, s47")
    a("s_mov_b64 exec, 0xffff")
    a("ds_write_b128 v54, v[56:59]")
    a("s_mov_b64 exec, -1")
    a("v_and_b32 v3, 15, v2")
    a("v_lshrrev_b32 v4, 4, v2")
    a("v_add_u32 v5, 1, v3")
    a("v_and_b32 v5, 3, v5")
    a("v_lshlrev_b32 v6, 3, v4")
    a("v_sub_u32 v6, v3, v6")
    a("v_sub_u32 v6, v6, v5")
    a("v_add_u32 v6, 25, v6")
    a("v_lshlrev_b32 v6, 1, v6")
    a(f"v_mul_u32_u24 v7, {K1_CP}, v5")
    a("v_add3_u32 v6, v6, v7, s47")
    a("v_sub_u32 v7, 15, v3")
    a("v_mul_u32_u24 v7, 160, v7")
    a("v_lshlrev_b32 v8, 4, v4")
    a("v_sub_u32 v7, v7, v8")
    a(f"v_add_u32 v7, {K1_U + 48}, v7")
    a("v_add_u32 v7, s47, v7")
    a("v_sub_u32 v8, 15, v3")
    a("v_mul_u32_u24 v8, 160, v8")
    a("v_lshlrev_b32 v9, 3, v4")
    a("v_sub_u32 v8, v8, v9")
    a(f"v_add_u32 v8, {K1_U + 24}, v8")
    a("v_add_u32 v8, s47, v8")
    a("s_mov_b32 s66, 73728")
    a("v_mul_lo_u32 v9, v3, s66")
    a("v_lshlrev_b32 v10, 3, v4")
    a("s_lshr_b32 s66, s46, 7")
    a("v_add3_u32 v9, v9, v10, s66")
    ACC = 16
    for r in range(32):
        a(f"v_mov_b32 v{ACC+r}, 0")
    a("s_waitcnt lgkmcnt(0)")
    a("s_cmp_lt_u32 s17, 2")
    a("s_cselect_b32 s64, s44, s45")
    a("s_and_b32 s65, s17, 1")
    a("s_cmp_eq_u32 s65, 0")
    a("s_cselect_b32 s65, 16, 0")
    a("s_lshl_b32 s64, s64, s65")
    a("s_and_b32 s64, s64, 0xffff0000")
    a("s_waitcnt vmcnt(0)")
    bases = [-1, 63, 127, 191, 192]
    for i, ub in enumerate(bases):
        r = 48 + 8 * i
        a(f"ds_read_b128 v[{r}:{r+3}], v11 offset:{64 + ub*16}")
        a(f"ds_read_b64 v[{r+4}:{r+5}], v11 offset:{64 + ub*16 + 16}")
    for i, ub in enumerate(bases):
        r = 48 + 8 * i
        a(f"s_waitcnt lgkmcnt({min(15, 2*(4-i) + 3*i)})")
        t = 96 + 12 * (i & 1)
        for q in range(4):
            a(f"v_alignbit_b32 v{t+q}, v{r+q+1}, v{r+q}, 16")
            a(f"v_mov_b32 v{t+4+q}, v{r+q+1}")
            a(f"v_alignbit_b32 v{t+8+q}, v{r+q+2}, v{r+q+1}, 16")
        for j in range(1, 4):
            a(f"ds_write_b128 v11, v[{t+4*(j-1)}:{t+4*(j-1)+3}] offset:{j*K1_CP + 64 + ub*16}")
    a("s_waitcnt lgkmcnt(0)")
    stamp(a, 3)
    AR = 48
    BR = 96
    lg = Track(a, "lgkmcnt", 15)
    phases = []
    for q in range(8):
        st = []
        if q < 4:
            st += [(0, d) for d in range(12 - 4*q, 16 - 4*q)]
        st += [(1, d) for d in range(28 - 4*q, 32 - 4*q)]
        phases.append(st)
    slot_of = {}
    state = {"next": 0, "cnt": 0}
    def a_loads(p, key):
        sl = state["next"] % 12; state["next"] += 1
        slot_of[(key, p)] = sl
        r = AR + sl * 4
        return [(f"ds_read_b64 v[{r}:{r+1}], v6 offset:{32*p}", ("A", key, p)),
                (f"ds_read_b64 v[{r+2}:{r+3}], v6 offset:{32*p+8}", ("A", key, p))]
    def step_loads(steps, i, key, a_only=False, b_only=False):
        nt, dl = steps[i]
        L = []
        if not a_only:
            for ks in range(2):
                r = BR + (i & 1) * 8 + ks * 4
                L.append((f"ds_read_b128 v[{r}:{r+3}], v7 offset:{(16 - 16*nt + dl)*160 + 64 - 64*ks}", ("B", key, i)))
        if not b_only:
            run_start = (i % 4 == 0)
            ps = range(4 * dl - 2, 4 * dl + 4) if run_start else range(4 * dl, 4 * dl + 4)
            for p in ps:
                if p >= 0:
                    L += a_loads(p, (key, i // 4))
        return L
    def emit(L):
        for (t, tag) in L:
            a(t); lg.issue(tag)
    for ph, steps in enumerate(phases):
        emit(step_loads(steps, 0, ph, a_only=True))
        a("s_barrier")
        if ph == 0: stamp(a, 4)
        if ph == 7: stamp(a, 5)
        emit(step_loads(steps, 0, ph, b_only=True))
        for i, (nt, dl) in enumerate(steps):
            nxt = step_loads(steps, i + 1, ph) if i + 1 < len(steps) else []
            mf = []
            for ks in (1, 0):
                for mt in range(4):
                    p = 4 * dl + mt - 2 * ks
                    if p < 0: continue
                    ac = ACC + (nt * 4 + mt) * 4
                    ar = AR + slot_of[((ph, i // 4), p)] * 4
                    br = BR + (i & 1) * 8 + ks * 4
                    mf.append((f"v_mfma_f32_16x16x32_bf16 v[{ac}:{ac+3}], v[{ar}:{ar+3}], v[{br}:{br+3}], v[{ac}:{ac+3}]", p))
            pre = nxt[:2]; rest = nxt[2:]
            emit(pre)
            lg.need(("B", ph, i))
            lg.need(("A", (ph, i // 4), 4 * dl + 3))
            k = 0
            for j, (m, p) in enumerate(mf):
                a(m)
                n_to = (len(rest) * (j + 1) + len(mf) - 1) // len(mf)
                while k < min(n_to, len(rest)):
                    emit([rest[k]]); k += 1
            while k < len(rest):
                emit([rest[k]]); k += 1
    for nt in range(2):
        for mt in range(4):
            r = 48 + (nt * 4 + mt) * 2
            a(f"ds_read_b64 v[{r}:{r+1}], v8 offset:{(16-16*nt)*160 + 96 - 32*mt}")
    a("s_nop 7")
    a("s_waitcnt lgkmcnt(0)")
    for nt in range(2):
        for mt in range(4):
            r = 48 + (nt * 4 + mt) * 2
            ac = ACC + (nt * 4 + mt) * 4
            a(f"v_and_b32 v64, 0xffff0000, v{r+1}")
            a(f"v_lshlrev_b32 v65, 16, v{r+1}")
            a(f"v_and_b32 v66, 0xffff0000, v{r}")
            a(f"v_lshlrev_b32 v67, 16, v{r}")
            for q in range(4):
                a(f"v_fmac_f32 v{ac+q}, s64, v{64+q}")
            a(f"v_cvt_pk_bf16_f32 v{r}, v{ac}, v{ac+1}")
            a(f"v_cvt_pk_bf16_f32 v{r+1}, v{ac+2}, v{ac+3}")
            a(f"s_mov_b32 s66, {(nt*64+mt)*18432}")
            a(f"buffer_store_dwordx2 v[{r}:{r+1}], v9, s[32:35], s66 offen")
    stamp(a, 6)
    stamp_flush(a, 7, 77)
    a("s_endpgm")
    a.label("K1_LOADER")
    NCK = 8
    a("s_sub_u32 s17, s17, 4")
    a("s_lshl_b32 s16, s3, 3")
    a("s_mul_i32 s18, s17, 73728")
    a("s_add_u32 s18, s18, s16")
    a("s_add_u32 s42, s4, s18")
    a("s_addc_u32 s43, s5, 0")
    for i in range(6):
        a(f"s_mov_b32 s{48+i}, 0")
    a("s_cmp_eq_u32 s17, 0")
    a("s_cbranch_scc1 K1_NOHALO")
    a("s_sub_u32 s44, s42, 3456")
    a("s_subb_u32 s45, s43, 0")
    for i in range(3):
        a(f"s_load_dwordx2 s[{48+2*i}:{49+2*i}], s[44:45], {i*1152}")
    a.label("K1_NOHALO")
    srd(a, 36, 8, D * 8)
    a("s_lshl_b32 s18, s17, 6")
    a("v_add_u32 v8, s18, v2")
    a("s_movk_i32 s18, 1152")
    a("v_mul_lo_u32 v8, v8, s18")
    a("v_add_u32 v8, s16, v8")
    vm = Track(a, "vmcnt", 63)
    def issue_chunk(c):
        b = 16 + (c % 3) * 4
        a(f"s_mov_b32 s40, {c*294912}")
        a(f"buffer_load_dwordx2 v[{b}:{b+1}], v8, s[20:23], s40 offen"); vm.issue(f"c{c}")
        a(f"buffer_load_dwordx2 v[{b+2}:{b+3}], v8, s[24:27], s40 offen"); vm.issue(f"c{c}")
    issue_chunk(0)
    a("v_and_b32 v3, 7, v2")
    a("v_bfe_u32 v4, v2, 3, 2")
    a("s_lshl_b32 s18, s3, 5")
    a("v_lshl_add_u32 v5, v4, 3, s18")
    a("buffer_load_dwordx2 v[6:7], v5, s[36:39], 0 offen")
    vm.issue("taps")
    for c in range(1, NCK):
        a(f"s_add_u32 s44, s42, {c*294912 - 3456}")
        a(f"s_addc_u32 s45, s43, 0")
        for i in range(3):
            a(f"s_load_dwordx2 s[{48+6*c+2*i}:{49+6*c+2*i}], s[44:45], {i*1152}")
    a(f"s_mul_i32 s46, s17, 1088")
    a(f"s_add_u32 s46, s46, {4*K1_CH}")
    a("v_lshlrev_b32 v9, 2, v2")
    a("v_add_u32 v9, s46, v9")
    a("v_and_b32 v10, 1, v2")
    a("v_mul_u32_u24 v10, 272, v10")
    a("v_lshrrev_b32 v11, 1, v2")
    a("v_lshl_add_u32 v10, v11, 2, v10")
    a("v_add_u32 v10, 4, v10")
    a("v_add_u32 v10, s46, v10")
    a("v_lshrrev_b32 v11, 1, v4")
    a("v_mul_u32_u24 v12, 272, v11")
    a("v_lshl_add_u32 v12, v3, 5, v12")
    a("v_add_u32 v12, s46, v12")
    a("v_lshlrev_b32 v13, 8, v11")
    a("v_lshl_add_u32 v13, v3, 5, v13")
    a("v_add_u32 v13, s46, v13")
    a("v_and_b32 v14, 1, v4")
    a("v_mul_u32_u24 v14, 0x0202, v14")
    a("v_lshlrev_b32 v14, 16, v14")
    a("v_add_u32 v14, 0x01000c0c, v14")
    a("s_sub_u32 s18, 3, s17")
    a("s_mul_i32 s18, s18, 160")
    a(f"s_add_u32 s18, s18, {K1_U + 112}")
    a(f"s_mov_b32 s19, {K1_CH}")
    a("v_mul_lo_u32 v60, v4, s19")
    a("v_lshlrev_b32 v61, 4, v3")
    a("v_sub_u32 v60, v60, v61")
    a("v_add_u32 v60, s18, v60")
    issue_chunk(1)
    stamp(a, 2)
    vm.need("taps")
    a("v_lshlrev_b32 v56, 16, v6")
    a("v_and_b32 v57, 0xffff0000, v6")
    a("v_lshlrev_b32 v58, 16, v7")
    a("v_and_b32 v59, 0xffff0000, v7")
    a("s_waitcnt lgkmcnt(0)")
    stamp(a, 3)
    for ck in range(NCK):
        b = 16 + (ck % 3) * 4
        for j in range(6):
            a(f"v_writelane_b32 v62, s{48+6*ck+j}, {j}")
        vm.need(f"c{ck}")
        if ck == 0: stamp(a, 4)
        if ck == 1: stamp(a, 6)
        a(f"ds_write2_b32 v9, v{b}, v{b+1} offset0:4 offset1:72")
        a(f"ds_write2_b32 v9, v{b+2}, v{b+3} offset0:136 offset1:200")
        a("s_mov_b64 exec, 0x3f")
        a("ds_write_b32 v10, v62")
        a("s_mov_b64 exec, -1")
        a("s_waitcnt lgkmcnt(0)")
        for i in range(3):
            a(f"ds_read_b128 v[{32+4*i}:{35+4*i}], v12 offset:{16*i}")
        for i in range(2):
            a(f"ds_read_b128 v[{44+4*i}:{47+4*i}], v13 offset:{544+16*i}")
        a("s_waitcnt lgkmcnt(2)")
        for i in range(11):
            a(f"v_perm_b32 v{64+i}, v{33+i}, v{33+i}, v14")
        a("s_waitcnt lgkmcnt(0)")
        for i in range(8):
            a(f"v_perm_b32 v{76+i}, v{44+i}, v{44+i}, v14")
        for i in range(8):
            a(f"v_mul_f32 v{84+i}, v59, v{64+i}")
            a(f"v_fmac_f32 v{84+i}, v58, v{64+i+1}")
            a(f"v_fmac_f32 v{84+i}, v57, v{64+i+2}")
            a(f"v_fmac_f32 v{84+i}, v56, v{64+i+3}")
            a(f"v_mul_f32 v{84+i}, v{84+i}, v{76+i}")
        for q in range(4):
            a(f"v_cvt_pk_bf16_f32 v{92+q}, v{84+7-2*q}, v{84+6-2*q}")
        a(f"ds_write_b128 v60, v[92:95] offset:{(NCK-1-ck)*640}")
        a("s_waitcnt lgkmcnt(0)")
        if ck == 0: stamp(a, 5)
        a("s_barrier")
        if ck + 2 < NCK:
            issue_chunk(ck + 2)
    stamp_flush(a, 7, 77)
    a("s_endpgm")
    a.label("K1_MOD")
    a("s_load_dwordx4 s[4:7], s[0:1], 80")
    a("s_load_dwordx2 s[8:9], s[0:1], 112")
    a("s_load_dwordx4 s[40:43], s[0:1], 56")
    a("s_load_dwordx2 s[44:45], s[0:1], 72")
    a("s_load_dwordx2 s[46:47], s[0:1], 0")
    a("s_load_dwordx4 s[48:51], s[0:1], 8")
    a("s_sub_u32 s3, s2, 144")
    a("v_lshrrev_b32 v1, 6, v0")
    a("s_nop 0")
    a("v_readfirstlane_b32 s17, v1")
    a("s_cmp_ge_u32 s17, 4")
    a("s_cbranch_scc1 K1_PF")
    a("v_and_b32 v1, 3, v0")
    a("v_lshrrev_b32 v2, 2, v0")
    a("v_mul_u32_u24 v3, 18, v2")
    a("s_mov_b32 s16, 62208")
    a("v_mul_lo_u32 v4, v2, s16")
    a("v_lshlrev_b32 v5, 4, v1")
    a("s_lshl_b32 s17, s3, 6")
    a("v_add3_u32 v4, v4, v5, s17")
    a("s_waitcnt lgkmcnt(0)")
    srd(a, 20, 4, D * 2)
    srd(a, 24, 6, D * 6 * D * 2)
    srd(a, 28, 8, 6 * D * 2, WS_MOD)
    for i in range(9):
        a(f"buffer_load_ushort v{10+i}, v3, s[20:23], 0 offen offset:{2*i}")
    for i in range(9):
        a(f"s_mov_b32 s18, {i*6912}")
        a(f"buffer_load_dwordx4 v[{20+4*i}:{23+4*i}], v4, s[24:27], s18 offen")
    for r in range(8):
        a(f"v_mov_b32 v{60+r}, 0")
    a("s_waitcnt vmcnt(9)")
    a("s_mov_b32 s19, 0xbfb8aa3b")
    for i in range(9):
        a(f"v_lshlrev_b32 v{10+i}, 16, v{10+i}")
        a(f"v_mul_f32 v70, s19, v{10+i}")
        a("v_exp_f32 v70, v70")
        a("s_nop 0")
        a("v_add_f32 v70, 1.0, v70")
        a("v_rcp_f32 v70, v70")
        a("s_nop 0")
        a(f"v_mul_f32 v70, v70, v{10+i}")
        a("v_cvt_pk_bf16_f32 v70, v70, v70")
        a(f"v_lshlrev_b32 v{10+i}, 16, v70")
    for i in range(9):
        a(f"s_waitcnt vmcnt({8-i})")
        for q in range(4):
            a(f"v_lshlrev_b32 v70, 16, v{20+4*i+q}")
            a(f"v_and_b32 v71, 0xffff0000, v{20+4*i+q}")
            a(f"v_fmac_f32 v{60+2*q}, v70, v{10+i}")
            a(f"v_fmac_f32 v{61+2*q}, v71, v{10+i}")
    a("v_lshlrev_b32 v5, 5, v0")
    a("ds_write_b128 v5, v[60:63]")
    a("ds_write_b128 v5, v[64:67] offset:16")
    a("s_waitcnt lgkmcnt(0)")
    a("s_barrier")
    a("v_and_b32 v6, 31, v0")
    a("v_lshrrev_b32 v7, 5, v0")
    a("v_lshlrev_b32 v8, 10, v7")
    a("v_lshl_add_u32 v8, v6, 2, v8")
    for i in range(8):
        a(f"ds_read_b32 v{10+i}, v8 offset:{i*128}")
    a("s_waitcnt lgkmcnt(0)")
    for i in range(1, 8):
        a(f"v_add_f32 v10, v10, v{10+i}")
    a("v_lshlrev_b32 v9, 2, v0")
    a("ds_write_b32 v9, v10 offset:8192")
    a("s_waitcnt lgkmcnt(0)")
    a("s_barrier")
    a("v_lshlrev_b32 v8, 2, v6")
    for i in range(8):
        a(f"ds_read_b32 v{10+i}, v8 offset:{8192 + i*128}")
    a("s_waitcnt lgkmcnt(0)")
    for i in range(1, 8):
        a(f"v_add_f32 v10, v10, v{10+i}")
    a("v_cvt_pk_bf16_f32 v10, v10, v10")
    a("v_lshlrev_b32 v9, 1, v6")
    a("v_add_u32 v9, s17, v9")
    a("v_cmp_gt_u32 vcc, 32, v0")
    a("s_and_saveexec_b64 s[32:33], vcc")
    a("s_cbranch_execz K1_END")
    a("buffer_store_short v10, v9, s[28:31], 0 offen")
    a("s_endpgm")
    a.label("K1_PF")
    a("v_subrev_u32 v1, 256, v0")
    a("s_lshl_b32 s16, s3, 8")
    a("v_add_u32 v1, s16, v1")
    a("v_lshlrev_b32 v1, 4, v1")
    a("s_waitcnt lgkmcnt(0)")
    srd(a, 20, 46, NB_ACT)
    srd(a, 24, 40, D * F * 2)
    srd(a, 28, 42, D * F * 2)
    srd(a, 32, 44, D * F * 2)
    srd(a, 52, 48, NB_ACT)
    srd(a, 56, 50, NB_ACT)
    a("v_subrev_u32 v2, 256, v0")
    a("s_lshr_b32 s16, s3, 3")
    a("s_lshl_b32 s16, s16, 8")
    a("v_add_u32 v2, s16, v2")
    a("v_lshrrev_b32 v3, 1, v2")
    a("s_movk_i32 s16, 1152")
    a("v_mul_lo_u32 v3, v3, s16")
    a("v_and_b32 v2, 1, v2")
    a("v_mul_u32_u24 v2, 140, v2")
    a("s_and_b32 s16, s3, 7")
    a("s_mul_i32 s16, s16, 144")
    a("v_add3_u32 v3, v3, v2, s16")
    a(f"s_mov_b32 s18, {1664*1152}")
    a("buffer_load_dword v70, v3, s[52:55], 0 offen")
    a("buffer_load_dword v71, v3, s[56:59], 0 offen")
    a("buffer_load_dword v72, v3, s[52:55], s18 offen")
    a("buffer_load_dword v73, v3, s[56:59], s18 offen")
    if PF_CODE:
        a("s_getpc_b64 s[60:61]")
        a.label("K1_PC")
        a("s_sub_u32 s60, s60, K1_PC-k1_kernel")
        a("s_subb_u32 s61, s61, 0")
        a("s_mov_b32 s62, CODE_END-k1_kernel")
        a("s_mov_b32 s63, 0x00020000")
        a("v_subrev_u32 v2, 256, v0")
        a("s_lshr_b32 s16, s3, 3")
        a("s_lshl_b32 s16, s16, 8")
        a("v_add_u32 v2, s16, v2")
        a("v_lshlrev_b32 v3, 4, v2")
        a("buffer_load_dwordx4 v[76:79], v3, s[60:63], 0 offen")
        a("s_mov_b32 s18, 53248")
        a("buffer_load_dwordx4 v[80:83], v3, s[60:63], s18 offen")
    if PF_TLB:
        srd(a, 64, 8, WS_END)
        a("v_lshlrev_b32 v3, 15, v2")
        a("buffer_load_dword v84, v3, s[64:67], 0 offen")
    PASS = 108 * 256 * 16
    n = 0
    for (sr, nb) in ((20, NB_ACT), (24, D*F*2), (28, D*F*2), (32, D*F*2)):
        for i in range((nb + PASS - 1) // PASS):
            a(f"s_mov_b32 s18, {i*PASS}")
            r = 4 + 4 * (n % 16); n += 1
            a(f"buffer_load_dwordx4 v[{r}:{r+3}], v1, s[{sr}:{sr+3}], s18 offen")
    a("s_waitcnt vmcnt(0)")
    a.label("K1_END")
    a("s_endpgm")

class Track:
    def __init__(self, a, name, maxn):
        self.a = a; self.name = name; self.maxn = maxn
        self.q = []
    def issue(self, tag):
        self.q.append(tag)
    def need(self, tag):
        idx = [i for i, t in enumerate(self.q) if t == tag]
        if not idx: return
        n = len(self.q) - 1 - idx[-1]
        n = min(n, self.maxn)
        self.a(f"s_waitcnt {self.name}({n})")
        self.q = self.q[len(self.q) - n:] if n else []
    def drain(self):
        self.a(f"s_waitcnt {self.name}(0)")
        self.q = []

def bf16_round(a, v, tmp=None):
    a(f"v_cvt_pk_bf16_f32 v{v}, v{v}, v{v}")
    a(f"v_lshlrev_b32 v{v}, 16, v{v}")

K2_LDS = 18432 + 4096
def gen_k2(a):
    kernel_header(a, "k2_kernel")
    a("s_cmp_ge_u32 s2, 128")
    a("s_cbranch_scc1 K2_END")
    a("s_load_dwordx2 s[4:5], s[0:1], 0")
    a("s_load_dwordx2 s[6:7], s[0:1], 112")
    a("v_lshrrev_b32 v1, 6, v0")
    a("v_and_b32 v2, 63, v0")
    a("s_nop 0")
    a("v_readfirstlane_b32 s17, v1")
    a("v_and_b32 v3, 15, v2")
    a("v_lshrrev_b32 v4, 4, v2")
    a("s_waitcnt lgkmcnt(0)")
    srd(a, 20, 4, NB_ACT)
    srd(a, 24, 6, NB_ACT, WS_Y2T)
    srd(a, 28, 6, 6 * D * 2, WS_MOD)
    srd(a, 32, 6, NB_ACT, WS_X1)
    srd(a, 36, 6, NB_ACT, WS_H2F)
    a("v_lshrrev_b32 v5, 1, v2")
    a("v_lshrrev_b32 v6, 4, v5")
    a("v_bfe_u32 v7, v5, 2, 2")
    a("v_and_b32 v8, 3, v5")
    a("v_lshlrev_b32 v7, 3, v7")
    a("v_lshl_add_u32 v7, v6, 2, v7")
    a("v_add_u32 v7, v7, v8")
    a("v_lshlrev_b32 v7, 5, v7")
    a("v_and_b32 v8, 1, v2")
    a("v_lshl_add_u32 v7, v8, 4, v7")
    a("s_mul_i32 s18, s2, 18432")
    a("s_lshl_b32 s19, s17, 11")
    a("s_add_u32 s18, s18, s19")
    a("s_mov_b32 m0, s19")
    a("s_nop 0")
    a("buffer_load_dwordx4 v7, s[24:27], s18 offen lds")
    a("buffer_load_dwordx4 v7, s[24:27], s18 offen offset:1024 lds")
    a("s_lshl_b32 s18, s2, 4")
    a("v_add_u32 v8, s18, v3")
    a("s_movk_i32 s18, 1152")
    a("v_mul_lo_u32 v8, v8, s18")
    a("v_lshlrev_b32 v9, 4, v4")
    a("s_lshl_b32 s18, s17, 7")
    a("v_add_u32 v9, s18, v9")
    a("v_add_u32 v8, v8, v9")
    a("buffer_load_dwordx4 v[12:15], v8, s[20:23], 0 offen")
    a("buffer_load_dwordx4 v[16:19], v8, s[20:23], 0 offen offset:64")
    for p in range(5):
        for kk in range(2):
            r = 20 + 8 * p + 4 * kk
            if p * 1152 + 64 * kk < 4096:
                a(f"buffer_load_dwordx4 v[{r}:{r+3}], v9, s[28:31], 0 offen offset:{p*1152 + 64*kk}")
            else:
                a("s_movk_i32 s18, 4608")
                a(f"buffer_load_dwordx4 v[{r}:{r+3}], v9, s[28:31], s18 offen offset:{64*kk}")
    a("v_lshlrev_b32 v10, 3, v2")
    a("v_add_u32 v10, s19, v10")
    a("v_lshlrev_b32 v11, 3, v3")
    a("v_add_u32 v11, 18432, v11")
    a("s_lshl_b32 s18, s17, 7")
    a("v_add_u32 v60, s18, v11")
    a("s_waitcnt vmcnt(10)")
    a("ds_read_b64_tr_b16 v[96:97], v10")
    a("ds_read_b64_tr_b16 v[98:99], v10 offset:512")
    a("ds_read_b64_tr_b16 v[100:101], v10 offset:1024")
    a("ds_read_b64_tr_b16 v[102:103], v10 offset:1536")
    for i in range(8):
        a(f"v_lshlrev_b32 v{64+2*i}, 16, v{12+i}")
        a(f"v_and_b32 v{65+2*i}, 0xffff0000, v{12+i}")
    def stats(src, rnd):
        a(f"v_add_f32 v62, v{src}, v{src+1}")
        a(f"v_mul_f32 v63, v{src}, v{src}")
        a(f"v_fmac_f32 v63, v{src+1}, v{src+1}")
        for i in range(2, 16):
            a(f"v_add_f32 v62, v62, v{src+i}")
            a(f"v_fmac_f32 v63, v{src+i}, v{src+i}")
        for sw in ("v_permlane16_swap_b32", "v_permlane32_swap_b32"):
            a("v_mov_b32 v104, v62")
            a("v_mov_b32 v105, v63")
            a("s_nop 1")
            a(f"{sw} v62, v104")
            a(f"{sw} v63, v105")
            a("s_nop 1")
            a("v_add_f32 v62, v62, v104")
            a("v_add_f32 v63, v63, v105")
        a(f"ds_write_b64 v60, v[62:63] offset:{rnd*2048}")
        a("s_waitcnt lgkmcnt(0)")
        a("s_barrier")
        for w in range(9):
            a(f"ds_read_b64 v[{106+2*w}:{107+2*w}], v11 offset:{rnd*2048 + w*128}")
        a("s_waitcnt lgkmcnt(0)")
        for w in range(1, 9):
            a(f"v_add_f32 v106, v106, v{106+2*w}")
            a(f"v_add_f32 v107, v107, v{107+2*w}")
        a("s_mov_b32 s18, 0x3ae38e39")
        a("v_mul_f32 v62, s18, v106")
        a("v_mul_f32 v63, s18, v107")
        a("v_fma_f32 v63, -v62, v62, v63")
        a("v_max_f32 v63, 0, v63")
        bf16_round(a, 62)
        bf16_round(a, 63)
        a("v_add_f32 v63, 0x3727c5ac, v63")
        bf16_round(a, 63)
        a("v_sqrt_f32 v63, v63")
        a("s_nop 0")
        bf16_round(a, 63)
        a("v_rcp_f32 v63, v63")
        a("s_nop 0")
    stats(64, 0)
    a("s_waitcnt vmcnt(0)")
    def punpack(dst, p, e):
        r = 20 + 8 * p + 4 * (e >> 3) + ((e & 7) >> 1)
        if e & 1: a(f"v_and_b32 v{dst}, 0xffff0000, v{r}")
        else: a(f"v_lshlrev_b32 v{dst}, 16, v{r}")
    for e in range(16):
        x = 64 + e
        yr = 96 + (e >> 1)
        punpack(104, 1, e)
        punpack(105, 0, e)
        punpack(106, 2, e)
        if e & 1: a(f"v_and_b32 v107, 0xffff0000, v{yr}")
        else: a(f"v_lshlrev_b32 v107, 16, v{yr}")
        a("v_add_f32 v104, 1.0, v104")
        a(f"v_sub_f32 v108, v{x}, v62")
        a("v_mul_f32 v108, v108, v63")
        a("v_fma_f32 v108, v108, v104, v105")
        a("v_mul_f32 v108, v108, v107")
        a(f"v_fma_f32 v{80+e}, v108, v106, v{x}")
    for i in range(8):
        a(f"v_cvt_pk_bf16_f32 v{12+i}, v{80+2*i}, v{81+2*i}")
    for i in range(8):
        a(f"v_lshlrev_b32 v{80+2*i}, 16, v{12+i}")
        a(f"v_and_b32 v{81+2*i}, 0xffff0000, v{12+i}")
    a("buffer_store_dwordx4 v[12:15], v8, s[32:35], 0 offen")
    a("buffer_store_dwordx4 v[16:19], v8, s[32:35], 0 offen offset:64")
    stats(80, 1)
    for e in range(16):
        punpack(104, 4, e)
        punpack(105, 3, e)
        a("v_add_f32 v104, 1.0, v104")
        a(f"v_sub_f32 v108, v{80+e}, v62")
        a("v_mul_f32 v108, v108, v63")
        a(f"v_fma_f32 v{64+e}, v108, v104, v105")
    for i in range(8):
        a(f"v_cvt_pk_bf16_f32 v{96+i}, v{64+2*i}, v{65+2*i}")
    a("s_mul_i32 s18, s2, 18432")
    a("s_add_u32 s18, s18, s19")
    a("v_lshlrev_b32 v9, 4, v2")
    a("buffer_store_dwordx4 v[96:99], v9, s[36:39], s18 offen")
    a("buffer_store_dwordx4 v[100:103], v9, s[36:39], s18 offen offset:1024")
    a.label("K2_END")
    a("s_endpgm")

ST_BYTES = 34816
G_LDS = 4 * ST_BYTES
NST = 18
def gen_gemm(a, mode):
    nm = "k3" if mode == 1 else "k4"
    kernel_header(a, nm + "_kernel")
    a("s_cmp_ge_u32 s2, 256")
    a(f"s_cbranch_scc1 {nm.upper()}_END")
    stamp(a, 0)
    if mode == 1:
        a("s_load_dwordx4 s[4:7], s[0:1], 56")
    else:
        a("s_load_dwordx2 s[4:5], s[0:1], 72")
    a("s_load_dwordx2 s[8:9], s[0:1], 112")
    a("v_lshrrev_b32 v1, 6, v0")
    a("v_and_b32 v2, 63, v0")
    a("s_nop 0")
    a("v_readfirstlane_b32 s17, v1")
    a("s_and_b32 s10, s2, 7")
    a("s_lshr_b32 s11, s2, 3")
    a("s_and_b32 s12, s10, 1")
    a("s_lshr_b32 s13, s10, 1")
    if mode == 1:
        a("s_lshl_b32 s12, s12, 2")
        a("s_and_b32 s14, s11, 3")
        a("s_add_u32 s12, s12, s14")
        a("s_lshl_b32 s13, s13, 3")
        a("s_lshr_b32 s14, s11, 2")
        a("s_add_u32 s13, s13, s14")
    else:
        a("s_lshl_b32 s12, s12, 3")
        a("s_and_b32 s14, s11, 7")
        a("s_add_u32 s12, s12, s14")
        a("s_lshr_b32 s14, s11, 3")
    a("s_and_b32 s15, s17, 3")
    a("s_waitcnt lgkmcnt(0)")
    if mode == 1:
        srd(a, 20, 4, D * F * 2)
        srd(a, 24, 6, D * F * 2)
        srd(a, 28, 8, NB_ACT, WS_H2F)
        srd(a, 32, 8, S * F * 2, WS_HID)
        a("s_cmp_lt_u32 s15, 2")
        a("s_cselect_b32 s36, s4, s6")
        a("s_cselect_b32 s37, s5, s7")
        a(f"s_mov_b32 s38, {D*F*2}")
        a("s_mov_b32 s39, 0x00020000")
        pitch = 9216
    else:
        srd(a, 20, 4, D * F * 2)
        srd(a, 28, 8, S * F * 2, WS_HID)
        srd(a, 32, 8, 4 * S * D * 4, WS_PART)
        pitch = 1152
    a("v_lshlrev_b32 v3, 4, v2")
    if mode == 1:
        a("s_lshl_b32 s18, s15, 12")
    else:
        a("s_and_b32 s18, s15, 1")
        a("s_lshl_b32 s18, s18, 13")
        a("s_lshr_b32 s19, s15, 1")
        a("s_lshl_b32 s19, s19, 12")
        a("s_add_u32 s18, s18, s19")
    a("v_add_u32 v4, s18, v3")
    a("v_lshrrev_b32 v5, 2, v2")
    a("v_mul_u32_u24 v5, 288, v5")
    a("v_and_b32 v6, 3, v2")
    a("v_lshl_add_u32 v5, v6, 3, v5")
    a("v_add_u32 v5, 16384, v5")
    if mode == 1:
        a("s_and_b32 s16, s13, 1")
        a("s_lshl_b32 s18, s16, 5")
        a("v_add_u32 v6, s18, v5")
        a("s_cmp_eq_u32 s16, 0")
        a("s_cselect_b32 s18, 256, 0")
        a("v_add_u32 v7, s18, v5")
    else:
        a("s_and_b32 s18, s15, 1")
        a("s_mul_i32 s18, s18, 9216")
        a("v_add_u32 v6, s18, v5")
    a("s_cmp_ge_u32 s17, 4")
    a(f"s_cbranch_scc1 {nm.upper()}_TG1")
    for tg in range(2):
        if tg == 1:
            a.label(f"{nm.upper()}_TG1")
        gemm_body(a, mode, tg, pitch)
    a.label(f"{nm.upper()}_END")
    a("s_endpgm")

def gemm_body(a, mode, tg, pitch):
    nt = 5 if tg == 0 else 4
    vm = Track(a, "vmcnt", 63)
    lg = Track(a, "lgkmcnt", 15)
    if tg == 0:
        a("v_mov_b32 v8, v3")
        for i in range(4):
            if mode == 1:
                a("s_lshl_b32 s18, s12, 4")
                a("s_lshl_b32 s19, s15, 2")
                a("s_add_u32 s18, s18, s19")
                a(f"s_add_u32 s18, s18, {i}")
                a(f"s_mul_i32 s{40+i}, s18, 18432")
            else:
                a("s_and_b32 s18, s15, 1")
                a("s_lshl_b32 s18, s18, 2")
                a("s_lshl_b32 s19, s12, 3")
                a("s_add_u32 s18, s18, s19")
                a(f"s_add_u32 s18, s18, {i}")
                a("s_mul_i32 s18, s18, 144")
                a("s_mul_i32 s19, s13, 36")
                a("s_add_u32 s18, s18, s19")
                a("s_lshr_b32 s19, s15, 1")
                a("s_add_u32 s18, s18, s19")
                a(f"s_lshl_b32 s{40+i}, s18, 10")
        a("s_lshl_b32 s44, s15, 12")
        astep = 1024 if mode == 1 else 2048
        def dma(st):
            base = (st & 3) * ST_BYTES
            for i in range(4):
                a(f"s_add_u32 m0, s44, {base + i*1024}")
                a("s_nop 0")
                a(f"buffer_load_dwordx4 v8, s[28:31], s{40+i} offen lds")
                vm.issue(("d", st))
            a(f"v_add_u32 v8, {astep}, v8")
    else:
        def qaddr(dst):
            a(f"v_mul_u32_u24 v12, 3641, v{dst}")
            a("v_lshrrev_b32 v12, 16, v12")
            a("v_mul_u32_u24 v13, 18, v12")
            a(f"v_sub_u32 v13, v{dst}, v13")
            if mode == 1:
                a("v_lshrrev_b32 v14, 4, v12")
                a("v_bfe_u32 v15, v12, 2, 2")
                a("v_and_b32 v12, 3, v12")
                a("v_lshl_add_u32 v12, v15, 3, v12")
                a("v_lshl_add_u32 v12, v14, 2, v12")
            a(f"v_mul_u32_u24 v12, {pitch}, v12")
            a(f"v_lshl_add_u32 v{dst}, v13, 4, v12")
        a("s_lshl_b32 s18, s15, 7")
        a("v_add_u32 v8, s18, v2")
        a("v_add_u32 v9, 64, v8")
        a("s_and_b32 s18, s15, 1")
        a("s_lshl_b32 s18, s18, 5")
        a("s_add_u32 s18, s18, 512")
        a("v_add_u32 v10, s18, v2")
        qaddr(8); qaddr(9); qaddr(10)
        if mode == 1:
            a("s_mul_i32 s40, s13, 288")
        else:
            a(f"s_mul_i32 s40, s13, {1152*1152}")
            a("s_mul_i32 s18, s14, 288")
            a("s_add_u32 s40, s40, s18")
        a("s_lshl_b32 s44, s15, 11")
        a("s_lshr_b32 s45, s15, 1")
        a("s_mul_i32 s45, s45, 9216")
        a("s_and_b32 s18, s15, 1")
        a("s_lshl_b32 s18, s18, 9")
        a("s_add_u32 s45, s45, s18")
        if mode == 2:
            a("s_lshr_b32 s46, s15, 1")
            a(f"s_mul_i32 s46, s46, {32*pitch}")
        wstep = 32 * pitch if mode == 1 else 64 * pitch
        def dma(st):
            base = (st & 3) * ST_BYTES + 16384
            if mode == 2:
                a(f"s_add_u32 s41, s40, {32*pitch}")
                a("s_add_u32 s42, s40, s46")
            for blk in range(2):
                for j in range(2):
                    a(f"s_add_u32 m0, s44, {base + blk*9216 + j*1024}")
                    a("s_nop 0")
                    if mode == 1:
                        a(f"buffer_load_dwordx4 v{8+j}, s[{20+4*blk}:{23+4*blk}], s40 offen lds")
                    else:
                        a(f"buffer_load_dwordx4 v{8+j}, s[20:23], s{40+blk} offen lds")
                    vm.issue(("d", st))
            a(f"s_add_u32 m0, s45, {base + 8192}")
            a("s_mov_b64 exec, 0xffffffff")
            if mode == 1:
                a("buffer_load_dwordx4 v10, s[36:39], s40 offen lds")
            else:
                a("buffer_load_dwordx4 v10, s[20:23], s42 offen lds")
            vm.issue(("d", st))
            a("s_mov_b64 exec, -1")
            a(f"s_add_u32 s40, s40, {wstep}")
    AF = 16
    WR = 48
    ACC = 64
    nblk = 2 if mode == 1 else 1
    units = [(t, b) for t in range(nt) for b in range(nblk)]
    U = len(units)
    def acc(t, b, i): return ACC + ((t * nblk + b) * 4 + i) * 4
    nacc = U * 16
    for r in range(nacc):
        a(f"v_mov_b32 v{ACC+r}, 0")
    def w_addr(t, b):
        if mode == 1:
            if tg == 0:
                if t == 0: return 7, b * 9216
                return 6, b * 9216 + (t - 1) * 32
            return 6, b * 9216 + (4 + t) * 32
        else:
            return 6, (t if tg == 0 else 5 + t) * 32
    def read_w(gu):
        st, u = divmod(gu, U)
        if st >= NST: return
        t, b = units[u]
        vr, off = w_addr(t, b)
        off += (st & 3) * ST_BYTES
        r = WR + (gu & 3) * 4
        if off + 4608 >= 65536:
            vr2 = {6: 12, 7: 13}[vr]; off -= 65536 - 0
            vr = vr2
        a(f"ds_read_b64_tr_b16 v[{r}:{r+1}], v{vr} offset:{off}")
        lg.issue(("w", gu))
        a(f"ds_read_b64_tr_b16 v[{r+2}:{r+3}], v{vr} offset:{off+4608}")
        lg.issue(("w", gu))
    def read_a(st, i):
        if st >= NST: return
        off = (st & 3) * ST_BYTES + i * 1024
        vr = 4
        if off >= 65536 - 16384:
            vr = 14; off -= 65536
        r = AF + (st & 1) * 16 + i * 4
        a(f"ds_read_b128 v[{r}:{r+3}], v{vr} offset:{off}")
        lg.issue(("a", st, i))
    a("v_add_u32 v12, 0x10000, v6")
    if mode == 1 and tg == 0:
        a("v_add_u32 v13, 0x10000, v7")
    a("v_add_u32 v14, 0x10000, v4")
    dma(0); dma(1); dma(2)
    PD = 3
    first = True
    for st in range(NST):
        vm.need(("d", min(st + 1, NST - 1)))
        a("s_barrier")
        if st in (0, 3, 9, 15):
            stamp(a, {0:1, 3:2, 9:3, 15:4}[st])
        if st + 3 < NST:
            dma(st + 3)
        if st == 0:
            for i in range(4): read_a(0, i)
            for gu in range(PD): read_w(gu)
        for u in range(U):
            gu = st * U + u
            read_w(gu + PD)
            if u >= U - 4:
                read_a(st + 1, u - (U - 4))
            lg.need(("w", gu))
            if u == 0:
                lg.need(("a", st, 3))
            t, b = units[u]
            r = WR + (gu & 3) * 4
            for i in range(4):
                ar = AF + (st & 1) * 16 + i * 4
                ac = acc(t, b, i)
                a(f"v_mfma_f32_16x16x32_bf16 v[{ac}:{ac+3}], v[{r}:{r+3}], v[{ar}:{ar+3}], v[{ac}:{ac+3}]")
    a("s_nop 7")
    stamp(a, 5)
    if mode == 1:
        a("s_mul_i32 s18, s13, 9")
        a("s_add_u32 s18, s18, s16")
        a("s_lshr_b32 s18, s18, 1")
        a("s_lshl_b32 s19, s12, 4")
        a("s_lshl_b32 s40, s15, 2")
        a("s_add_u32 s19, s19, s40")
        a("s_mul_i32 s19, s19, 144")
        a("s_add_u32 s40, s19, s18")
        a("s_lshl_b32 s40, s40, 10")
        if tg == 0:
            a("s_mul_i32 s41, s13, 9")
            a("s_cmp_eq_u32 s16, 0")
            a("s_cselect_b32 s42, 8, 0")
            a("s_add_u32 s41, s41, s42")
            a("s_lshr_b32 s41, s41, 1")
            a("s_add_u32 s41, s41, s19")
            a("s_lshl_b32 s41, s41, 10")
            a("s_lshl_b32 s42, s16, 3")
            a("s_add_u32 s41, s41, s42")
        def hid(t, i, dst):
            g = acc(t, 0, i); u_ = acc(t, 1, i)
            for q in range(4):
                a(f"v_max_f32 v{g+q}, 0, v{g+q}")
            for q in range(4):
                a(f"v_mul_f32 v{g+q}, v{g+q}, v{u_+q}")
            a(f"v_cvt_pk_bf16_f32 v{dst}, v{g}, v{g+1}")
            a(f"v_cvt_pk_bf16_f32 v{dst+1}, v{g+2}, v{g+3}")
        slot = 0
        for i in range(4):
            pairs = [(1, 2), (3, 4)] if tg == 0 else [(0, 1), (2, 3)]
            for pp, (t0, t1) in enumerate(pairs):
                dst = 16 + (slot % 8) * 4; slot += 1
                hid(t0, i, dst); hid(t1, i, dst + 2)
                po = (pp + (0 if tg == 0 else 2)) * 1024
                a(f"s_add_u32 s42, s40, {i*144*1024 + po}")
                a(f"buffer_store_dwordx4 v[{dst}:{dst+3}], v3, s[32:35], s42 offen sc1")
            if tg == 0:
                dst = 16 + (slot % 8) * 4; slot += 1
                hid(0, i, dst)
                a(f"s_add_u32 s42, s41, {i*144*1024}")
                a(f"buffer_store_dwordx2 v[{dst}:{dst+1}], v3, s[32:35], s42 offen sc1")
    else:
        a("s_barrier")
        a("s_lshr_b32 s18, s15, 1")
        a(f"s_add_u32 s18, s18, {tg*2}")
        a("s_lshl_b32 s18, s18, 1")
        a("s_and_b32 s16, s15, 1")
        a("s_add_u32 s19, s18, s16")
        a("s_mul_i32 s19, s19, 10240")
        a("s_xor_b32 s40, s16, 1")
        a("s_add_u32 s18, s18, s40")
        a("s_mul_i32 s18, s18, 10240")
        a("v_add_u32 v8, s19, v3")
        a("v_add_u32 v9, s18, v3")
        a("s_cmp_eq_u32 s16, 0")
        lbl = f"K4_EP{tg}"
        a(f"s_cbranch_scc0 {lbl}_B")
        for kg in range(2):
            if kg == 1: a.label(f"{lbl}_B")
            keep = [2 * kg, 2 * kg + 1]; send = [2 - 2 * kg, 3 - 2 * kg]
            for t in range(nt):
                for ii, i in enumerate(send):
                    ac = acc(t, 0, i)
                    a(f"ds_write_b128 v8, v[{ac}:{ac+3}] offset:{(t*2+ii)*1024}")
            a("s_waitcnt lgkmcnt(0)")
            a("s_barrier")
            a("s_lshl_b32 s40, s13, 7")
            a("s_lshl_b32 s41, s12, 3")
            a("s_add_u32 s40, s40, s41")
            a("s_lshr_b32 s41, s15, 1")
            a("s_lshl_b32 s41, s41, 2")
            a("s_add_u32 s40, s40, s41")
            a("s_mul_i32 s40, s40, 36")
            a("s_mul_i32 s41, s14, 9")
            a("s_add_u32 s40, s40, s41")
            a("s_lshl_b32 s40, s40, 10")
            for t in range(nt):
                for ii, i in enumerate(keep):
                    r = 16 + ((t * 2 + ii) % 10) * 4
                    a(f"ds_read_b128 v[{r}:{r+3}], v9 offset:{(t*2+ii)*1024}")
            for t in range(nt):
                for ii, i in enumerate(keep):
                    r = 16 + ((t * 2 + ii) % 10) * 4
                    ac = acc(t, 0, i)
                    a(f"s_waitcnt lgkmcnt({min(15, 2*nt - 1 - (t*2+ii))})")
                    for q in range(4):
                        a(f"v_add_f32 v{ac+q}, v{ac+q}, v{r+q}")
                    a(f"s_add_u32 s42, s40, {(i*36 + t + (0 if tg == 0 else 5))*1024}")
                    a(f"buffer_store_dwordx4 v[{ac}:{ac+3}], v3, s[32:35], s42 offen sc1")
            if STAMP: a("s_waitcnt vmcnt(0)")
            stamp(a, 6)
            stamp_flush(a, 7, 77)
            a("s_endpgm")
    if mode == 1:
        if STAMP: a("s_waitcnt vmcnt(0)")
        stamp(a, 6)
        stamp_flush(a, 7, 77)
        a("s_endpgm")

def gen_k5(a):
    kernel_header(a, "k5_kernel")
    a("s_cmp_ge_u32 s2, 576")
    a("s_cbranch_scc1 K5_END")
    a("s_load_dwordx2 s[4:5], s[0:1], 96")
    a("s_load_dwordx2 s[6:7], s[0:1], 112")
    a("v_lshrrev_b32 v1, 6, v0")
    a("v_and_b32 v2, 63, v0")
    a("s_nop 0")
    a("v_readfirstlane_b32 s17, v1")
    a("s_waitcnt lgkmcnt(0)")
    srd(a, 20, 6, 4 * S * D * 4, WS_PART)
    srd(a, 24, 6, NB_ACT, WS_X1)
    srd(a, 28, 6, 6 * D * 2, WS_MOD)
    srd(a, 32, 4, NB_ACT)
    a("s_lshl_b32 s18, s2, 2")
    a("s_add_u32 s18, s18, s17")
    a("s_mul_i32 s19, s18, 3641")
    a("s_lshr_b32 s19, s19, 16")
    a("s_mul_i32 s16, s19, 18")
    a("s_sub_u32 s16, s18, s16")
    a("s_lshl_b32 s18, s18, 11")
    a("v_lshlrev_b32 v3, 4, v2")
    for sp in range(4):
        a(f"s_add_u32 s15, s18, {sp*S*D*4}")
        for t in range(2):
            r = 16 + (sp * 2 + t) * 4
            a(f"buffer_load_dwordx4 v[{r}:{r+3}], v3, s[20:23], s15 offen offset:{t*1024}")
    a("v_and_b32 v4, 15, v2")
    a("v_lshrrev_b32 v5, 4, v2")
    a("s_lshl_b32 s15, s19, 4")
    a("v_add_u32 v4, s15, v4")
    a("s_movk_i32 s15, 1152")
    a("v_mul_lo_u32 v4, v4, s15")
    a("v_lshlrev_b32 v5, 3, v5")
    a("s_lshl_b32 s15, s16, 6")
    a("v_add_u32 v5, s15, v5")
    a("v_add_u32 v4, v4, v5")
    a("buffer_load_dwordx2 v[48:49], v4, s[24:27], 0 offen")
    a("buffer_load_dwordx2 v[50:51], v4, s[24:27], 0 offen offset:32")
    a("s_movk_i32 s15, 5760")
    a("buffer_load_dwordx2 v[52:53], v5, s[28:31], s15 offen")
    a("buffer_load_dwordx2 v[54:55], v5, s[28:31], s15 offen offset:32")
    a("s_waitcnt vmcnt(4)")
    for t in range(2):
        for q in range(4):
            r = 16 + t * 4 + q
            a(f"v_add_f32 v{r}, v{r}, v{r+8}")
            a(f"v_add_f32 v{r+16}, v{r+16}, v{r+24}")
            a(f"v_add_f32 v{r}, v{r}, v{r+16}")
    a("s_waitcnt vmcnt(0)")
    for t in range(2):
        b = 16 + t * 4
        a(f"v_cvt_pk_bf16_f32 v56, v{b}, v{b+1}")
        a(f"v_cvt_pk_bf16_f32 v57, v{b+2}, v{b+3}")
        for q in range(4):
            src = 56 + (q >> 1); gbr = 52 + 2 * t + (q >> 1); xr = 48 + 2 * t + (q >> 1)
            if q & 1:
                a(f"v_and_b32 v58, 0xffff0000, v{src}")
                a(f"v_and_b32 v59, 0xffff0000, v{gbr}")
                a(f"v_and_b32 v60, 0xffff0000, v{xr}")
            else:
                a(f"v_lshlrev_b32 v58, 16, v{src}")
                a(f"v_lshlrev_b32 v59, 16, v{gbr}")
                a(f"v_lshlrev_b32 v60, 16, v{xr}")
            a("v_mul_f32 v58, v58, v59")
            a("v_cvt_pk_bf16_f32 v58, v58, v58")
            a("v_lshlrev_b32 v58, 16, v58")
            a(f"v_add_f32 v{b+q}, v58, v60")
        a(f"v_cvt_pk_bf16_f32 v{62+2*t}, v{b}, v{b+1}")
        a(f"v_cvt_pk_bf16_f32 v{63+2*t}, v{b+2}, v{b+3}")
        a(f"buffer_store_dwordx2 v[{62+2*t}:{63+2*t}], v4, s[32:35], 0 offen offset:{32*t}")
    a.label("K5_END")
    a("s_endpgm")

def main(out):
    a = Asm()
    hdr = open("adaLN_cond__ssm_conv_h3__glu_gated_reglu__prompt.s.ref").read().split("; Override launch geometry")[0]
    launches = [
        ("k1_kernel", 252, 512, K1_LDS),
        ("k2_kernel", 128, 576, K2_LDS),
        ("k3_kernel", 256, 512, G_LDS),
        ("k4_kernel", 256, 512, G_LDS),
        ("k5_kernel", 576, 256, 0),
    ]
    txt = hdr
    for (n, g, b, l) in launches:
        txt += f"; @launch kernel={n} grid=({g},1,1) block=({b},1,1) lds={l}\n"
    txt += '.amdgcn_target "amdgcn-amd-amdhsa--gfx950"\n.text\n'
    global SV
    SV = 120
    gen_k1(a)
    SV = 128
    gen_k2(a)
    SV = 240
    gen_gemm(a, 1)
    gen_gemm(a, 2)
    gen_k5(a)
    a.label("CODE_END")
    a("s_endpgm")
    txt += a.text()
    txt += '.section .rodata,"a"\n'
    txt += kernel_desc("k1_kernel", 128)
    txt += kernel_desc("k2_kernel", 136 if STAMP else 128)
    txt += kernel_desc("k3_kernel", 248 if STAMP else 224)
    txt += kernel_desc("k4_kernel", 248 if STAMP else 144)
    txt += kernel_desc("k5_kernel", 72)
    open(out, "w").write(txt)

if __name__ == "__main__":
    for arg in sys.argv[2:]:
        if arg == "stamp": STAMP = True
        elif "=" in arg:
            k_, v_ = arg.split("="); globals()[k_] = eval(v_)
    main(sys.argv[1] if len(sys.argv) > 1 else "k.s")
```

```python
import sys

S = 2048; D = 576; F = 4608
WS_BASE = int(__import__("os").environ.get("WS_BASE", "0"), 0)
WS_MOD  = WS_BASE + 0x0
WS_Y2T  = WS_BASE + 0x10000
WS_H2F  = WS_BASE + 0x250000
WS_X1   = WS_BASE + 0x490000
WS_HID  = WS_BASE + 0x700000
WS_PART = WS_BASE + 0x1900000
NB_ACT = S * D * 2
WS_END = WS_PART + 4 * S * D * 4
PF_CODE = True
PF_TLB = False
PF_XCD = False
PF_LIST = [0,1,2,3]

class Asm:
    def __init__(self):
        self.lines = []
    def __call__(self, s):
        for l in s.split("\n"):
            l = l.strip()
            if l:
                self.lines.append("    " + l if not l.endswith(":") else l)
    def label(self, l):
        self.lines.append(l + ":")
    def text(self):
        return "\n".join(self.lines) + "\n"

def srd(a, d, base, nbytes, off=0):
    if off:
        a(f"s_add_u32 s{d}, s{base}, {off}")
        a(f"s_addc_u32 s{d+1}, s{base+1}, 0")
    else:
        a(f"s_mov_b32 s{d}, s{base}")
        a(f"s_mov_b32 s{d+1}, s{base+1}")
    a(f"s_mov_b32 s{d+2}, {nbytes}")
    a(f"s_mov_b32 s{d+3}, 0x00020000")

STAMP = False
SV = 120
def stamp(a, idx):
    if not STAMP: return
    if idx == 0:
        a("s_memrealtime s[100:101]")
        a("s_waitcnt lgkmcnt(0)")
        a(f"v_mov_b32 v{SV+7}, s100")
    a("s_memtime s[100:101]")
    a("s_waitcnt lgkmcnt(0)")
    a(f"v_mov_b32 v{SV+idx}, s100")
def stamp_flush(a, n, wg):
    if not STAMP: return
    lbl = f"STAMP_SKIP_{len(a.lines)}"
    a(f"s_cmp_lg_u32 s2, {wg}")
    a(f"s_cbranch_scc1 {lbl}")
    a("s_memrealtime s[100:101]")
    a("s_load_dwordx2 s[72:73], s[0:1], 104")
    a("s_waitcnt lgkmcnt(0)")
    a("s_mov_b32 s74, 256")
    a("s_mov_b32 s75, 0x00020000")
    a("v_lshrrev_b32 v1, 6, v0")
    a("v_lshlrev_b32 v1, 5, v1")
    for i in range(n):
        a(f"v_sub_u32 v2, v{SV+i}, v{SV}")
        a(f"buffer_store_dword v2, v1, s[72:75], 0 offen offset:{4*i}")
    a(f"v_sub_u32 v2, s100, v{SV+7}")
    a(f"buffer_store_dword v2, v1, s[72:75], 0 offen offset:28")
    a("s_waitcnt vmcnt(0)")
    a.label(lbl)

def kernel_header(a, name):
    a.lines.append(f".globl {name}")
    a.lines.append(".p2align 8")
    a.lines.append(f".type {name},@function")
    a.label(name)

def kernel_desc(name, vgpr, sgpr=102, accum=None):
    if accum is None:
        accum = (vgpr + 3) // 4 * 4
    return f""".p2align 6
.amdhsa_kernel {name}
  .amdhsa_next_free_vgpr {vgpr}
  .amdhsa_next_free_sgpr {sgpr}
  .amdhsa_accum_offset {accum}
  .amdhsa_group_segment_fixed_size 0
  .amdhsa_kernarg_size 120
  .amdhsa_user_sgpr_count 2
  .amdhsa_user_sgpr_kernarg_segment_ptr 1
  .amdhsa_system_sgpr_workgroup_id_x 1
.end_amdhsa_kernel
"""

K1_CH = 24832
K1_CP = 4160
K1_U = 16640
K1_LDS = 4 * K1_CH + 4 * 1088

def gen_k1(a):
    kernel_header(a, "k1_kernel")
    a("s_cmp_ge_u32 s2, 252")
    a("s_cbranch_scc1 K1_END")
    a("s_cmp_ge_u32 s2, 144")
    a("s_cbranch_scc1 K1_MOD")
    stamp(a, 0)
    a("s_load_dwordx4 s[4:7], s[0:1], 8")
    a("s_load_dwordx4 s[8:11], s[0:1], 24")
    a("s_load_dwordx2 s[12:13], s[0:1], 40")
    a("s_load_dwordx2 s[14:15], s[0:1], 112")
    a("s_and_b32 s3, s2, 7")
    a("s_mul_i32 s3, s3, 18")
    a("s_lshr_b32 s16, s2, 3")
    a("s_add_u32 s3, s3, s16")
    a("v_lshrrev_b32 v1, 6, v0")
    a("v_and_b32 v2, 63, v0")
    a("s_nop 0")
    a("v_readfirstlane_b32 s17, v1")
    a("s_waitcnt lgkmcnt(0)")
    stamp(a, 1)
    srd(a, 20, 4, NB_ACT)
    srd(a, 24, 6, NB_ACT)
    srd(a, 28, 10, NB_ACT)
    srd(a, 32, 14, NB_ACT, WS_Y2T)
    a("s_cmp_ge_u32 s17, 4")
    a("s_cbranch_scc1 K1_LOADER")
    a("s_lshl_b32 s16, s3, 3")
    a("s_add_u32 s12, s12, s16")
    a("s_addc_u32 s13, s13, 0")
    a("s_load_dwordx2 s[44:45], s[12:13], 0")
    a("s_lshl_b32 s46, s3, 2")
    a("s_add_u32 s46, s46, s17")
    a("s_lshl_b32 s46, s46, 12")
    a(f"s_mul_i32 s47, s17, {K1_CH}")
    a("v_lshlrev_b32 v11, 4, v2")
    a("v_add_u32 v5, s46, v11")
    a("s_add_u32 m0, s47, 64")
    a("s_nop 0")
    for i in range(4):
        a(f"buffer_load_dwordx4 v5, s[28:31], 0 offen offset:{i*1024} lds")
    stamp(a, 2)
    for r in range(4):
        a(f"v_mov_b32 v{56+r}, 0")
    a("v_add_u32 v11, s47, v11")
    for i in range(3):
        a(f"ds_write_b128 v11, v[56:59] offset:{K1_U + 5120 + i*1024}")
    a("v_lshrrev_b32 v54, 2, v2")
    a(f"v_mul_u32_u24 v54, {K1_CP}, v54")
    a("v_and_b32 v55, 3, v2")
    a("v_lshlrev_b32 v55, 4, v55")
    a("v_add3_u32 v54, v54, v55, s47")
    a("s_mov_b64 exec, 0xffff")
    a("ds_write_b128 v54, v[56:59]")
    a("s_mov_b64 exec, -1")
    a("v_and_b32 v3, 15, v2")
    a("v_lshrrev_b32 v4, 4, v2")
    a("v_add_u32 v5, 1, v3")
    a("v_and_b32 v5, 3, v5")
    a("v_lshlrev_b32 v6, 3, v4")
    a("v_sub_u32 v6, v3, v6")
    a("v_sub_u32 v6, v6, v5")
    a("v_add_u32 v6, 25, v6")
    a("v_lshlrev_b32 v6, 1, v6")
    a(f"v_mul_u32_u24 v7, {K1_CP}, v5")
    a("v_add3_u32 v6, v6, v7, s47")
    a("v_sub_u32 v7, 15, v3")
    a("v_mul_u32_u24 v7, 160, v7")
    a("v_lshlrev_b32 v8, 4, v4")
    a("v_sub_u32 v7, v7, v8")
    a(f"v_add_u32 v7, {K1_U + 48}, v7")
    a("v_add_u32 v7, s47, v7")
    a("v_sub_u32 v8, 15, v3")
    a("v_mul_u32_u24 v8, 160, v8")
    a("v_lshlrev_b32 v9, 3, v4")
    a("v_sub_u32 v8, v8, v9")
    a(f"v_add_u32 v8, {K1_U + 24}, v8")
    a("v_add_u32 v8, s47, v8")
    a("s_mov_b32 s66, 73728")
    a("v_mul_lo_u32 v9, v3, s66")
    a("v_lshlrev_b32 v10, 3, v4")
    a("s_lshr_b32 s66, s46, 7")
    a("v_add3_u32 v9, v9, v10, s66")
    ACC = 16
    for r in range(32):
        a(f"v_mov_b32 v{ACC+r}, 0")
    a("s_waitcnt lgkmcnt(0)")
    a("s_cmp_lt_u32 s17, 2")
    a("s_cselect_b32 s64, s44, s45")
    a("s_and_b32 s65, s17, 1")
    a("s_cmp_eq_u32 s65, 0")
    a("s_cselect_b32 s65, 16, 0")
    a("s_lshl_b32 s64, s64, s65")
    a("s_and_b32 s64, s64, 0xffff0000")
    a("s_waitcnt vmcnt(0)")
    bases = [-1, 63, 127, 191, 192]
    for i, ub in enumerate(bases):
        r = 48 + 8 * i
        a(f"ds_read_b128 v[{r}:{r+3}], v11 offset:{64 + ub*16}")
        a(f"ds_read_b64 v[{r+4}:{r+5}], v11 offset:{64 + ub*16 + 16}")
    for i, ub in enumerate(bases):
        r = 48 + 8 * i
        a(f"s_waitcnt lgkmcnt({min(15, 2*(4-i) + 3*i)})")
        t = 96 + 12 * (i & 1)
        for q in range(4):
            a(f"v_alignbit_b32 v{t+q}, v{r+q+1}, v{r+q}, 16")
            a(f"v_mov_b32 v{t+4+q}, v{r+q+1}")
            a(f"v_alignbit_b32 v{t+8+q}, v{r+q+2}, v{r+q+1}, 16")
        for j in range(1, 4):
            a(f"ds_write_b128 v11, v[{t+4*(j-1)}:{t+4*(j-1)+3}] offset:{j*K1_CP + 64 + ub*16}")
    a("s_waitcnt lgkmcnt(0)")
    stamp(a, 3)
    AR = 48
    BR = 96
    lg = Track(a, "lgkmcnt", 15)
    phases = []
    for q in range(8):
        st = []
        if q < 4:
            st += [(0, d) for d in range(12 - 4*q, 16 - 4*q)]
        st += [(1, d) for d in range(28 - 4*q, 32 - 4*q)]
        phases.append(st)
    slot_of = {}
    state = {"next": 0, "cnt": 0}
    def a_loads(p, key):
        sl = state["next"] % 12; state["next"] += 1
        slot_of[(key, p)] = sl
        r = AR + sl * 4
        return [(f"ds_read_b64 v[{r}:{r+1}], v6 offset:{32*p}", ("A", key, p)),
                (f"ds_read_b64 v[{r+2}:{r+3}], v6 offset:{32*p+8}", ("A", key, p))]
    def step_loads(steps, i, key, a_only=False, b_only=False):
        nt, dl = steps[i]
        L = []
        if not a_only:
            for ks in range(2):
                r = BR + (i & 1) * 8 + ks * 4
                L.append((f"ds_read_b128 v[{r}:{r+3}], v7 offset:{(16 - 16*nt + dl)*160 + 64 - 64*ks}", ("B", key, i)))
        if not b_only:
            run_start = (i % 4 == 0)
            ps = range(4 * dl - 2, 4 * dl + 4) if run_start else range(4 * dl, 4 * dl + 4)
            for p in ps:
                if p >= 0:
                    L += a_loads(p, (key, i // 4))
        return L
    def emit(L):
        for (t, tag) in L:
            a(t); lg.issue(tag)
    for ph, steps in enumerate(phases):
        emit(step_loads(steps, 0, ph, a_only=True))
        a("s_barrier")
        if ph == 0: stamp(a, 4)
        if ph == 7: stamp(a, 5)
        emit(step_loads(steps, 0, ph, b_only=True))
        for i, (nt, dl) in enumerate(steps):
            nxt = step_loads(steps, i + 1, ph) if i + 1 < len(steps) else []
            mf = []
            for ks in (1, 0):
                for mt in range(4):
                    p = 4 * dl + mt - 2 * ks
                    if p < 0: continue
                    ac = ACC + (nt * 4 + mt) * 4
                    ar = AR + slot_of[((ph, i // 4), p)] * 4
                    br = BR + (i & 1) * 8 + ks * 4
                    mf.append((f"v_mfma_f32_16x16x32_bf16 v[{ac}:{ac+3}], v[{ar}:{ar+3}], v[{br}:{br+3}], v[{ac}:{ac+3}]", p))
            pre = nxt[:2]; rest = nxt[2:]
            emit(pre)
            lg.need(("B", ph, i))
            lg.need(("A", (ph, i // 4), 4 * dl + 3))
            k = 0
            for j, (m, p) in enumerate(mf):
                a(m)
                n_to = (len(rest) * (j + 1) + len(mf) - 1) // len(mf)
                while k < min(n_to, len(rest)):
                    emit([rest[k]]); k += 1
            while k < len(rest):
                emit([rest[k]]); k += 1
    for nt in range(2):
        for mt in range(4):
            r = 48 + (nt * 4 + mt) * 2
            a(f"ds_read_b64 v[{r}:{r+1}], v8 offset:{(16-16*nt)*160 + 96 - 32*mt}")
    a("s_nop 7")
    a("s_waitcnt lgkmcnt(0)")
    for nt in range(2):
        for mt in range(4):
            r = 48 + (nt * 4 + mt) * 2
            ac = ACC + (nt * 4 + mt) * 4
            a(f"v_and_b32 v64, 0xffff0000, v{r+1}")
            a(f"v_lshlrev_b32 v65, 16, v{r+1}")
            a(f"v_and_b32 v66, 0xffff0000, v{r}")
            a(f"v_lshlrev_b32 v67, 16, v{r}")
            for q in range(4):
                a(f"v_fmac_f32 v{ac+q}, s64, v{64+q}")
            a(f"v_cvt_pk_bf16_f32 v{r}, v{ac}, v{ac+1}")
            a(f"v_cvt_pk_bf16_f32 v{r+1}, v{ac+2}, v{ac+3}")
            a(f"s_mov_b32 s66, {(nt*64+mt)*18432}")
            a(f"buffer_store_dwordx2 v[{r}:{r+1}], v9, s[32:35], s66 offen")
    stamp(a, 6)
    stamp_flush(a, 7, 77)
    a("s_endpgm")
    a.label("K1_LOADER")
    NCK = 8
    a("s_sub_u32 s17, s17, 4")
    a("s_lshl_b32 s16, s3, 3")
    a("s_mul_i32 s18, s17, 73728")
    a("s_add_u32 s18, s18, s16")
    a("s_add_u32 s42, s4, s18")
    a("s_addc_u32 s43, s5, 0")
    for i in range(6):
        a(f"s_mov_b32 s{48+i}, 0")
    a("s_cmp_eq_u32 s17, 0")
    a("s_cbranch_scc1 K1_NOHALO")
    a("s_sub_u32 s44, s42, 3456")
    a("s_subb_u32 s45, s43, 0")
    for i in range(3):
        a(f"s_load_dwordx2 s[{48+2*i}:{49+2*i}], s[44:45], {i*1152}")
    a.label("K1_NOHALO")
    srd(a, 36, 8, D * 8)
    a("s_lshl_b32 s18, s17, 6")
    a("v_add_u32 v8, s18, v2")
    a("s_movk_i32 s18, 1152")
    a("v_mul_lo_u32 v8, v8, s18")
    a("v_add_u32 v8, s16, v8")
    vm = Track(a, "vmcnt", 63)
    def issue_chunk(c):
        b = 16 + (c % 3) * 4
        a(f"s_mov_b32 s40, {c*294912}")
        a(f"buffer_load_dwordx2 v[{b}:{b+1}], v8, s[20:23], s40 offen"); vm.issue(f"c{c}")
        a(f"buffer_load_dwordx2 v[{b+2}:{b+3}], v8, s[24:27], s40 offen"); vm.issue(f"c{c}")
    issue_chunk(0)
    a("v_and_b32 v3, 7, v2")
    a("v_bfe_u32 v4, v2, 3, 2")
    a("s_lshl_b32 s18, s3, 5")
    a("v_lshl_add_u32 v5, v4, 3, s18")
    a("buffer_load_dwordx2 v[6:7], v5, s[36:39], 0 offen")
    vm.issue("taps")
    for c in range(1, NCK):
        a(f"s_add_u32 s44, s42, {c*294912 - 3456}")
        a(f"s_addc_u32 s45, s43, 0")
        for i in range(3):
            a(f"s_load_dwordx2 s[{48+6*c+2*i}:{49+6*c+2*i}], s[44:45], {i*1152}")
    a(f"s_mul_i32 s46, s17, 1088")
    a(f"s_add_u32 s46, s46, {4*K1_CH}")
    a("v_lshlrev_b32 v9, 2, v2")
    a("v_add_u32 v9, s46, v9")
    a("v_and_b32 v10, 1, v2")
    a("v_mul_u32_u24 v10, 272, v10")
    a("v_lshrrev_b32 v11, 1, v2")
    a("v_lshl_add_u32 v10, v11, 2, v10")
    a("v_add_u32 v10, 4, v10")
    a("v_add_u32 v10, s46, v10")
    a("v_lshrrev_b32 v11, 1, v4")
    a("v_mul_u32_u24 v12, 272, v11")
    a("v_lshl_add_u32 v12, v3, 5, v12")
    a("v_add_u32 v12, s46, v12")
    a("v_lshlrev_b32 v13, 8, v11")
    a("v_lshl_add_u32 v13, v3, 5, v13")
    a("v_add_u32 v13, s46, v13")
    a("v_and_b32 v14, 1, v4")
    a("v_mul_u32_u24 v14, 0x0202, v14")
    a("v_lshlrev_b32 v14, 16, v14")
    a("v_add_u32 v14, 0x01000c0c, v14")
    a("s_sub_u32 s18, 3, s17")
    a("s_mul_i32 s18, s18, 160")
    a(f"s_add_u32 s18, s18, {K1_U + 112}")
    a(f"s_mov_b32 s19, {K1_CH}")
    a("v_mul_lo_u32 v60, v4, s19")
    a("v_lshlrev_b32 v61, 4, v3")
    a("v_sub_u32 v60, v60, v61")
    a("v_add_u32 v60, s18, v60")
    issue_chunk(1)
    stamp(a, 2)
    vm.need("taps")
    a("v_lshlrev_b32 v56, 16, v6")
    a("v_and_b32 v57, 0xffff0000, v6")
    a("v_lshlrev_b32 v58, 16, v7")
    a("v_and_b32 v59, 0xffff0000, v7")
    a("s_waitcnt lgkmcnt(0)")
    stamp(a, 3)
    for ck in range(NCK):
        b = 16 + (ck % 3) * 4
        for j in range(6):
            a(f"v_writelane_b32 v62, s{48+6*ck+j}, {j}")
        vm.need(f"c{ck}")
        if ck == 0: stamp(a, 4)
        if ck == 1: stamp(a, 6)
        a(f"ds_write2_b32 v9, v{b}, v{b+1} offset0:4 offset1:72")
        a(f"ds_write2_b32 v9, v{b+2}, v{b+3} offset0:136 offset1:200")
        a("s_mov_b64 exec, 0x3f")
        a("ds_write_b32 v10, v62")
        a("s_mov_b64 exec, -1")
        a("s_waitcnt lgkmcnt(0)")
        for i in range(3):
            a(f"ds_read_b128 v[{32+4*i}:{35+4*i}], v12 offset:{16*i}")
        for i in range(2):
            a(f"ds_read_b128 v[{44+4*i}:{47+4*i}], v13 offset:{544+16*i}")
        a("s_waitcnt lgkmcnt(2)")
        for i in range(11):
            a(f"v_perm_b32 v{64+i}, v{33+i}, v{33+i}, v14")
        a("s_waitcnt lgkmcnt(0)")
        for i in range(8):
            a(f"v_perm_b32 v{76+i}, v{44+i}, v{44+i}, v14")
        for i in range(8):
            a(f"v_mul_f32 v{84+i}, v59, v{64+i}")
            a(f"v_fmac_f32 v{84+i}, v58, v{64+i+1}")
            a(f"v_fmac_f32 v{84+i}, v57, v{64+i+2}")
            a(f"v_fmac_f32 v{84+i}, v56, v{64+i+3}")
            a(f"v_mul_f32 v{84+i}, v{84+i}, v{76+i}")
        for q in range(4):
            a(f"v_cvt_pk_bf16_f32 v{92+q}, v{84+7-2*q}, v{84+6-2*q}")
        a(f"ds_write_b128 v60, v[92:95] offset:{(NCK-1-ck)*640}")
        a("s_waitcnt lgkmcnt(0)")
        if ck == 0: stamp(a, 5)
        a("s_barrier")
        if ck + 2 < NCK:
            issue_chunk(ck + 2)
    stamp_flush(a, 7, 77)
    a("s_endpgm")
    a.label("K1_MOD")
    a("s_load_dwordx4 s[4:7], s[0:1], 80")
    a("s_load_dwordx2 s[8:9], s[0:1], 112")
    a("s_load_dwordx4 s[40:43], s[0:1], 56")
    a("s_load_dwordx2 s[44:45], s[0:1], 72")
    a("s_load_dwordx2 s[46:47], s[0:1], 0")
    a("s_load_dwordx4 s[48:51], s[0:1], 8")
    a("s_sub_u32 s3, s2, 144")
    a("v_lshrrev_b32 v1, 6, v0")
    a("s_nop 0")
    a("v_readfirstlane_b32 s17, v1")
    a("s_cmp_ge_u32 s17, 4")
    a("s_cbranch_scc1 K1_PF")
    a("v_and_b32 v1, 3, v0")
    a("v_lshrrev_b32 v2, 2, v0")
    a("v_mul_u32_u24 v3, 18, v2")
    a("s_mov_b32 s16, 62208")
    a("v_mul_lo_u32 v4, v2, s16")
    a("v_lshlrev_b32 v5, 4, v1")
    a("s_lshl_b32 s17, s3, 6")
    a("v_add3_u32 v4, v4, v5, s17")
    a("s_waitcnt lgkmcnt(0)")
    srd(a, 20, 4, D * 2)
    srd(a, 24, 6, D * 6 * D * 2)
    srd(a, 28, 8, 6 * D * 2, WS_MOD)
    for i in range(9):
        a(f"buffer_load_ushort v{10+i}, v3, s[20:23], 0 offen offset:{2*i}")
    for i in range(9):
        a(f"s_mov_b32 s18, {i*6912}")
        a(f"buffer_load_dwordx4 v[{20+4*i}:{23+4*i}], v4, s[24:27], s18 offen")
    for r in range(8):
        a(f"v_mov_b32 v{60+r}, 0")
    a("s_waitcnt vmcnt(9)")
    a("s_mov_b32 s19, 0xbfb8aa3b")
    for i in range(9):
        a(f"v_lshlrev_b32 v{10+i}, 16, v{10+i}")
        a(f"v_mul_f32 v70, s19, v{10+i}")
        a("v_exp_f32 v70, v70")
        a("s_nop 0")
        a("v_add_f32 v70, 1.0, v70")
        a("v_rcp_f32 v70, v70")
        a("s_nop 0")
        a(f"v_mul_f32 v70, v70, v{10+i}")
        a("v_cvt_pk_bf16_f32 v70, v70, v70")
        a(f"v_lshlrev_b32 v{10+i}, 16, v70")
    for i in range(9):
        a(f"s_waitcnt vmcnt({8-i})")
        for q in range(4):
            a(f"v_lshlrev_b32 v70, 16, v{20+4*i+q}")
            a(f"v_and_b32 v71, 0xffff0000, v{20+4*i+q}")
            a(f"v_fmac_f32 v{60+2*q}, v70, v{10+i}")
            a(f"v_fmac_f32 v{61+2*q}, v71, v{10+i}")
    a("v_lshlrev_b32 v5, 5, v0")
    a("ds_write_b128 v5, v[60:63]")
    a("ds_write_b128 v5, v[64:67] offset:16")
    a("s_waitcnt lgkmcnt(0)")
    a("s_barrier")
    a("v_and_b32 v6, 31, v0")
    a("v_lshrrev_b32 v7, 5, v0")
    a("v_lshlrev_b32 v8, 10, v7")
    a("v_lshl_add_u32 v8, v6, 2, v8")
    for i in range(8):
        a(f"ds_read_b32 v{10+i}, v8 offset:{i*128}")
    a("s_waitcnt lgkmcnt(0)")
    for i in range(1, 8):
        a(f"v_add_f32 v10, v10, v{10+i}")
    a("v_lshlrev_b32 v9, 2, v0")
    a("ds_write_b32 v9, v10 offset:8192")
    a("s_waitcnt lgkmcnt(0)")
    a("s_barrier")
    a("v_lshlrev_b32 v8, 2, v6")
    for i in range(8):
        a(f"ds_read_b32 v{10+i}, v8 offset:{8192 + i*128}")
    a("s_waitcnt lgkmcnt(0)")
    for i in range(1, 8):
        a(f"v_add_f32 v10, v10, v{10+i}")
    a("v_cvt_pk_bf16_f32 v10, v10, v10")
    a("v_lshlrev_b32 v9, 1, v6")
    a("v_add_u32 v9, s17, v9")
    a("v_cmp_gt_u32 vcc, 32, v0")
    a("s_and_saveexec_b64 s[32:33], vcc")
    a("s_cbranch_execz K1_END")
    a("buffer_store_short v10, v9, s[28:31], 0 offen")
    a("s_endpgm")
    a.label("K1_PF")
    a("v_subrev_u32 v1, 256, v0")
    a("s_lshl_b32 s16, s3, 8")
    a("v_add_u32 v1, s16, v1")
    a("v_lshlrev_b32 v1, 4, v1")
    a("s_waitcnt lgkmcnt(0)")
    srd(a, 20, 46, NB_ACT)
    srd(a, 24, 40, D * F * 2)
    srd(a, 28, 42, D * F * 2)
    srd(a, 32, 44, D * F * 2)
    srd(a, 52, 48, NB_ACT)
    srd(a, 56, 50, NB_ACT)
    a("v_subrev_u32 v2, 256, v0")
    a("s_lshr_b32 s16, s3, 3")
    a("s_lshl_b32 s16, s16, 8")
    a("v_add_u32 v2, s16, v2")
    a("v_lshrrev_b32 v3, 1, v2")
    a("s_movk_i32 s16, 1152")
    a("v_mul_lo_u32 v3, v3, s16")
    a("v_and_b32 v2, 1, v2")
    a("v_mul_u32_u24 v2, 140, v2")
    a("s_and_b32 s16, s3, 7")
    a("s_mul_i32 s16, s16, 144")
    a("v_add3_u32 v3, v3, v2, s16")
    a(f"s_mov_b32 s18, {1664*1152}")
    a("buffer_load_dword v70, v3, s[52:55], 0 offen")
    a("buffer_load_dword v71, v3, s[56:59], 0 offen")
    a("buffer_load_dword v72, v3, s[52:55], s18 offen")
    a("buffer_load_dword v73, v3, s[56:59], s18 offen")
    if PF_CODE:
        a("s_getpc_b64 s[60:61]")
        a.label("K1_PC")
        a("s_sub_u32 s60, s60, K1_PC-k1_kernel")
        a("s_subb_u32 s61, s61, 0")
        a("s_mov_b32 s62, CODE_END-k1_kernel")
        a("s_mov_b32 s63, 0x00020000")
        a("v_subrev_u32 v2, 256, v0")
        a("s_lshr_b32 s16, s3, 3")
        a("s_lshl_b32 s16, s16, 8")
        a("v_add_u32 v2, s16, v2")
        a("v_lshlrev_b32 v3, 4, v2")
        a("buffer_load_dwordx4 v[76:79], v3, s[60:63], 0 offen")
        a("s_mov_b32 s18, 53248")
        a("buffer_load_dwordx4 v[80:83], v3, s[60:63], s18 offen")
    if PF_TLB:
        srd(a, 64, 8, WS_END)
        a("v_lshlrev_b32 v3, 15, v2")
        a("buffer_load_dword v84, v3, s[64:67], 0 offen")
    PASS = 108 * 256 * 16
    n = 0
    lin = [((20, NB_ACT), (24, D*F*2), (28, D*F*2), (32, D*F*2))[i] for i in PF_LIST]
    for (sr, nb) in lin:
        for i in range((nb + PASS - 1) // PASS):
            a(f"s_mov_b32 s18, {i*PASS}")
            r = 4 + 4 * (n % 16); n += 1
            a(f"buffer_load_dwordx4 v[{r}:{r+3}], v1, s[{sr}:{sr+3}], s18 offen")
    if PF_XCD:
        a("v_subrev_u32 v2, 256, v0")
        a("s_lshr_b32 s16, s3, 3")
        a("s_lshl_b32 s16, s16, 8")
        a("v_add_u32 v2, s16, v2")
        a("v_mul_u32_u24 v3, 3641, v2")
        a("v_lshrrev_b32 v3, 19, v3")
        a("v_mul_u32_u24 v74, 144, v3")
        a("v_sub_u32 v74, v2, v74")
        a("v_mul_u32_u24 v3, 9216, v3")
        a("v_lshl_add_u32 v3, v74, 4, v3")
        a("s_and_b32 s16, s3, 7")
        a("s_lshr_b32 s16, s16, 1")
        a("s_mul_i32 s16, s16, 2304")
        a("v_add_u32 v3, s16, v3")
        for i in range(26):
            a(f"s_mov_b32 s18, {i*23*9216}")
            for sr in (24, 28):
                r = 4 + 4 * (n % 16); n += 1
                a(f"buffer_load_dwordx4 v[{r}:{r+3}], v3, s[{sr}:{sr+3}], s18 offen")
    a("s_waitcnt vmcnt(0)")
    a.label("K1_END")
    a("s_endpgm")

class Track:
    def __init__(self, a, name, maxn):
        self.a = a; self.name = name; self.maxn = maxn
        self.q = []
    def issue(self, tag):
        self.q.append(tag)
    def need(self, tag):
        idx = [i for i, t in enumerate(self.q) if t == tag]
        if not idx: return
        n = len(self.q) - 1 - idx[-1]
        n = min(n, self.maxn)
        self.a(f"s_waitcnt {self.name}({n})")
        self.q = self.q[len(self.q) - n:] if n else []
    def drain(self):
        self.a(f"s_waitcnt {self.name}(0)")
        self.q = []

def bf16_round(a, v, tmp=None):
    a(f"v_cvt_pk_bf16_f32 v{v}, v{v}, v{v}")
    a(f"v_lshlrev_b32 v{v}, 16, v{v}")

K2_LDS = 18432 + 4096
def gen_k2(a):
    kernel_header(a, "k2_kernel")
    a("s_cmp_ge_u32 s2, 128")
    a("s_cbranch_scc1 K2_END")
    a("s_load_dwordx2 s[4:5], s[0:1], 0")
    a("s_load_dwordx2 s[6:7], s[0:1], 112")
    a("v_lshrrev_b32 v1, 6, v0")
    a("v_and_b32 v2, 63, v0")
    a("s_nop 0")
    a("v_readfirstlane_b32 s17, v1")
    a("v_and_b32 v3, 15, v2")
    a("v_lshrrev_b32 v4, 4, v2")
    a("s_waitcnt lgkmcnt(0)")
    srd(a, 20, 4, NB_ACT)
    srd(a, 24, 6, NB_ACT, WS_Y2T)
    srd(a, 28, 6, 6 * D * 2, WS_MOD)
    srd(a, 32, 6, NB_ACT, WS_X1)
    srd(a, 36, 6, NB_ACT, WS_H2F)
    a("v_lshrrev_b32 v5, 1, v2")
    a("v_lshrrev_b32 v6, 4, v5")
    a("v_bfe_u32 v7, v5, 2, 2")
    a("v_and_b32 v8, 3, v5")
    a("v_lshlrev_b32 v7, 3, v7")
    a("v_lshl_add_u32 v7, v6, 2, v7")
    a("v_add_u32 v7, v7, v8")
    a("v_lshlrev_b32 v7, 5, v7")
    a("v_and_b32 v8, 1, v2")
    a("v_lshl_add_u32 v7, v8, 4, v7")
    a("s_mul_i32 s18, s2, 18432")
    a("s_lshl_b32 s19, s17, 11")
    a("s_add_u32 s18, s18, s19")
    a("s_mov_b32 m0, s19")
    a("s_nop 0")
    a("buffer_load_dwordx4 v7, s[24:27], s18 offen lds")
    a("buffer_load_dwordx4 v7, s[24:27], s18 offen offset:1024 lds")
    a("s_lshl_b32 s18, s2, 4")
    a("v_add_u32 v8, s18, v3")
    a("s_movk_i32 s18, 1152")
    a("v_mul_lo_u32 v8, v8, s18")
    a("v_lshlrev_b32 v9, 4, v4")
    a("s_lshl_b32 s18, s17, 7")
    a("v_add_u32 v9, s18, v9")
    a("v_add_u32 v8, v8, v9")
    a("buffer_load_dwordx4 v[12:15], v8, s[20:23], 0 offen")
    a("buffer_load_dwordx4 v[16:19], v8, s[20:23], 0 offen offset:64")
    for p in range(5):
        for kk in range(2):
            r = 20 + 8 * p + 4 * kk
            if p * 1152 + 64 * kk < 4096:
                a(f"buffer_load_dwordx4 v[{r}:{r+3}], v9, s[28:31], 0 offen offset:{p*1152 + 64*kk}")
            else:
                a("s_movk_i32 s18, 4608")
                a(f"buffer_load_dwordx4 v[{r}:{r+3}], v9, s[28:31], s18 offen offset:{64*kk}")
    a("v_lshlrev_b32 v10, 3, v2")
    a("v_add_u32 v10, s19, v10")
    a("v_lshlrev_b32 v11, 3, v3")
    a("v_add_u32 v11, 18432, v11")
    a("s_lshl_b32 s18, s17, 7")
    a("v_add_u32 v60, s18, v11")
    a("s_waitcnt vmcnt(10)")
    a("ds_read_b64_tr_b16 v[96:97], v10")
    a("ds_read_b64_tr_b16 v[98:99], v10 offset:512")
    a("ds_read_b64_tr_b16 v[100:101], v10 offset:1024")
    a("ds_read_b64_tr_b16 v[102:103], v10 offset:1536")
    for i in range(8):
        a(f"v_lshlrev_b32 v{64+2*i}, 16, v{12+i}")
        a(f"v_and_b32 v{65+2*i}, 0xffff0000, v{12+i}")
    def stats(src, rnd):
        a(f"v_add_f32 v62, v{src}, v{src+1}")
        a(f"v_mul_f32 v63, v{src}, v{src}")
        a(f"v_fmac_f32 v63, v{src+1}, v{src+1}")
        for i in range(2, 16):
            a(f"v_add_f32 v62, v62, v{src+i}")
            a(f"v_fmac_f32 v63, v{src+i}, v{src+i}")
        for sw in ("v_permlane16_swap_b32", "v_permlane32_swap_b32"):
            a("v_mov_b32 v104, v62")
            a("v_mov_b32 v105, v63")
            a("s_nop 1")
            a(f"{sw} v62, v104")
            a(f"{sw} v63, v105")
            a("s_nop 1")
            a("v_add_f32 v62, v62, v104")
            a("v_add_f32 v63, v63, v105")
        a(f"ds_write_b64 v60, v[62:63] offset:{rnd*2048}")
        a("s_waitcnt lgkmcnt(0)")
        a("s_barrier")
        for w in range(9):
            a(f"ds_read_b64 v[{106+2*w}:{107+2*w}], v11 offset:{rnd*2048 + w*128}")
        a("s_waitcnt lgkmcnt(0)")
        for w in range(1, 9):
            a(f"v_add_f32 v106, v106, v{106+2*w}")
            a(f"v_add_f32 v107, v107, v{107+2*w}")
        a("s_mov_b32 s18, 0x3ae38e39")
        a("v_mul_f32 v62, s18, v106")
        a("v_mul_f32 v63, s18, v107")
        a("v_fma_f32 v63, -v62, v62, v63")
        a("v_max_f32 v63, 0, v63")
        bf16_round(a, 62)
        bf16_round(a, 63)
        a("v_add_f32 v63, 0x3727c5ac, v63")
        bf16_round(a, 63)
        a("v_sqrt_f32 v63, v63")
        a("s_nop 0")
        bf16_round(a, 63)
        a("v_rcp_f32 v63, v63")
        a("s_nop 0")
    stats(64, 0)
    a("s_waitcnt vmcnt(0)")
    def punpack(dst, p, e):
        r = 20 + 8 * p + 4 * (e >> 3) + ((e & 7) >> 1)
        if e & 1: a(f"v_and_b32 v{dst}, 0xffff0000, v{r}")
        else: a(f"v_lshlrev_b32 v{dst}, 16, v{r}")
    for e in range(16):
        x = 64 + e
        yr = 96 + (e >> 1)
        punpack(104, 1, e)
        punpack(105, 0, e)
        punpack(106, 2, e)
        if e & 1: a(f"v_and_b32 v107, 0xffff0000, v{yr}")
        else: a(f"v_lshlrev_b32 v107, 16, v{yr}")
        a("v_add_f32 v104, 1.0, v104")
        a(f"v_sub_f32 v108, v{x}, v62")
        a("v_mul_f32 v108, v108, v63")
        a("v_fma_f32 v108, v108, v104, v105")
        a("v_mul_f32 v108, v108, v107")
        a(f"v_fma_f32 v{80+e}, v108, v106, v{x}")
    for i in range(8):
        a(f"v_cvt_pk_bf16_f32 v{12+i}, v{80+2*i}, v{81+2*i}")
    for i in range(8):
        a(f"v_lshlrev_b32 v{80+2*i}, 16, v{12+i}")
        a(f"v_and_b32 v{81+2*i}, 0xffff0000, v{12+i}")
    a("buffer_store_dwordx4 v[12:15], v8, s[32:35], 0 offen")
    a("buffer_store_dwordx4 v[16:19], v8, s[32:35], 0 offen offset:64")
    stats(80, 1)
    for e in range(16):
        punpack(104, 4, e)
        punpack(105, 3, e)
        a("v_add_f32 v104, 1.0, v104")
        a(f"v_sub_f32 v108, v{80+e}, v62")
        a("v_mul_f32 v108, v108, v63")
        a(f"v_fma_f32 v{64+e}, v108, v104, v105")
    for i in range(8):
        a(f"v_cvt_pk_bf16_f32 v{96+i}, v{64+2*i}, v{65+2*i}")
    a("s_mul_i32 s18, s2, 18432")
    a("s_add_u32 s18, s18, s19")
    a("v_lshlrev_b32 v9, 4, v2")
    a("buffer_store_dwordx4 v[96:99], v9, s[36:39], s18 offen")
    a("buffer_store_dwordx4 v[100:103], v9, s[36:39], s18 offen offset:1024")
    a.label("K2_END")
    a("s_endpgm")

ST_BYTES = 34816
G_LDS = 4 * ST_BYTES
NST = 18
def gen_gemm(a, mode):
    nm = "k3" if mode == 1 else "k4"
    kernel_header(a, nm + "_kernel")
    a("s_cmp_ge_u32 s2, 256")
    a(f"s_cbranch_scc1 {nm.upper()}_END")
    stamp(a, 0)
    if mode == 1:
        a("s_load_dwordx4 s[4:7], s[0:1], 56")
    else:
        a("s_load_dwordx2 s[4:5], s[0:1], 72")
    a("s_load_dwordx2 s[8:9], s[0:1], 112")
    a("v_lshrrev_b32 v1, 6, v0")
    a("v_and_b32 v2, 63, v0")
    a("s_nop 0")
    a("v_readfirstlane_b32 s17, v1")
    a("s_and_b32 s10, s2, 7")
    a("s_lshr_b32 s11, s2, 3")
    a("s_and_b32 s12, s10, 1")
    a("s_lshr_b32 s13, s10, 1")
    if mode == 1:
        a("s_lshl_b32 s12, s12, 2")
        a("s_and_b32 s14, s11, 3")
        a("s_add_u32 s12, s12, s14")
        a("s_lshl_b32 s13, s13, 3")
        a("s_lshr_b32 s14, s11, 2")
        a("s_add_u32 s13, s13, s14")
    else:
        a("s_lshl_b32 s12, s12, 3")
        a("s_and_b32 s14, s11, 7")
        a("s_add_u32 s12, s12, s14")
        a("s_lshr_b32 s14, s11, 3")
    a("s_and_b32 s15, s17, 3")
    a("s_waitcnt lgkmcnt(0)")
    if mode == 1:
        srd(a, 20, 4, D * F * 2)
        srd(a, 24, 6, D * F * 2)
        srd(a, 28, 8, NB_ACT, WS_H2F)
        srd(a, 32, 8, S * F * 2, WS_HID)
        a("s_cmp_lt_u32 s15, 2")
        a("s_cselect_b32 s36, s4, s6")
        a("s_cselect_b32 s37, s5, s7")
        a(f"s_mov_b32 s38, {D*F*2}")
        a("s_mov_b32 s39, 0x00020000")
        pitch = 9216
    else:
        srd(a, 20, 4, D * F * 2)
        srd(a, 28, 8, S * F * 2, WS_HID)
        srd(a, 32, 8, 4 * S * D * 4, WS_PART)
        pitch = 1152
    a("v_lshlrev_b32 v3, 4, v2")
    if mode == 1:
        a("s_lshl_b32 s18, s15, 12")
    else:
        a("s_and_b32 s18, s15, 1")
        a("s_lshl_b32 s18, s18, 13")
        a("s_lshr_b32 s19, s15, 1")
        a("s_lshl_b32 s19, s19, 12")
        a("s_add_u32 s18, s18, s19")
    a("v_add_u32 v4, s18, v3")
    a("v_lshrrev_b32 v5, 2, v2")
    a("v_mul_u32_u24 v5, 288, v5")
    a("v_and_b32 v6, 3, v2")
    a("v_lshl_add_u32 v5, v6, 3, v5")
    a("v_add_u32 v5, 16384, v5")
    if mode == 1:
        a("s_and_b32 s16, s13, 1")
        a("s_lshl_b32 s18, s16, 5")
        a("v_add_u32 v6, s18, v5")
        a("s_cmp_eq_u32 s16, 0")
        a("s_cselect_b32 s18, 256, 0")
        a("v_add_u32 v7, s18, v5")
    else:
        a("s_and_b32 s18, s15, 1")
        a("s_mul_i32 s18, s18, 9216")
        a("v_add_u32 v6, s18, v5")
    a("s_cmp_ge_u32 s17, 4")
    a(f"s_cbranch_scc1 {nm.upper()}_TG1")
    for tg in range(2):
        if tg == 1:
            a.label(f"{nm.upper()}_TG1")
        gemm_body(a, mode, tg, pitch)
    a.label(f"{nm.upper()}_END")
    a("s_endpgm")

def gemm_body(a, mode, tg, pitch):
    nt = 5 if tg == 0 else 4
    vm = Track(a, "vmcnt", 63)
    lg = Track(a, "lgkmcnt", 15)
    if tg == 0:
        a("v_mov_b32 v8, v3")
        for i in range(4):
            if mode == 1:
                a("s_lshl_b32 s18, s12, 4")
                a("s_lshl_b32 s19, s15, 2")
                a("s_add_u32 s18, s18, s19")
                a(f"s_add_u32 s18, s18, {i}")
                a(f"s_mul_i32 s{40+i}, s18, 18432")
            else:
                a("s_and_b32 s18, s15, 1")
                a("s_lshl_b32 s18, s18, 2")
                a("s_lshl_b32 s19, s12, 3")
                a("s_add_u32 s18, s18, s19")
                a(f"s_add_u32 s18, s18, {i}")
                a("s_mul_i32 s18, s18, 144")
                a("s_mul_i32 s19, s13, 36")
                a("s_add_u32 s18, s18, s19")
                a("s_lshr_b32 s19, s15, 1")
                a("s_add_u32 s18, s18, s19")
                a(f"s_lshl_b32 s{40+i}, s18, 10")
        a("s_lshl_b32 s44, s15, 12")
        astep = 1024 if mode == 1 else 2048
        def dma(st):
            base = (st & 3) * ST_BYTES
            for i in range(4):
                a(f"s_add_u32 m0, s44, {base + i*1024}")
                a("s_nop 0")
                a(f"buffer_load_dwordx4 v8, s[28:31], s{40+i} offen lds")
                vm.issue(("d", st))
            a(f"v_add_u32 v8, {astep}, v8")
    else:
        def qaddr(dst):
            a(f"v_mul_u32_u24 v12, 3641, v{dst}")
            a("v_lshrrev_b32 v12, 16, v12")
            a("v_mul_u32_u24 v13, 18, v12")
            a(f"v_sub_u32 v13, v{dst}, v13")
            if mode == 1:
                a("v_lshrrev_b32 v14, 4, v12")
                a("v_bfe_u32 v15, v12, 2, 2")
                a("v_and_b32 v12, 3, v12")
                a("v_lshl_add_u32 v12, v15, 3, v12")
                a("v_lshl_add_u32 v12, v14, 2, v12")
            a(f"v_mul_u32_u24 v12, {pitch}, v12")
            a(f"v_lshl_add_u32 v{dst}, v13, 4, v12")
        a("s_lshl_b32 s18, s15, 7")
        a("v_add_u32 v8, s18, v2")
        a("v_add_u32 v9, 64, v8")
        a("s_and_b32 s18, s15, 1")
        a("s_lshl_b32 s18, s18, 5")
        a("s_add_u32 s18, s18, 512")
        a("v_add_u32 v10, s18, v2")
        qaddr(8); qaddr(9); qaddr(10)
        if mode == 1:
            a("s_mul_i32 s40, s13, 288")
        else:
            a(f"s_mul_i32 s40, s13, {1152*1152}")
            a("s_mul_i32 s18, s14, 288")
            a("s_add_u32 s40, s40, s18")
        a("s_lshl_b32 s44, s15, 11")
        a("s_lshr_b32 s45, s15, 1")
        a("s_mul_i32 s45, s45, 9216")
        a("s_and_b32 s18, s15, 1")
        a("s_lshl_b32 s18, s18, 9")
        a("s_add_u32 s45, s45, s18")
        if mode == 2:
            a("s_lshr_b32 s46, s15, 1")
            a(f"s_mul_i32 s46, s46, {32*pitch}")
        wstep = 32 * pitch if mode == 1 else 64 * pitch
        def dma(st):
            base = (st & 3) * ST_BYTES + 16384
            if mode == 2:
                a(f"s_add_u32 s41, s40, {32*pitch}")
                a("s_add_u32 s42, s40, s46")
            for blk in range(2):
                for j in range(2):
                    a(f"s_add_u32 m0, s44, {base + blk*9216 + j*1024}")
                    a("s_nop 0")
                    if mode == 1:
                        a(f"buffer_load_dwordx4 v{8+j}, s[{20+4*blk}:{23+4*blk}], s40 offen lds")
                    else:
                        a(f"buffer_load_dwordx4 v{8+j}, s[20:23], s{40+blk} offen lds")
                    vm.issue(("d", st))
            a(f"s_add_u32 m0, s45, {base + 8192}")
            a("s_mov_b64 exec, 0xffffffff")
            if mode == 1:
                a("buffer_load_dwordx4 v10, s[36:39], s40 offen lds")
            else:
                a("buffer_load_dwordx4 v10, s[20:23], s42 offen lds")
            vm.issue(("d", st))
            a("s_mov_b64 exec, -1")
            a(f"s_add_u32 s40, s40, {wstep}")
    AF = 16
    WR = 48
    ACC = 64
    nblk = 2 if mode == 1 else 1
    units = [(t, b) for t in range(nt) for b in range(nblk)]
    U = len(units)
    def acc(t, b, i): return ACC + ((t * nblk + b) * 4 + i) * 4
    nacc = U * 16
    for r in range(nacc):
        a(f"v_mov_b32 v{ACC+r}, 0")
    def w_addr(t, b):
        if mode == 1:
            if tg == 0:
                if t == 0: return 7, b * 9216
                return 6, b * 9216 + (t - 1) * 32
            return 6, b * 9216 + (4 + t) * 32
        else:
            return 6, (t if tg == 0 else 5 + t) * 32
    def read_w(gu):
        st, u = divmod(gu, U)
        if st >= NST: return
        t, b = units[u]
        vr, off = w_addr(t, b)
        off += (st & 3) * ST_BYTES
        r = WR + (gu & 3) * 4
        if off + 4608 >= 65536:
            vr2 = {6: 12, 7: 13}[vr]; off -= 65536 - 0
            vr = vr2
        a(f"ds_read_b64_tr_b16 v[{r}:{r+1}], v{vr} offset:{off}")
        lg.issue(("w", gu))
        a(f"ds_read_b64_tr_b16 v[{r+2}:{r+3}], v{vr} offset:{off+4608}")
        lg.issue(("w", gu))
    def read_a(st, i):
        if st >= NST: return
        off = (st & 3) * ST_BYTES + i * 1024
        vr = 4
        if off >= 65536 - 16384:
            vr = 14; off -= 65536
        r = AF + (st & 1) * 16 + i * 4
        a(f"ds_read_b128 v[{r}:{r+3}], v{vr} offset:{off}")
        lg.issue(("a", st, i))
    a("v_add_u32 v12, 0x10000, v6")
    if mode == 1 and tg == 0:
        a("v_add_u32 v13, 0x10000, v7")
    a("v_add_u32 v14, 0x10000, v4")
    dma(0); dma(1); dma(2)
    PD = 3
    first = True
    for st in range(NST):
        vm.need(("d", min(st + 1, NST - 1)))
        a("s_barrier")
        if st in (0, 3, 9, 15):
            stamp(a, {0:1, 3:2, 9:3, 15:4}[st])
        if st + 3 < NST:
            dma(st + 3)
        if st == 0:
            for i in range(4): read_a(0, i)
            for gu in range(PD): read_w(gu)
        for u in range(U):
            gu = st * U + u
            read_w(gu + PD)
            if u >= U - 4:
                read_a(st + 1, u - (U - 4))
            lg.need(("w", gu))
            if u == 0:
                lg.need(("a", st, 3))
            t, b = units[u]
            r = WR + (gu & 3) * 4
            for i in range(4):
                ar = AF + (st & 1) * 16 + i * 4
                ac = acc(t, b, i)
                a(f"v_mfma_f32_16x16x32_bf16 v[{ac}:{ac+3}], v[{r}:{r+3}], v[{ar}:{ar+3}], v[{ac}:{ac+3}]")
    a("s_nop 7")
    stamp(a, 5)
    if mode == 1:
        a("s_mul_i32 s18, s13, 9")
        a("s_add_u32 s18, s18, s16")
        a("s_lshr_b32 s18, s18, 1")
        a("s_lshl_b32 s19, s12, 4")
        a("s_lshl_b32 s40, s15, 2")
        a("s_add_u32 s19, s19, s40")
        a("s_mul_i32 s19, s19, 144")
        a("s_add_u32 s40, s19, s18")
        a("s_lshl_b32 s40, s40, 10")
        if tg == 0:
            a("s_mul_i32 s41, s13, 9")
            a("s_cmp_eq_u32 s16, 0")
            a("s_cselect_b32 s42, 8, 0")
            a("s_add_u32 s41, s41, s42")
            a("s_lshr_b32 s41, s41, 1")
            a("s_add_u32 s41, s41, s19")
            a("s_lshl_b32 s41, s41, 10")
            a("s_lshl_b32 s42, s16, 3")
            a("s_add_u32 s41, s41, s42")
        def hid(t, i, dst):
            g = acc(t, 0, i); u_ = acc(t, 1, i)
            for q in range(4):
                a(f"v_max_f32 v{g+q}, 0, v{g+q}")
            for q in range(4):
                a(f"v_mul_f32 v{g+q}, v{g+q}, v{u_+q}")
            a(f"v_cvt_pk_bf16_f32 v{dst}, v{g}, v{g+1}")
            a(f"v_cvt_pk_bf16_f32 v{dst+1}, v{g+2}, v{g+3}")
        slot = 0
        for i in range(4):
            pairs = [(1, 2), (3, 4)] if tg == 0 else [(0, 1), (2, 3)]
            for pp, (t0, t1) in enumerate(pairs):
                dst = 16 + (slot % 8) * 4; slot += 1
                hid(t0, i, dst); hid(t1, i, dst + 2)
                po = (pp + (0 if tg == 0 else 2)) * 1024
                a(f"s_add_u32 s42, s40, {i*144*1024 + po}")
                a(f"buffer_store_dwordx4 v[{dst}:{dst+3}], v3, s[32:35], s42 offen sc1")
            if tg == 0:
                dst = 16 + (slot % 8) * 4; slot += 1
                hid(0, i, dst)
                a(f"s_add_u32 s42, s41, {i*144*1024}")
                a(f"buffer_store_dwordx2 v[{dst}:{dst+1}], v3, s[32:35], s42 offen sc1")
    else:
        a("s_barrier")
        a("s_lshr_b32 s18, s15, 1")
        a(f"s_add_u32 s18, s18, {tg*2}")
        a("s_lshl_b32 s18, s18, 1")
        a("s_and_b32 s16, s15, 1")
        a("s_add_u32 s19, s18, s16")
        a("s_mul_i32 s19, s19, 10240")
        a("s_xor_b32 s40, s16, 1")
        a("s_add_u32 s18, s18, s40")
        a("s_mul_i32 s18, s18, 10240")
        a("v_add_u32 v8, s19, v3")
        a("v_add_u32 v9, s18, v3")
        a("s_cmp_eq_u32 s16, 0")
        lbl = f"K4_EP{tg}"
        a(f"s_cbranch_scc0 {lbl}_B")
        for kg in range(2):
            if kg == 1: a.label(f"{lbl}_B")
            keep = [2 * kg, 2 * kg + 1]; send = [2 - 2 * kg, 3 - 2 * kg]
            for t in range(nt):
                for ii, i in enumerate(send):
                    ac = acc(t, 0, i)
                    a(f"ds_write_b128 v8, v[{ac}:{ac+3}] offset:{(t*2+ii)*1024}")
            a("s_waitcnt lgkmcnt(0)")
            a("s_barrier")
            a("s_lshl_b32 s40, s13, 7")
            a("s_lshl_b32 s41, s12, 3")
            a("s_add_u32 s40, s40, s41")
            a("s_lshr_b32 s41, s15, 1")
            a("s_lshl_b32 s41, s41, 2")
            a("s_add_u32 s40, s40, s41")
            a("s_mul_i32 s40, s40, 36")
            a("s_mul_i32 s41, s14, 9")
            a("s_add_u32 s40, s40, s41")
            a("s_lshl_b32 s40, s40, 10")
            for t in range(nt):
                for ii, i in enumerate(keep):
                    r = 16 + ((t * 2 + ii) % 10) * 4
                    a(f"ds_read_b128 v[{r}:{r+3}], v9 offset:{(t*2+ii)*1024}")
            for t in range(nt):
                for ii, i in enumerate(keep):
                    r = 16 + ((t * 2 + ii) % 10) * 4
                    ac = acc(t, 0, i)
                    a(f"s_waitcnt lgkmcnt({min(15, 2*nt - 1 - (t*2+ii))})")
                    for q in range(4):
                        a(f"v_add_f32 v{ac+q}, v{ac+q}, v{r+q}")
                    a(f"s_add_u32 s42, s40, {(i*36 + t + (0 if tg == 0 else 5))*1024}")
                    a(f"buffer_store_dwordx4 v[{ac}:{ac+3}], v3, s[32:35], s42 offen sc1")
            if STAMP: a("s_waitcnt vmcnt(0)")
            stamp(a, 6)
            stamp_flush(a, 7, 77)
            a("s_endpgm")
    if mode == 1:
        if STAMP: a("s_waitcnt vmcnt(0)")
        stamp(a, 6)
        stamp_flush(a, 7, 77)
        a("s_endpgm")

def gen_k5(a):
    kernel_header(a, "k5_kernel")
    a("s_cmp_ge_u32 s2, 576")
    a("s_cbranch_scc1 K5_END")
    a("s_load_dwordx2 s[4:5], s[0:1], 96")
    a("s_load_dwordx2 s[6:7], s[0:1], 112")
    a("v_lshrrev_b32 v1, 6, v0")
    a("v_and_b32 v2, 63, v0")
    a("s_nop 0")
    a("v_readfirstlane_b32 s17, v1")
    a("s_waitcnt lgkmcnt(0)")
    srd(a, 20, 6, 4 * S * D * 4, WS_PART)
    srd(a, 24, 6, NB_ACT, WS_X1)
    srd(a, 28, 6, 6 * D * 2, WS_MOD)
    srd(a, 32, 4, NB_ACT)
    a("s_lshl_b32 s18, s2, 2")
    a("s_add_u32 s18, s18, s17")
    a("s_mul_i32 s19, s18, 3641")
    a("s_lshr_b32 s19, s19, 16")
    a("s_mul_i32 s16, s19, 18")
    a("s_sub_u32 s16, s18, s16")
    a("s_lshl_b32 s18, s18, 11")
    a("v_lshlrev_b32 v3, 4, v2")
    for sp in range(4):
        a(f"s_add_u32 s15, s18, {sp*S*D*4}")
        for t in range(2):
            r = 16 + (sp * 2 + t) * 4
            a(f"buffer_load_dwordx4 v[{r}:{r+3}], v3, s[20:23], s15 offen offset:{t*1024}")
    a("v_and_b32 v4, 15, v2")
    a("v_lshrrev_b32 v5, 4, v2")
    a("s_lshl_b32 s15, s19, 4")
    a("v_add_u32 v4, s15, v4")
    a("s_movk_i32 s15, 1152")
    a("v_mul_lo_u32 v4, v4, s15")
    a("v_lshlrev_b32 v5, 3, v5")
    a("s_lshl_b32 s15, s16, 6")
    a("v_add_u32 v5, s15, v5")
    a("v_add_u32 v4, v4, v5")
    a("buffer_load_dwordx2 v[48:49], v4, s[24:27], 0 offen")
    a("buffer_load_dwordx2 v[50:51], v4, s[24:27], 0 offen offset:32")
    a("s_movk_i32 s15, 5760")
    a("buffer_load_dwordx2 v[52:53], v5, s[28:31], s15 offen")
    a("buffer_load_dwordx2 v[54:55], v5, s[28:31], s15 offen offset:32")
    a("s_waitcnt vmcnt(4)")
    for t in range(2):
        for q in range(4):
            r = 16 + t * 4 + q
            a(f"v_add_f32 v{r}, v{r}, v{r+8}")
            a(f"v_add_f32 v{r+16}, v{r+16}, v{r+24}")
            a(f"v_add_f32 v{r}, v{r}, v{r+16}")
    a("s_waitcnt vmcnt(0)")
    for t in range(2):
        b = 16 + t * 4
        a(f"v_cvt_pk_bf16_f32 v56, v{b}, v{b+1}")
        a(f"v_cvt_pk_bf16_f32 v57, v{b+2}, v{b+3}")
        for q in range(4):
            src = 56 + (q >> 1); gbr = 52 + 2 * t + (q >> 1); xr = 48 + 2 * t + (q >> 1)
            if q & 1:
                a(f"v_and_b32 v58, 0xffff0000, v{src}")
                a(f"v_and_b32 v59, 0xffff0000, v{gbr}")
                a(f"v_and_b32 v60, 0xffff0000, v{xr}")
            else:
                a(f"v_lshlrev_b32 v58, 16, v{src}")
                a(f"v_lshlrev_b32 v59, 16, v{gbr}")
                a(f"v_lshlrev_b32 v60, 16, v{xr}")
            a("v_mul_f32 v58, v58, v59")
            a("v_cvt_pk_bf16_f32 v58, v58, v58")
            a("v_lshlrev_b32 v58, 16, v58")
            a(f"v_add_f32 v{b+q}, v58, v60")
        a(f"v_cvt_pk_bf16_f32 v{62+2*t}, v{b}, v{b+1}")
        a(f"v_cvt_pk_bf16_f32 v{63+2*t}, v{b+2}, v{b+3}")
        a(f"buffer_store_dwordx2 v[{62+2*t}:{63+2*t}], v4, s[32:35], 0 offen offset:{32*t}")
    a.label("K5_END")
    a("s_endpgm")

def main(out):
    a = Asm()
    hdr = open("adaLN_cond__ssm_conv_h3__glu_gated_reglu__prompt.s.ref").read().split("; Override launch geometry")[0]
    launches = [
        ("k1_kernel", 252, 512, K1_LDS),
        ("k2_kernel", 128, 576, K2_LDS),
        ("k3_kernel", 256, 512, G_LDS),
        ("k4_kernel", 256, 512, G_LDS),
        ("k5_kernel", 576, 256, 0),
    ]
    txt = hdr
    for (n, g, b, l) in launches:
        txt += f"; @launch kernel={n} grid=({g},1,1) block=({b},1,1) lds={l}\n"
    txt += '.amdgcn_target "amdgcn-amd-amdhsa--gfx950"\n.text\n'
    global SV
    SV = 120
    gen_k1(a)
    SV = 128
    gen_k2(a)
    SV = 240
    gen_gemm(a, 1)
    gen_gemm(a, 2)
    gen_k5(a)
    a.label("CODE_END")
    a("s_endpgm")
    txt += a.text()
    txt += '.section .rodata,"a"\n'
    txt += kernel_desc("k1_kernel", 128)
    txt += kernel_desc("k2_kernel", 136 if STAMP else 128)
    txt += kernel_desc("k3_kernel", 248 if STAMP else 224)
    txt += kernel_desc("k4_kernel", 248 if STAMP else 144)
    txt += kernel_desc("k5_kernel", 72)
    open(out, "w").write(txt)

if __name__ == "__main__":
    for arg in sys.argv[2:]:
        if arg == "stamp": STAMP = True
        elif "=" in arg:
            k_, v_ = arg.split("="); globals()[k_] = eval(v_)
    main(sys.argv[1] if len(sys.argv) > 1 else "k.s")
```

```python
import sys

S = 2048; D = 576; F = 4608
WS_BASE = int(__import__("os").environ.get("WS_BASE", "0"), 0)
WS_MOD  = WS_BASE + 0x0
WS_Y2T  = WS_BASE + 0x10000
WS_H2F  = WS_BASE + 0x250000
WS_X1   = WS_BASE + 0x490000
WS_HID  = WS_BASE + 0x700000
WS_PART = WS_BASE + 0x1900000
NB_ACT = S * D * 2
WS_END = WS_PART + 4 * S * D * 4
PF_CODE = True
PF_TLB = False
PF_XCD = False
PF_LIST = [0,1,2,3]

class Asm:
    def __init__(self):
        self.lines = []
    def __call__(self, s):
        for l in s.split("\n"):
            l = l.strip()
            if l:
                self.lines.append("    " + l if not l.endswith(":") else l)
    def label(self, l):
        self.lines.append(l + ":")
    def text(self):
        return "\n".join(self.lines) + "\n"

def srd(a, d, base, nbytes, off=0):
    if off:
        a(f"s_add_u32 s{d}, s{base}, {off}")
        a(f"s_addc_u32 s{d+1}, s{base+1}, 0")
    else:
        a(f"s_mov_b32 s{d}, s{base}")
        a(f"s_mov_b32 s{d+1}, s{base+1}")
    a(f"s_mov_b32 s{d+2}, {nbytes}")
    a(f"s_mov_b32 s{d+3}, 0x00020000")

STAMP = False
SV = 120
SK = 0
def stamp(a, idx):
    if not STAMP: return
    if idx == 0:
        a("s_memrealtime s[100:101]")
        a("s_waitcnt lgkmcnt(0)")
        a(f"v_mov_b32 v{SV+7}, s100")
    a("s_memtime s[100:101]")
    a("s_waitcnt lgkmcnt(0)")
    a(f"v_mov_b32 v{SV+idx}, s100")
def stamp_flush(a, n, wg):
    if not STAMP: return
    lbl = f"STAMP_SKIP_{len(a.lines)}"
    a(f"s_cmp_lg_u32 s2, {wg}")
    a(f"s_cbranch_scc1 {lbl}")
    a("s_memrealtime s[100:101]")
    a("s_load_dwordx2 s[72:73], s[0:1], 112")
    a("s_waitcnt lgkmcnt(0)")
    a(f"s_add_u32 s72, s72, {0x8000 + SK*512}")
    a("s_addc_u32 s73, s73, 0")
    a("s_mov_b32 s74, 512")
    a("s_mov_b32 s75, 0x00020000")
    a("v_lshrrev_b32 v1, 6, v0")
    a("v_lshlrev_b32 v1, 5, v1")
    for i in range(n):
        a(f"v_sub_u32 v2, v{SV+i}, v{SV}")
        a(f"buffer_store_dword v2, v1, s[72:75], 0 offen offset:{4*i}")
    a(f"v_sub_u32 v2, s100, v{SV+7}")
    a(f"buffer_store_dword v2, v1, s[72:75], 0 offen offset:28")
    a("s_waitcnt vmcnt(0)")
    a.label(lbl)

def kernel_header(a, name):
    a.lines.append(f".globl {name}")
    a.lines.append(".p2align 8")
    a.lines.append(f".type {name},@function")
    a.label(name)

def kernel_desc(name, vgpr, sgpr=102, accum=None):
    if accum is None:
        accum = (vgpr + 3) // 4 * 4
    return f""".p2align 6
.amdhsa_kernel {name}
  .amdhsa_next_free_vgpr {vgpr}
  .amdhsa_next_free_sgpr {sgpr}
  .amdhsa_accum_offset {accum}
  .amdhsa_group_segment_fixed_size 0
  .amdhsa_kernarg_size 120
  .amdhsa_user_sgpr_count 2
  .amdhsa_user_sgpr_kernarg_segment_ptr 1
  .amdhsa_system_sgpr_workgroup_id_x 1
.end_amdhsa_kernel
"""

K1_CH = 24832
K1_CP = 4160
K1_U = 16640
K1_LDS = 4 * K1_CH + 4 * 1088

def gen_k1(a):
    kernel_header(a, "k1_kernel")
    a("s_cmp_ge_u32 s2, 252")
    a("s_cbranch_scc1 K1_END")
    a("s_cmp_ge_u32 s2, 144")
    a("s_cbranch_scc1 K1_MOD")
    stamp(a, 0)
    a("s_load_dwordx4 s[4:7], s[0:1], 8")
    a("s_load_dwordx4 s[8:11], s[0:1], 24")
    a("s_load_dwordx2 s[12:13], s[0:1], 40")
    a("s_load_dwordx2 s[14:15], s[0:1], 112")
    a("s_and_b32 s3, s2, 7")
    a("s_mul_i32 s3, s3, 18")
    a("s_lshr_b32 s16, s2, 3")
    a("s_add_u32 s3, s3, s16")
    a("v_lshrrev_b32 v1, 6, v0")
    a("v_and_b32 v2, 63, v0")
    a("s_nop 0")
    a("v_readfirstlane_b32 s17, v1")
    a("s_waitcnt lgkmcnt(0)")
    stamp(a, 1)
    srd(a, 20, 4, NB_ACT)
    srd(a, 24, 6, NB_ACT)
    srd(a, 28, 10, NB_ACT)
    srd(a, 32, 14, NB_ACT, WS_Y2T)
    a("s_cmp_ge_u32 s17, 4")
    a("s_cbranch_scc1 K1_LOADER")
    a("s_lshl_b32 s16, s3, 3")
    a("s_add_u32 s12, s12, s16")
    a("s_addc_u32 s13, s13, 0")
    a("s_load_dwordx2 s[44:45], s[12:13], 0")
    a("s_lshl_b32 s46, s3, 2")
    a("s_add_u32 s46, s46, s17")
    a("s_lshl_b32 s46, s46, 12")
    a(f"s_mul_i32 s47, s17, {K1_CH}")
    a("v_lshlrev_b32 v11, 4, v2")
    a("v_add_u32 v5, s46, v11")
    a("s_add_u32 m0, s47, 64")
    a("s_nop 0")
    for i in range(4):
        a(f"buffer_load_dwordx4 v5, s[28:31], 0 offen offset:{i*1024} lds")
    stamp(a, 2)
    for r in range(4):
        a(f"v_mov_b32 v{56+r}, 0")
    a("v_add_u32 v11, s47, v11")
    for i in range(3):
        a(f"ds_write_b128 v11, v[56:59] offset:{K1_U + 5120 + i*1024}")
    a("v_lshrrev_b32 v54, 2, v2")
    a(f"v_mul_u32_u24 v54, {K1_CP}, v54")
    a("v_and_b32 v55, 3, v2")
    a("v_lshlrev_b32 v55, 4, v55")
    a("v_add3_u32 v54, v54, v55, s47")
    a("s_mov_b64 exec, 0xffff")
    a("ds_write_b128 v54, v[56:59]")
    a("s_mov_b64 exec, -1")
    a("v_and_b32 v3, 15, v2")
    a("v_lshrrev_b32 v4, 4, v2")
    a("v_add_u32 v5, 1, v3")
    a("v_and_b32 v5, 3, v5")
    a("v_lshlrev_b32 v6, 3, v4")
    a("v_sub_u32 v6, v3, v6")
    a("v_sub_u32 v6, v6, v5")
    a("v_add_u32 v6, 25, v6")
    a("v_lshlrev_b32 v6, 1, v6")
    a(f"v_mul_u32_u24 v7, {K1_CP}, v5")
    a("v_add3_u32 v6, v6, v7, s47")
    a("v_sub_u32 v7, 15, v3")
    a("v_mul_u32_u24 v7, 160, v7")
    a("v_lshlrev_b32 v8, 4, v4")
    a("v_sub_u32 v7, v7, v8")
    a(f"v_add_u32 v7, {K1_U + 48}, v7")
    a("v_add_u32 v7, s47, v7")
    a("v_sub_u32 v8, 15, v3")
    a("v_mul_u32_u24 v8, 160, v8")
    a("v_lshlrev_b32 v9, 3, v4")
    a("v_sub_u32 v8, v8, v9")
    a(f"v_add_u32 v8, {K1_U + 24}, v8")
    a("v_add_u32 v8, s47, v8")
    a("s_mov_b32 s66, 73728")
    a("v_mul_lo_u32 v9, v3, s66")
    a("v_lshlrev_b32 v10, 3, v4")
    a("s_lshr_b32 s66, s46, 7")
    a("v_add3_u32 v9, v9, v10, s66")
    ACC = 16
    for r in range(32):
        a(f"v_mov_b32 v{ACC+r}, 0")
    a("s_waitcnt lgkmcnt(0)")
    a("s_cmp_lt_u32 s17, 2")
    a("s_cselect_b32 s64, s44, s45")
    a("s_and_b32 s65, s17, 1")
    a("s_cmp_eq_u32 s65, 0")
    a("s_cselect_b32 s65, 16, 0")
    a("s_lshl_b32 s64, s64, s65")
    a("s_and_b32 s64, s64, 0xffff0000")
    a("s_waitcnt vmcnt(0)")
    bases = [-1, 63, 127, 191, 192]
    for i, ub in enumerate(bases):
        r = 48 + 8 * i
        a(f"ds_read_b128 v[{r}:{r+3}], v11 offset:{64 + ub*16}")
        a(f"ds_read_b64 v[{r+4}:{r+5}], v11 offset:{64 + ub*16 + 16}")
    for i, ub in enumerate(bases):
        r = 48 + 8 * i
        a(f"s_waitcnt lgkmcnt({min(15, 2*(4-i) + 3*i)})")
        t = 96 + 12 * (i & 1)
        for q in range(4):
            a(f"v_alignbit_b32 v{t+q}, v{r+q+1}, v{r+q}, 16")
            a(f"v_mov_b32 v{t+4+q}, v{r+q+1}")
            a(f"v_alignbit_b32 v{t+8+q}, v{r+q+2}, v{r+q+1}, 16")
        for j in range(1, 4):
            a(f"ds_write_b128 v11, v[{t+4*(j-1)}:{t+4*(j-1)+3}] offset:{j*K1_CP + 64 + ub*16}")
    a("s_waitcnt lgkmcnt(0)")
    stamp(a, 3)
    AR = 48
    BR = 96
    lg = Track(a, "lgkmcnt", 15)
    phases = []
    for q in range(8):
        st = []
        if q < 4:
            st += [(0, d) for d in range(12 - 4*q, 16 - 4*q)]
        st += [(1, d) for d in range(28 - 4*q, 32 - 4*q)]
        phases.append(st)
    slot_of = {}
    state = {"next": 0, "cnt": 0}
    def a_loads(p, key):
        sl = state["next"] % 12; state["next"] += 1
        slot_of[(key, p)] = sl
        r = AR + sl * 4
        return [(f"ds_read_b64 v[{r}:{r+1}], v6 offset:{32*p}", ("A", key, p)),
                (f"ds_read_b64 v[{r+2}:{r+3}], v6 offset:{32*p+8}", ("A", key, p))]
    def step_loads(steps, i, key, a_only=False, b_only=False):
        nt, dl = steps[i]
        L = []
        if not a_only:
            for ks in range(2):
                r = BR + (i & 1) * 8 + ks * 4
                L.append((f"ds_read_b128 v[{r}:{r+3}], v7 offset:{(16 - 16*nt + dl)*160 + 64 - 64*ks}", ("B", key, i)))
        if not b_only:
            run_start = (i % 4 == 0)
            ps = range(4 * dl - 2, 4 * dl + 4) if run_start else range(4 * dl, 4 * dl + 4)
            for p in ps:
                if p >= 0:
                    L += a_loads(p, (key, i // 4))
        return L
    def emit(L):
        for (t, tag) in L:
            a(t); lg.issue(tag)
    for ph, steps in enumerate(phases):
        emit(step_loads(steps, 0, ph, a_only=True))
        a("s_barrier")
        if ph == 0: stamp(a, 4)
        if ph == 7: stamp(a, 5)
        emit(step_loads(steps, 0, ph, b_only=True))
        for i, (nt, dl) in enumerate(steps):
            nxt = step_loads(steps, i + 1, ph) if i + 1 < len(steps) else []
            mf = []
            for ks in (1, 0):
                for mt in range(4):
                    p = 4 * dl + mt - 2 * ks
                    if p < 0: continue
                    ac = ACC + (nt * 4 + mt) * 4
                    ar = AR + slot_of[((ph, i // 4), p)] * 4
                    br = BR + (i & 1) * 8 + ks * 4
                    mf.append((f"v_mfma_f32_16x16x32_bf16 v[{ac}:{ac+3}], v[{ar}:{ar+3}], v[{br}:{br+3}], v[{ac}:{ac+3}]", p))
            pre = nxt[:2]; rest = nxt[2:]
            emit(pre)
            lg.need(("B", ph, i))
            lg.need(("A", (ph, i // 4), 4 * dl + 3))
            k = 0
            for j, (m, p) in enumerate(mf):
                a(m)
                n_to = (len(rest) * (j + 1) + len(mf) - 1) // len(mf)
                while k < min(n_to, len(rest)):
                    emit([rest[k]]); k += 1
            while k < len(rest):
                emit([rest[k]]); k += 1
    for nt in range(2):
        for mt in range(4):
            r = 48 + (nt * 4 + mt) * 2
            a(f"ds_read_b64 v[{r}:{r+1}], v8 offset:{(16-16*nt)*160 + 96 - 32*mt}")
    a("s_nop 7")
    a("s_waitcnt lgkmcnt(0)")
    for nt in range(2):
        for mt in range(4):
            r = 48 + (nt * 4 + mt) * 2
            ac = ACC + (nt * 4 + mt) * 4
            a(f"v_and_b32 v64, 0xffff0000, v{r+1}")
            a(f"v_lshlrev_b32 v65, 16, v{r+1}")
            a(f"v_and_b32 v66, 0xffff0000, v{r}")
            a(f"v_lshlrev_b32 v67, 16, v{r}")
            for q in range(4):
                a(f"v_fmac_f32 v{ac+q}, s64, v{64+q}")
            a(f"v_cvt_pk_bf16_f32 v{r}, v{ac}, v{ac+1}")
            a(f"v_cvt_pk_bf16_f32 v{r+1}, v{ac+2}, v{ac+3}")
            a(f"s_mov_b32 s66, {(nt*64+mt)*18432}")
            a(f"buffer_store_dwordx2 v[{r}:{r+1}], v9, s[32:35], s66 offen")
    stamp(a, 6)
    stamp_flush(a, 7, 77)
    a("s_endpgm")
    a.label("K1_LOADER")
    NCK = 8
    a("s_sub_u32 s17, s17, 4")
    a("s_lshl_b32 s16, s3, 3")
    a("s_mul_i32 s18, s17, 73728")
    a("s_add_u32 s18, s18, s16")
    a("s_add_u32 s42, s4, s18")
    a("s_addc_u32 s43, s5, 0")
    for i in range(6):
        a(f"s_mov_b32 s{48+i}, 0")
    a("s_cmp_eq_u32 s17, 0")
    a("s_cbranch_scc1 K1_NOHALO")
    a("s_sub_u32 s44, s42, 3456")
    a("s_subb_u32 s45, s43, 0")
    for i in range(3):
        a(f"s_load_dwordx2 s[{48+2*i}:{49+2*i}], s[44:45], {i*1152}")
    a.label("K1_NOHALO")
    srd(a, 36, 8, D * 8)
    a("s_lshl_b32 s18, s17, 6")
    a("v_add_u32 v8, s18, v2")
    a("s_movk_i32 s18, 1152")
    a("v_mul_lo_u32 v8, v8, s18")
    a("v_add_u32 v8, s16, v8")
    vm = Track(a, "vmcnt", 63)
    def issue_chunk(c):
        b = 16 + (c % 3) * 4
        a(f"s_mov_b32 s40, {c*294912}")
        a(f"buffer_load_dwordx2 v[{b}:{b+1}], v8, s[20:23], s40 offen"); vm.issue(f"c{c}")
        a(f"buffer_load_dwordx2 v[{b+2}:{b+3}], v8, s[24:27], s40 offen"); vm.issue(f"c{c}")
    issue_chunk(0)
    a("v_and_b32 v3, 7, v2")
    a("v_bfe_u32 v4, v2, 3, 2")
    a("s_lshl_b32 s18, s3, 5")
    a("v_lshl_add_u32 v5, v4, 3, s18")
    a("buffer_load_dwordx2 v[6:7], v5, s[36:39], 0 offen")
    vm.issue("taps")
    for c in range(1, NCK):
        a(f"s_add_u32 s44, s42, {c*294912 - 3456}")
        a(f"s_addc_u32 s45, s43, 0")
        for i in range(3):
            a(f"s_load_dwordx2 s[{48+6*c+2*i}:{49+6*c+2*i}], s[44:45], {i*1152}")
    a(f"s_mul_i32 s46, s17, 1088")
    a(f"s_add_u32 s46, s46, {4*K1_CH}")
    a("v_lshlrev_b32 v9, 2, v2")
    a("v_add_u32 v9, s46, v9")
    a("v_and_b32 v10, 1, v2")
    a("v_mul_u32_u24 v10, 272, v10")
    a("v_lshrrev_b32 v11, 1, v2")
    a("v_lshl_add_u32 v10, v11, 2, v10")
    a("v_add_u32 v10, 4, v10")
    a("v_add_u32 v10, s46, v10")
    a("v_lshrrev_b32 v11, 1, v4")
    a("v_mul_u32_u24 v12, 272, v11")
    a("v_lshl_add_u32 v12, v3, 5, v12")
    a("v_add_u32 v12, s46, v12")
    a("v_lshlrev_b32 v13, 8, v11")
    a("v_lshl_add_u32 v13, v3, 5, v13")
    a("v_add_u32 v13, s46, v13")
    a("v_and_b32 v14, 1, v4")
    a("v_mul_u32_u24 v14, 0x0202, v14")
    a("v_lshlrev_b32 v14, 16, v14")
    a("v_add_u32 v14, 0x01000c0c, v14")
    a("s_sub_u32 s18, 3, s17")
    a("s_mul_i32 s18, s18, 160")
    a(f"s_add_u32 s18, s18, {K1_U + 112}")
    a(f"s_mov_b32 s19, {K1_CH}")
    a("v_mul_lo_u32 v60, v4, s19")
    a("v_lshlrev_b32 v61, 4, v3")
    a("v_sub_u32 v60, v60, v61")
    a("v_add_u32 v60, s18, v60")
    issue_chunk(1)
    stamp(a, 2)
    vm.need("taps")
    a("v_lshlrev_b32 v56, 16, v6")
    a("v_and_b32 v57, 0xffff0000, v6")
    a("v_lshlrev_b32 v58, 16, v7")
    a("v_and_b32 v59, 0xffff0000, v7")
    a("s_waitcnt lgkmcnt(0)")
    stamp(a, 3)
    for ck in range(NCK):
        b = 16 + (ck % 3) * 4
        for j in range(6):
            a(f"v_writelane_b32 v62, s{48+6*ck+j}, {j}")
        vm.need(f"c{ck}")
        if ck == 0: stamp(a, 4)
        if ck == 1: stamp(a, 6)
        a(f"ds_write2_b32 v9, v{b}, v{b+1} offset0:4 offset1:72")
        a(f"ds_write2_b32 v9, v{b+2}, v{b+3} offset0:136 offset1:200")
        a("s_mov_b64 exec, 0x3f")
        a("ds_write_b32 v10, v62")
        a("s_mov_b64 exec, -1")
        a("s_waitcnt lgkmcnt(0)")
        for i in range(3):
            a(f"ds_read_b128 v[{32+4*i}:{35+4*i}], v12 offset:{16*i}")
        for i in range(2):
            a(f"ds_read_b128 v[{44+4*i}:{47+4*i}], v13 offset:{544+16*i}")
        a("s_waitcnt lgkmcnt(2)")
        for i in range(11):
            a(f"v_perm_b32 v{64+i}, v{33+i}, v{33+i}, v14")
        a("s_waitcnt lgkmcnt(0)")
        for i in range(8):
            a(f"v_perm_b32 v{76+i}, v{44+i}, v{44+i}, v14")
        for i in range(8):
            a(f"v_mul_f32 v{84+i}, v59, v{64+i}")
            a(f"v_fmac_f32 v{84+i}, v58, v{64+i+1}")
            a(f"v_fmac_f32 v{84+i}, v57, v{64+i+2}")
            a(f"v_fmac_f32 v{84+i}, v56, v{64+i+3}")
            a(f"v_mul_f32 v{84+i}, v{84+i}, v{76+i}")
        for q in range(4):
            a(f"v_cvt_pk_bf16_f32 v{92+q}, v{84+7-2*q}, v{84+6-2*q}")
        a(f"ds_write_b128 v60, v[92:95] offset:{(NCK-1-ck)*640}")
        a("s_waitcnt lgkmcnt(0)")
        if ck == 0: stamp(a, 5)
        a("s_barrier")
        if ck + 2 < NCK:
            issue_chunk(ck + 2)
    stamp_flush(a, 7, 77)
    a("s_endpgm")
    a.label("K1_MOD")
    a("s_load_dwordx4 s[4:7], s[0:1], 80")
    a("s_load_dwordx2 s[8:9], s[0:1], 112")
    a("s_load_dwordx4 s[40:43], s[0:1], 56")
    a("s_load_dwordx2 s[44:45], s[0:1], 72")
    a("s_load_dwordx2 s[46:47], s[0:1], 0")
    a("s_load_dwordx4 s[48:51], s[0:1], 8")
    a("s_sub_u32 s3, s2, 144")
    a("v_lshrrev_b32 v1, 6, v0")
    a("s_nop 0")
    a("v_readfirstlane_b32 s17, v1")
    a("s_cmp_ge_u32 s17, 4")
    a("s_cbranch_scc1 K1_PF")
    a("v_and_b32 v1, 3, v0")
    a("v_lshrrev_b32 v2, 2, v0")
    a("v_mul_u32_u24 v3, 18, v2")
    a("s_mov_b32 s16, 62208")
    a("v_mul_lo_u32 v4, v2, s16")
    a("v_lshlrev_b32 v5, 4, v1")
    a("s_lshl_b32 s17, s3, 6")
    a("v_add3_u32 v4, v4, v5, s17")
    a("s_waitcnt lgkmcnt(0)")
    srd(a, 20, 4, D * 2)
    srd(a, 24, 6, D * 6 * D * 2)
    srd(a, 28, 8, 6 * D * 2, WS_MOD)
    for i in range(9):
        a(f"buffer_load_ushort v{10+i}, v3, s[20:23], 0 offen offset:{2*i}")
    for i in range(9):
        a(f"s_mov_b32 s18, {i*6912}")
        a(f"buffer_load_dwordx4 v[{20+4*i}:{23+4*i}], v4, s[24:27], s18 offen")
    for r in range(8):
        a(f"v_mov_b32 v{60+r}, 0")
    a("s_waitcnt vmcnt(9)")
    a("s_mov_b32 s19, 0xbfb8aa3b")
    for i in range(9):
        a(f"v_lshlrev_b32 v{10+i}, 16, v{10+i}")
        a(f"v_mul_f32 v70, s19, v{10+i}")
        a("v_exp_f32 v70, v70")
        a("s_nop 0")
        a("v_add_f32 v70, 1.0, v70")
        a("v_rcp_f32 v70, v70")
        a("s_nop 0")
        a(f"v_mul_f32 v70, v70, v{10+i}")
        a("v_cvt_pk_bf16_f32 v70, v70, v70")
        a(f"v_lshlrev_b32 v{10+i}, 16, v70")
    for i in range(9):
        a(f"s_waitcnt vmcnt({8-i})")
        for q in range(4):
            a(f"v_lshlrev_b32 v70, 16, v{20+4*i+q}")
            a(f"v_and_b32 v71, 0xffff0000, v{20+4*i+q}")
            a(f"v_fmac_f32 v{60+2*q}, v70, v{10+i}")
            a(f"v_fmac_f32 v{61+2*q}, v71, v{10+i}")
    a("v_lshlrev_b32 v5, 5, v0")
    a("ds_write_b128 v5, v[60:63]")
    a("ds_write_b128 v5, v[64:67] offset:16")
    a("s_waitcnt lgkmcnt(0)")
    a("s_barrier")
    a("v_and_b32 v6, 31, v0")
    a("v_lshrrev_b32 v7, 5, v0")
    a("v_lshlrev_b32 v8, 10, v7")
    a("v_lshl_add_u32 v8, v6, 2, v8")
    for i in range(8):
        a(f"ds_read_b32 v{10+i}, v8 offset:{i*128}")
    a("s_waitcnt lgkmcnt(0)")
    for i in range(1, 8):
        a(f"v_add_f32 v10, v10, v{10+i}")
    a("v_lshlrev_b32 v9, 2, v0")
    a("ds_write_b32 v9, v10 offset:8192")
    a("s_waitcnt lgkmcnt(0)")
    a("s_barrier")
    a("v_lshlrev_b32 v8, 2, v6")
    for i in range(8):
        a(f"ds_read_b32 v{10+i}, v8 offset:{8192 + i*128}")
    a("s_waitcnt lgkmcnt(0)")
    for i in range(1, 8):
        a(f"v_add_f32 v10, v10, v{10+i}")
    a("v_cvt_pk_bf16_f32 v10, v10, v10")
    a("v_lshlrev_b32 v9, 1, v6")
    a("v_add_u32 v9, s17, v9")
    a("v_cmp_gt_u32 vcc, 32, v0")
    a("s_and_saveexec_b64 s[32:33], vcc")
    a("s_cbranch_execz K1_END")
    a("buffer_store_short v10, v9, s[28:31], 0 offen")
    a("s_endpgm")
    a.label("K1_PF")
    a("v_subrev_u32 v1, 256, v0")
    a("s_lshl_b32 s16, s3, 8")
    a("v_add_u32 v1, s16, v1")
    a("v_lshlrev_b32 v1, 4, v1")
    a("s_waitcnt lgkmcnt(0)")
    srd(a, 20, 46, NB_ACT)
    srd(a, 24, 40, D * F * 2)
    srd(a, 28, 42, D * F * 2)
    srd(a, 32, 44, D * F * 2)
    srd(a, 52, 48, NB_ACT)
    srd(a, 56, 50, NB_ACT)
    a("v_subrev_u32 v2, 256, v0")
    a("s_lshr_b32 s16, s3, 3")
    a("s_lshl_b32 s16, s16, 8")
    a("v_add_u32 v2, s16, v2")
    a("v_lshrrev_b32 v3, 1, v2")
    a("s_movk_i32 s16, 1152")
    a("v_mul_lo_u32 v3, v3, s16")
    a("v_and_b32 v2, 1, v2")
    a("v_mul_u32_u24 v2, 140, v2")
    a("s_and_b32 s16, s3, 7")
    a("s_mul_i32 s16, s16, 144")
    a("v_add3_u32 v3, v3, v2, s16")
    a(f"s_mov_b32 s18, {1664*1152}")
    a("buffer_load_dword v70, v3, s[52:55], 0 offen")
    a("buffer_load_dword v71, v3, s[56:59], 0 offen")
    a("buffer_load_dword v72, v3, s[52:55], s18 offen")
    a("buffer_load_dword v73, v3, s[56:59], s18 offen")
    if PF_CODE:
        a("s_getpc_b64 s[60:61]")
        a.label("K1_PC")
        a("s_sub_u32 s60, s60, K1_PC-k1_kernel")
        a("s_subb_u32 s61, s61, 0")
        a("s_mov_b32 s62, CODE_END-k1_kernel")
        a("s_mov_b32 s63, 0x00020000")
        a("v_subrev_u32 v2, 256, v0")
        a("s_lshr_b32 s16, s3, 3")
        a("s_lshl_b32 s16, s16, 8")
        a("v_add_u32 v2, s16, v2")
        a("v_lshlrev_b32 v3, 4, v2")
        a("buffer_load_dwordx4 v[76:79], v3, s[60:63], 0 offen")
        a("s_mov_b32 s18, 53248")
        a("buffer_load_dwordx4 v[80:83], v3, s[60:63], s18 offen")
    if PF_TLB:
        srd(a, 64, 8, WS_END)
        a("v_lshlrev_b32 v3, 15, v2")
        a("buffer_load_dword v84, v3, s[64:67], 0 offen")
    PASS = 108 * 256 * 16
    n = 0
    lin = [((20, NB_ACT), (24, D*F*2), (28, D*F*2), (32, D*F*2))[i] for i in PF_LIST]
    for (sr, nb) in lin:
        for i in range((nb + PASS - 1) // PASS):
            a(f"s_mov_b32 s18, {i*PASS}")
            r = 4 + 4 * (n % 16); n += 1
            a(f"buffer_load_dwordx4 v[{r}:{r+3}], v1, s[{sr}:{sr+3}], s18 offen")
    if PF_XCD:
        a("v_subrev_u32 v2, 256, v0")
        a("s_lshr_b32 s16, s3, 3")
        a("s_lshl_b32 s16, s16, 8")
        a("v_add_u32 v2, s16, v2")
        a("v_mul_u32_u24 v3, 3641, v2")
        a("v_lshrrev_b32 v3, 19, v3")
        a("v_mul_u32_u24 v74, 144, v3")
        a("v_sub_u32 v74, v2, v74")
        a("v_mul_u32_u24 v3, 9216, v3")
        a("v_lshl_add_u32 v3, v74, 4, v3")
        a("s_and_b32 s16, s3, 7")
        a("s_lshr_b32 s16, s16, 1")
        a("s_mul_i32 s16, s16, 2304")
        a("v_add_u32 v3, s16, v3")
        for i in range(26):
            a(f"s_mov_b32 s18, {i*23*9216}")
            for sr in (24, 28):
                r = 4 + 4 * (n % 16); n += 1
                a(f"buffer_load_dwordx4 v[{r}:{r+3}], v3, s[{sr}:{sr+3}], s18 offen")
    a("s_waitcnt vmcnt(0)")
    a.label("K1_END")
    a("s_endpgm")

class Track:
    def __init__(self, a, name, maxn):
        self.a = a; self.name = name; self.maxn = maxn
        self.q = []
    def issue(self, tag):
        self.q.append(tag)
    def need(self, tag):
        idx = [i for i, t in enumerate(self.q) if t == tag]
        if not idx: return
        n = len(self.q) - 1 - idx[-1]
        n = min(n, self.maxn)
        self.a(f"s_waitcnt {self.name}({n})")
        self.q = self.q[len(self.q) - n:] if n else []
    def drain(self):
        self.a(f"s_waitcnt {self.name}(0)")
        self.q = []

def bf16_round(a, v, tmp=None):
    a(f"v_cvt_pk_bf16_f32 v{v}, v{v}, v{v}")
    a(f"v_lshlrev_b32 v{v}, 16, v{v}")

K2_LDS = 18432 + 4096
def gen_k2(a):
    kernel_header(a, "k2_kernel")
    a("s_cmp_ge_u32 s2, 128")
    a("s_cbranch_scc1 K2_END")
    a("s_load_dwordx2 s[4:5], s[0:1], 0")
    a("s_load_dwordx2 s[6:7], s[0:1], 112")
    a("v_lshrrev_b32 v1, 6, v0")
    a("v_and_b32 v2, 63, v0")
    a("s_nop 0")
    a("v_readfirstlane_b32 s17, v1")
    a("v_and_b32 v3, 15, v2")
    a("v_lshrrev_b32 v4, 4, v2")
    a("s_waitcnt lgkmcnt(0)")
    srd(a, 20, 4, NB_ACT)
    srd(a, 24, 6, NB_ACT, WS_Y2T)
    srd(a, 28, 6, 6 * D * 2, WS_MOD)
    srd(a, 32, 6, NB_ACT, WS_X1)
    srd(a, 36, 6, NB_ACT, WS_H2F)
    a("v_lshrrev_b32 v5, 1, v2")
    a("v_lshrrev_b32 v6, 4, v5")
    a("v_bfe_u32 v7, v5, 2, 2")
    a("v_and_b32 v8, 3, v5")
    a("v_lshlrev_b32 v7, 3, v7")
    a("v_lshl_add_u32 v7, v6, 2, v7")
    a("v_add_u32 v7, v7, v8")
    a("v_lshlrev_b32 v7, 5, v7")
    a("v_and_b32 v8, 1, v2")
    a("v_lshl_add_u32 v7, v8, 4, v7")
    a("s_mul_i32 s18, s2, 18432")
    a("s_lshl_b32 s19, s17, 11")
    a("s_add_u32 s18, s18, s19")
    a("s_mov_b32 m0, s19")
    a("s_nop 0")
    a("buffer_load_dwordx4 v7, s[24:27], s18 offen lds")
    a("buffer_load_dwordx4 v7, s[24:27], s18 offen offset:1024 lds")
    a("s_lshl_b32 s18, s2, 4")
    a("v_add_u32 v8, s18, v3")
    a("s_movk_i32 s18, 1152")
    a("v_mul_lo_u32 v8, v8, s18")
    a("v_lshlrev_b32 v9, 4, v4")
    a("s_lshl_b32 s18, s17, 7")
    a("v_add_u32 v9, s18, v9")
    a("v_add_u32 v8, v8, v9")
    a("buffer_load_dwordx4 v[12:15], v8, s[20:23], 0 offen")
    a("buffer_load_dwordx4 v[16:19], v8, s[20:23], 0 offen offset:64")
    for p in range(5):
        for kk in range(2):
            r = 20 + 8 * p + 4 * kk
            if p * 1152 + 64 * kk < 4096:
                a(f"buffer_load_dwordx4 v[{r}:{r+3}], v9, s[28:31], 0 offen offset:{p*1152 + 64*kk}")
            else:
                a("s_movk_i32 s18, 4608")
                a(f"buffer_load_dwordx4 v[{r}:{r+3}], v9, s[28:31], s18 offen offset:{64*kk}")
    a("v_lshlrev_b32 v10, 3, v2")
    a("v_add_u32 v10, s19, v10")
    a("v_lshlrev_b32 v11, 3, v3")
    a("v_add_u32 v11, 18432, v11")
    a("s_lshl_b32 s18, s17, 7")
    a("v_add_u32 v60, s18, v11")
    a("s_waitcnt vmcnt(10)")
    a("ds_read_b64_tr_b16 v[96:97], v10")
    a("ds_read_b64_tr_b16 v[98:99], v10 offset:512")
    a("ds_read_b64_tr_b16 v[100:101], v10 offset:1024")
    a("ds_read_b64_tr_b16 v[102:103], v10 offset:1536")
    for i in range(8):
        a(f"v_lshlrev_b32 v{64+2*i}, 16, v{12+i}")
        a(f"v_and_b32 v{65+2*i}, 0xffff0000, v{12+i}")
    def stats(src, rnd):
        a(f"v_add_f32 v62, v{src}, v{src+1}")
        a(f"v_mul_f32 v63, v{src}, v{src}")
        a(f"v_fmac_f32 v63, v{src+1}, v{src+1}")
        for i in range(2, 16):
            a(f"v_add_f32 v62, v62, v{src+i}")
            a(f"v_fmac_f32 v63, v{src+i}, v{src+i}")
        for sw in ("v_permlane16_swap_b32", "v_permlane32_swap_b32"):
            a("v_mov_b32 v104, v62")
            a("v_mov_b32 v105, v63")
            a("s_nop 1")
            a(f"{sw} v62, v104")
            a(f"{sw} v63, v105")
            a("s_nop 1")
            a("v_add_f32 v62, v62, v104")
            a("v_add_f32 v63, v63, v105")
        a(f"ds_write_b64 v60, v[62:63] offset:{rnd*2048}")
        a("s_waitcnt lgkmcnt(0)")
        a("s_barrier")
        for w in range(9):
            a(f"ds_read_b64 v[{106+2*w}:{107+2*w}], v11 offset:{rnd*2048 + w*128}")
        a("s_waitcnt lgkmcnt(0)")
        for w in range(1, 9):
            a(f"v_add_f32 v106, v106, v{106+2*w}")
            a(f"v_add_f32 v107, v107, v{107+2*w}")
        a("s_mov_b32 s18, 0x3ae38e39")
        a("v_mul_f32 v62, s18, v106")
        a("v_mul_f32 v63, s18, v107")
        a("v_fma_f32 v63, -v62, v62, v63")
        a("v_max_f32 v63, 0, v63")
        bf16_round(a, 62)
        bf16_round(a, 63)
        a("v_add_f32 v63, 0x3727c5ac, v63")
        bf16_round(a, 63)
        a("v_sqrt_f32 v63, v63")
        a("s_nop 0")
        bf16_round(a, 63)
        a("v_rcp_f32 v63, v63")
        a("s_nop 0")
    stats(64, 0)
    a("s_waitcnt vmcnt(0)")
    def punpack(dst, p, e):
        r = 20 + 8 * p + 4 * (e >> 3) + ((e & 7) >> 1)
        if e & 1: a(f"v_and_b32 v{dst}, 0xffff0000, v{r}")
        else: a(f"v_lshlrev_b32 v{dst}, 16, v{r}")
    for e in range(16):
        x = 64 + e
        yr = 96 + (e >> 1)
        punpack(104, 1, e)
        punpack(105, 0, e)
        punpack(106, 2, e)
        if e & 1: a(f"v_and_b32 v107, 0xffff0000, v{yr}")
        else: a(f"v_lshlrev_b32 v107, 16, v{yr}")
        a("v_add_f32 v104, 1.0, v104")
        a(f"v_sub_f32 v108, v{x}, v62")
        a("v_mul_f32 v108, v108, v63")
        a("v_fma_f32 v108, v108, v104, v105")
        a("v_mul_f32 v108, v108, v107")
        a(f"v_fma_f32 v{80+e}, v108, v106, v{x}")
    for i in range(8):
        a(f"v_cvt_pk_bf16_f32 v{12+i}, v{80+2*i}, v{81+2*i}")
    for i in range(8):
        a(f"v_lshlrev_b32 v{80+2*i}, 16, v{12+i}")
        a(f"v_and_b32 v{81+2*i}, 0xffff0000, v{12+i}")
    a("buffer_store_dwordx4 v[12:15], v8, s[32:35], 0 offen")
    a("buffer_store_dwordx4 v[16:19], v8, s[32:35], 0 offen offset:64")
    stats(80, 1)
    for e in range(16):
        punpack(104, 4, e)
        punpack(105, 3, e)
        a("v_add_f32 v104, 1.0, v104")
        a(f"v_sub_f32 v108, v{80+e}, v62")
        a("v_mul_f32 v108, v108, v63")
        a(f"v_fma_f32 v{64+e}, v108, v104, v105")
    for i in range(8):
        a(f"v_cvt_pk_bf16_f32 v{96+i}, v{64+2*i}, v{65+2*i}")
    a("s_mul_i32 s18, s2, 18432")
    a("s_add_u32 s18, s18, s19")
    a("v_lshlrev_b32 v9, 4, v2")
    a("buffer_store_dwordx4 v[96:99], v9, s[36:39], s18 offen")
    a("buffer_store_dwordx4 v[100:103], v9, s[36:39], s18 offen offset:1024")
    a.label("K2_END")
    a("s_endpgm")

ST_BYTES = 34816
G_LDS = 4 * ST_BYTES
NST = 18
def gen_gemm(a, mode):
    nm = "k3" if mode == 1 else "k4"
    kernel_header(a, nm + "_kernel")
    a("s_cmp_ge_u32 s2, 256")
    a(f"s_cbranch_scc1 {nm.upper()}_END")
    stamp(a, 0)
    if mode == 1:
        a("s_load_dwordx4 s[4:7], s[0:1], 56")
    else:
        a("s_load_dwordx2 s[4:5], s[0:1], 72")
    a("s_load_dwordx2 s[8:9], s[0:1], 112")
    a("v_lshrrev_b32 v1, 6, v0")
    a("v_and_b32 v2, 63, v0")
    a("s_nop 0")
    a("v_readfirstlane_b32 s17, v1")
    a("s_and_b32 s10, s2, 7")
    a("s_lshr_b32 s11, s2, 3")
    a("s_and_b32 s12, s10, 1")
    a("s_lshr_b32 s13, s10, 1")
    if mode == 1:
        a("s_lshl_b32 s12, s12, 2")
        a("s_and_b32 s14, s11, 3")
        a("s_add_u32 s12, s12, s14")
        a("s_lshl_b32 s13, s13, 3")
        a("s_lshr_b32 s14, s11, 2")
        a("s_add_u32 s13, s13, s14")
    else:
        a("s_lshl_b32 s12, s12, 3")
        a("s_and_b32 s14, s11, 7")
        a("s_add_u32 s12, s12, s14")
        a("s_lshr_b32 s14, s11, 3")
    a("s_and_b32 s15, s17, 3")
    a("s_waitcnt lgkmcnt(0)")
    if mode == 1:
        srd(a, 20, 4, D * F * 2)
        srd(a, 24, 6, D * F * 2)
        srd(a, 28, 8, NB_ACT, WS_H2F)
        srd(a, 32, 8, S * F * 2, WS_HID)
        a("s_cmp_lt_u32 s15, 2")
        a("s_cselect_b32 s36, s4, s6")
        a("s_cselect_b32 s37, s5, s7")
        a(f"s_mov_b32 s38, {D*F*2}")
        a("s_mov_b32 s39, 0x00020000")
        pitch = 9216
    else:
        srd(a, 20, 4, D * F * 2)
        srd(a, 28, 8, S * F * 2, WS_HID)
        srd(a, 32, 8, 4 * S * D * 4, WS_PART)
        pitch = 1152
    a("v_lshlrev_b32 v3, 4, v2")
    if mode == 1:
        a("s_lshl_b32 s18, s15, 12")
    else:
        a("s_and_b32 s18, s15, 1")
        a("s_lshl_b32 s18, s18, 13")
        a("s_lshr_b32 s19, s15, 1")
        a("s_lshl_b32 s19, s19, 12")
        a("s_add_u32 s18, s18, s19")
    a("v_add_u32 v4, s18, v3")
    a("v_lshrrev_b32 v5, 2, v2")
    a("v_mul_u32_u24 v5, 288, v5")
    a("v_and_b32 v6, 3, v2")
    a("v_lshl_add_u32 v5, v6, 3, v5")
    a("v_add_u32 v5, 16384, v5")
    if mode == 1:
        a("s_and_b32 s16, s13, 1")
        a("s_lshl_b32 s18, s16, 5")
        a("v_add_u32 v6, s18, v5")
        a("s_cmp_eq_u32 s16, 0")
        a("s_cselect_b32 s18, 256, 0")
        a("v_add_u32 v7, s18, v5")
    else:
        a("s_and_b32 s18, s15, 1")
        a("s_mul_i32 s18, s18, 9216")
        a("v_add_u32 v6, s18, v5")
    a("s_cmp_ge_u32 s17, 4")
    a(f"s_cbranch_scc1 {nm.upper()}_TG1")
    for tg in range(2):
        if tg == 1:
            a.label(f"{nm.upper()}_TG1")
        gemm_body(a, mode, tg, pitch)
    a.label(f"{nm.upper()}_END")
    a("s_endpgm")

def gemm_body(a, mode, tg, pitch):
    nt = 5 if tg == 0 else 4
    vm = Track(a, "vmcnt", 63)
    lg = Track(a, "lgkmcnt", 15)
    if tg == 0:
        a("v_mov_b32 v8, v3")
        for i in range(4):
            if mode == 1:
                a("s_lshl_b32 s18, s12, 4")
                a("s_lshl_b32 s19, s15, 2")
                a("s_add_u32 s18, s18, s19")
                a(f"s_add_u32 s18, s18, {i}")
                a(f"s_mul_i32 s{40+i}, s18, 18432")
            else:
                a("s_and_b32 s18, s15, 1")
                a("s_lshl_b32 s18, s18, 2")
                a("s_lshl_b32 s19, s12, 3")
                a("s_add_u32 s18, s18, s19")
                a(f"s_add_u32 s18, s18, {i}")
                a("s_mul_i32 s18, s18, 144")
                a("s_mul_i32 s19, s13, 36")
                a("s_add_u32 s18, s18, s19")
                a("s_lshr_b32 s19, s15, 1")
                a("s_add_u32 s18, s18, s19")
                a(f"s_lshl_b32 s{40+i}, s18, 10")
        a("s_lshl_b32 s44, s15, 12")
        astep = 1024 if mode == 1 else 2048
        def dma(st):
            base = (st & 3) * ST_BYTES
            for i in range(4):
                a(f"s_add_u32 m0, s44, {base + i*1024}")
                a("s_nop 0")
                a(f"buffer_load_dwordx4 v8, s[28:31], s{40+i} offen lds")
                vm.issue(("d", st))
            a(f"v_add_u32 v8, {astep}, v8")
    else:
        def qaddr(dst):
            a(f"v_mul_u32_u24 v12, 3641, v{dst}")
            a("v_lshrrev_b32 v12, 16, v12")
            a("v_mul_u32_u24 v13, 18, v12")
            a(f"v_sub_u32 v13, v{dst}, v13")
            if mode == 1:
                a("v_lshrrev_b32 v14, 4, v12")
                a("v_bfe_u32 v15, v12, 2, 2")
                a("v_and_b32 v12, 3, v12")
                a("v_lshl_add_u32 v12, v15, 3, v12")
                a("v_lshl_add_u32 v12, v14, 2, v12")
            a(f"v_mul_u32_u24 v12, {pitch}, v12")
            a(f"v_lshl_add_u32 v{dst}, v13, 4, v12")
        a("s_lshl_b32 s18, s15, 7")
        a("v_add_u32 v8, s18, v2")
        a("v_add_u32 v9, 64, v8")
        a("s_and_b32 s18, s15, 1")
        a("s_lshl_b32 s18, s18, 5")
        a("s_add_u32 s18, s18, 512")
        a("v_add_u32 v10, s18, v2")
        qaddr(8); qaddr(9); qaddr(10)
        if mode == 1:
            a("s_mul_i32 s40, s13, 288")
        else:
            a(f"s_mul_i32 s40, s13, {1152*1152}")
            a("s_mul_i32 s18, s14, 288")
            a("s_add_u32 s40, s40, s18")
        a("s_lshl_b32 s44, s15, 11")
        a("s_lshr_b32 s45, s15, 1")
        a("s_mul_i32 s45, s45, 9216")
        a("s_and_b32 s18, s15, 1")
        a("s_lshl_b32 s18, s18, 9")
        a("s_add_u32 s45, s45, s18")
        if mode == 2:
            a("s_lshr_b32 s46, s15, 1")
            a(f"s_mul_i32 s46, s46, {32*pitch}")
        wstep = 32 * pitch if mode == 1 else 64 * pitch
        def dma(st):
            base = (st & 3) * ST_BYTES + 16384
            if mode == 2:
                a(f"s_add_u32 s41, s40, {32*pitch}")
                a("s_add_u32 s42, s40, s46")
            for blk in range(2):
                for j in range(2):
                    a(f"s_add_u32 m0, s44, {base + blk*9216 + j*1024}")
                    a("s_nop 0")
                    if mode == 1:
                        a(f"buffer_load_dwordx4 v{8+j}, s[{20+4*blk}:{23+4*blk}], s40 offen lds")
                    else:
                        a(f"buffer_load_dwordx4 v{8+j}, s[20:23], s{40+blk} offen lds")
                    vm.issue(("d", st))
            a(f"s_add_u32 m0, s45, {base + 8192}")
            a("s_mov_b64 exec, 0xffffffff")
            if mode == 1:
                a("buffer_load_dwordx4 v10, s[36:39], s40 offen lds")
            else:
                a("buffer_load_dwordx4 v10, s[20:23], s42 offen lds")
            vm.issue(("d", st))
            a("s_mov_b64 exec, -1")
            a(f"s_add_u32 s40, s40, {wstep}")
    AF = 16
    WR = 48
    ACC = 64
    nblk = 2 if mode == 1 else 1
    units = [(t, b) for t in range(nt) for b in range(nblk)]
    U = len(units)
    def acc(t, b, i): return ACC + ((t * nblk + b) * 4 + i) * 4
    nacc = U * 16
    for r in range(nacc):
        a(f"v_mov_b32 v{ACC+r}, 0")
    def w_addr(t, b):
        if mode == 1:
            if tg == 0:
                if t == 0: return 7, b * 9216
                return 6, b * 9216 + (t - 1) * 32
            return 6, b * 9216 + (4 + t) * 32
        else:
            return 6, (t if tg == 0 else 5 + t) * 32
    def read_w(gu):
        st, u = divmod(gu, U)
        if st >= NST: return
        t, b = units[u]
        vr, off = w_addr(t, b)
        off += (st & 3) * ST_BYTES
        r = WR + (gu & 3) * 4
        if off + 4608 >= 65536:
            vr2 = {6: 12, 7: 13}[vr]; off -= 65536 - 0
            vr = vr2
        a(f"ds_read_b64_tr_b16 v[{r}:{r+1}], v{vr} offset:{off}")
        lg.issue(("w", gu))
        a(f"ds_read_b64_tr_b16 v[{r+2}:{r+3}], v{vr} offset:{off+4608}")
        lg.issue(("w", gu))
    def read_a(st, i):
        if st >= NST: return
        off = (st & 3) * ST_BYTES + i * 1024
        vr = 4
        if off >= 65536 - 16384:
            vr = 14; off -= 65536
        r = AF + (st & 1) * 16 + i * 4
        a(f"ds_read_b128 v[{r}:{r+3}], v{vr} offset:{off}")
        lg.issue(("a", st, i))
    a("v_add_u32 v12, 0x10000, v6")
    if mode == 1 and tg == 0:
        a("v_add_u32 v13, 0x10000, v7")
    a("v_add_u32 v14, 0x10000, v4")
    dma(0); dma(1); dma(2)
    PD = 3
    first = True
    for st in range(NST):
        vm.need(("d", min(st + 1, NST - 1)))
        a("s_barrier")
        if st in (0, 3, 9, 15):
            stamp(a, {0:1, 3:2, 9:3, 15:4}[st])
        if st + 3 < NST:
            dma(st + 3)
        if st == 0:
            for i in range(4): read_a(0, i)
            for gu in range(PD): read_w(gu)
        for u in range(U):
            gu = st * U + u
            read_w(gu + PD)
            if u >= U - 4:
                read_a(st + 1, u - (U - 4))
            lg.need(("w", gu))
            if u == 0:
                lg.need(("a", st, 3))
            t, b = units[u]
            r = WR + (gu & 3) * 4
            for i in range(4):
                ar = AF + (st & 1) * 16 + i * 4
                ac = acc(t, b, i)
                a(f"v_mfma_f32_16x16x32_bf16 v[{ac}:{ac+3}], v[{r}:{r+3}], v[{ar}:{ar+3}], v[{ac}:{ac+3}]")
    a("s_nop 7")
    stamp(a, 5)
    if mode == 1:
        a("s_mul_i32 s18, s13, 9")
        a("s_add_u32 s18, s18, s16")
        a("s_lshr_b32 s18, s18, 1")
        a("s_lshl_b32 s19, s12, 4")
        a("s_lshl_b32 s40, s15, 2")
        a("s_add_u32 s19, s19, s40")
        a("s_mul_i32 s19, s19, 144")
        a("s_add_u32 s40, s19, s18")
        a("s_lshl_b32 s40, s40, 10")
        if tg == 0:
            a("s_mul_i32 s41, s13, 9")
            a("s_cmp_eq_u32 s16, 0")
            a("s_cselect_b32 s42, 8, 0")
            a("s_add_u32 s41, s41, s42")
            a("s_lshr_b32 s41, s41, 1")
            a("s_add_u32 s41, s41, s19")
            a("s_lshl_b32 s41, s41, 10")
            a("s_lshl_b32 s42, s16, 3")
            a("s_add_u32 s41, s41, s42")
        def hid(t, i, dst):
            g = acc(t, 0, i); u_ = acc(t, 1, i)
            for q in range(4):
                a(f"v_max_f32 v{g+q}, 0, v{g+q}")
            for q in range(4):
                a(f"v_mul_f32 v{g+q}, v{g+q}, v{u_+q}")
            a(f"v_cvt_pk_bf16_f32 v{dst}, v{g}, v{g+1}")
            a(f"v_cvt_pk_bf16_f32 v{dst+1}, v{g+2}, v{g+3}")
        slot = 0
        for i in range(4):
            pairs = [(1, 2), (3, 4)] if tg == 0 else [(0, 1), (2, 3)]
            for pp, (t0, t1) in enumerate(pairs):
                dst = 16 + (slot % 8) * 4; slot += 1
                hid(t0, i, dst); hid(t1, i, dst + 2)
                po = (pp + (0 if tg == 0 else 2)) * 1024
                a(f"s_add_u32 s42, s40, {i*144*1024 + po}")
                a(f"buffer_store_dwordx4 v[{dst}:{dst+3}], v3, s[32:35], s42 offen sc1")
            if tg == 0:
                dst = 16 + (slot % 8) * 4; slot += 1
                hid(0, i, dst)
                a(f"s_add_u32 s42, s41, {i*144*1024}")
                a(f"buffer_store_dwordx2 v[{dst}:{dst+1}], v3, s[32:35], s42 offen sc1")
    else:
        a("s_barrier")
        a("s_lshr_b32 s18, s15, 1")
        a(f"s_add_u32 s18, s18, {tg*2}")
        a("s_lshl_b32 s18, s18, 1")
        a("s_and_b32 s16, s15, 1")
        a("s_add_u32 s19, s18, s16")
        a("s_mul_i32 s19, s19, 10240")
        a("s_xor_b32 s40, s16, 1")
        a("s_add_u32 s18, s18, s40")
        a("s_mul_i32 s18, s18, 10240")
        a("v_add_u32 v8, s19, v3")
        a("v_add_u32 v9, s18, v3")
        a("s_cmp_eq_u32 s16, 0")
        lbl = f"K4_EP{tg}"
        a(f"s_cbranch_scc0 {lbl}_B")
        for kg in range(2):
            if kg == 1: a.label(f"{lbl}_B")
            keep = [2 * kg, 2 * kg + 1]; send = [2 - 2 * kg, 3 - 2 * kg]
            for t in range(nt):
                for ii, i in enumerate(send):
                    ac = acc(t, 0, i)
                    a(f"ds_write_b128 v8, v[{ac}:{ac+3}] offset:{(t*2+ii)*1024}")
            a("s_waitcnt lgkmcnt(0)")
            a("s_barrier")
            a("s_lshl_b32 s40, s13, 7")
            a("s_lshl_b32 s41, s12, 3")
            a("s_add_u32 s40, s40, s41")
            a("s_lshr_b32 s41, s15, 1")
            a("s_lshl_b32 s41, s41, 2")
            a("s_add_u32 s40, s40, s41")
            a("s_mul_i32 s40, s40, 36")
            a("s_mul_i32 s41, s14, 9")
            a("s_add_u32 s40, s40, s41")
            a("s_lshl_b32 s40, s40, 10")
            for t in range(nt):
                for ii, i in enumerate(keep):
                    r = 16 + ((t * 2 + ii) % 10) * 4
                    a(f"ds_read_b128 v[{r}:{r+3}], v9 offset:{(t*2+ii)*1024}")
            for t in range(nt):
                for ii, i in enumerate(keep):
                    r = 16 + ((t * 2 + ii) % 10) * 4
                    ac = acc(t, 0, i)
                    a(f"s_waitcnt lgkmcnt({min(15, 2*nt - 1 - (t*2+ii))})")
                    for q in range(4):
                        a(f"v_add_f32 v{ac+q}, v{ac+q}, v{r+q}")
                    a(f"s_add_u32 s42, s40, {(i*36 + t + (0 if tg == 0 else 5))*1024}")
                    a(f"buffer_store_dwordx4 v[{ac}:{ac+3}], v3, s[32:35], s42 offen sc1")
            if STAMP: a("s_waitcnt vmcnt(0)")
            stamp(a, 6)
            stamp_flush(a, 7, 77)
            a("s_endpgm")
    if mode == 1:
        stamp_flush(a, 7, 77)
        a("s_endpgm")

KS_A = [9*m + j for m in range(4) for j in (2, 3, 4, 5, 6)]
KS_B = [9*m + j for m in range(4) for j in (0, 1, 7, 8)]
KS_ORDER = KS_A + KS_B
NSTG = 54
STAMP_AT = [17, 18, 20, 23, 24, 28]
SIG_A = 29
SIG_B = 41
STORE_GAP_A = 6
STORE_GAP_B = 4
POLL_A_STAGE = 36
POLL_B_STAGE = 46
def gen_k34(a):
    kernel_header(a, "k34_kernel")
    a("s_cmp_ge_u32 s2, 256")
    a("s_cbranch_scc1 K34_END")
    stamp(a, 0)
    a("s_load_dwordx4 s[4:7], s[0:1], 56")
    a("s_load_dwordx2 s[8:9], s[0:1], 72")
    a("s_load_dwordx4 s[48:51], s[0:1], 104")
    a("v_lshrrev_b32 v1, 6, v0")
    a("v_and_b32 v2, 63, v0")
    a("s_nop 0")
    a("v_readfirstlane_b32 s17, v1")
    a("s_and_b32 s10, s2, 7")
    a("s_lshr_b32 s11, s2, 3")
    a("s_and_b32 s18, s10, 1")
    a("s_lshr_b32 s10, s10, 1")
    a("s_lshl_b32 s12, s18, 2")
    a("s_and_b32 s14, s11, 3")
    a("s_add_u32 s12, s12, s14")
    a("s_lshl_b32 s13, s10, 3")
    a("s_lshr_b32 s14, s11, 2")
    a("s_add_u32 s13, s13, s14")
    a("s_lshl_b32 s52, s18, 3")
    a("s_and_b32 s14, s11, 7")
    a("s_add_u32 s52, s52, s14")
    a("s_lshr_b32 s14, s11, 3")
    a("s_and_b32 s15, s17, 3")
    a("s_and_b32 s16, s13, 1")
    a("v_lshlrev_b32 v3, 4, v2")
    a("s_waitcnt lgkmcnt(0)")
    a("s_cmp_ge_u32 s17, 4")
    a("s_cbranch_scc1 K34_LOADER")
    k34_compute(a)
    a.label("K34_LOADER")
    k34_loader(a)
    a.label("K34_END")
    a("s_endpgm")

def k34_loader(a):
    vm = Track(a, "vmcnt", 63)
    srd(a, 20, 4, D * F * 2)
    srd(a, 24, 6, D * F * 2)
    srd(a, 28, 50, NB_ACT, WS_H2F)
    srd(a, 32, 50, S * F * 2, WS_HID)
    srd(a, 56, 8, D * F * 2)
    srd(a, 60, 48, 256)
    a("s_cmp_lt_u32 s15, 2")
    a("s_cselect_b32 s36, s4, s6")
    a("s_cselect_b32 s37, s5, s7")
    a(f"s_mov_b32 s38, {D*F*2}")
    a("s_mov_b32 s39, 0x00020000")
    for i in range(4):
        a("s_lshl_b32 s18, s12, 4")
        a("s_lshl_b32 s19, s15, 2")
        a("s_add_u32 s18, s18, s19")
        a(f"s_add_u32 s18, s18, {i}")
        a(f"s_mul_i32 s{40+i}, s18, 18432")
    for i in range(4):
        a("s_and_b32 s18, s15, 1")
        a("s_lshl_b32 s18, s18, 2")
        a("s_lshl_b32 s19, s52, 3")
        a("s_add_u32 s18, s18, s19")
        a(f"s_add_u32 s18, s18, {i}")
        a("s_mul_i32 s18, s18, 144")
        a("s_mul_i32 s19, s10, 36")
        a("s_add_u32 s18, s18, s19")
        a(f"s_lshl_b32 s{64+i}, s18, 10")
    a("s_lshl_b32 s44, s15, 12")
    a("s_lshr_b32 s53, s15, 1")
    def qaddr1(dst):
        a(f"v_mul_u32_u24 v12, 6554, v{dst}")
        a("v_lshrrev_b32 v12, 16, v12")
        a("v_mul_u32_u24 v13, 10, v12")
        a(f"v_sub_u32 v13, v{dst}, v13")
        a("v_lshrrev_b32 v14, 4, v12")
        a("v_bfe_u32 v15, v12, 2, 2")
        a("v_and_b32 v12, 3, v12")
        a("v_lshl_add_u32 v12, v15, 3, v12")
        a("v_lshl_add_u32 v12, v14, 2, v12")
        a("v_mul_u32_u24 v12, 9216, v12")
        a(f"v_lshl_add_u32 v{dst}, v13, 4, v12")
    def qaddr2(dst):
        a(f"v_mul_u32_u24 v12, 3641, v{dst}")
        a("v_lshrrev_b32 v12, 16, v12")
        a("v_mul_u32_u24 v13, 18, v12")
        a(f"v_sub_u32 v13, v{dst}, v13")
        a("v_mul_u32_u24 v12, 1152, v12")
        a(f"v_lshl_add_u32 v{dst}, v13, 4, v12")
    a("s_lshl_b32 s18, s15, 6")
    a("v_add_u32 v8, s18, v2")
    a("s_and_b32 s18, s15, 1")
    a("s_lshl_b32 s18, s18, 5")
    a("s_add_u32 s19, s18, 256")
    a("v_add_u32 v9, s19, v2")
    qaddr1(8); qaddr1(9)
    a("s_mul_i32 s45, s13, 288")
    a("s_lshl_b32 s19, s16, 7")
    a("s_add_u32 s46, s45, s19")
    a("s_xor_b32 s19, s19, 128")
    a("s_add_u32 s45, s45, s19")
    a("s_lshl_b32 s47, s15, 10")
    a("s_mul_i32 s54, s53, 5120")
    a("s_and_b32 s18, s15, 1")
    a("s_lshl_b32 s18, s18, 9")
    a("s_add_u32 s54, s54, s18")
    a("v_mov_b32 v10, v3")
    def dma1(st):
        ph = st // 18; ks = st % 18
        base = (st & 3) * ST_BYTES
        a(f"s_add_u32 s55, s{45+ph}, {ks*32*9216}")
        for blk in range(2):
            a(f"s_add_u32 m0, s47, {base + 16384 + blk*5120}")
            a("s_nop 0")
            a(f"buffer_load_dwordx4 v8, s[{20+4*blk}:{23+4*blk}], s55 offen lds"); vm.issue(("d", st))
        a(f"s_add_u32 m0, s54, {base + 16384 + 4096}")
        a("s_mov_b64 exec, 0xffffffff")
        a("buffer_load_dwordx4 v9, s[36:39], s55 offen lds"); vm.issue(("d", st))
        a("s_mov_b64 exec, -1")
        a(f"v_add_u32 v10, {ks*1024}, v3")
        for i in range(4):
            a(f"s_add_u32 m0, s44, {base + i*1024}")
            a("s_nop 0")
            a(f"buffer_load_dwordx4 v10, s[28:31], s{40+i} offen lds"); vm.issue(("d", st))
    def setup2():
        a("s_lshl_b32 s18, s15, 7")
        a("v_add_u32 v16, s18, v2")
        a("v_add_u32 v17, 64, v16")
        a("s_and_b32 s18, s15, 1")
        a("s_lshl_b32 s18, s18, 5")
        a("s_add_u32 s18, s18, 512")
        a("v_add_u32 v18, s18, v2")
        qaddr2(16); qaddr2(17); qaddr2(18)
        a(f"s_mul_i32 s68, s10, {1152*1152}")
        a("s_mul_i32 s18, s14, 288")
        a("s_add_u32 s68, s68, s18")
        a("s_lshl_b32 s69, s15, 11")
        a("s_mul_i32 s70, s53, 9216")
        a("s_and_b32 s18, s15, 1")
        a("s_lshl_b32 s18, s18, 9")
        a("s_add_u32 s70, s70, s18")
        a("s_lshl_b32 s18, s12, 2")
        a("s_add_u32 s18, s18, s10")
        a("s_lshl_b32 s18, s18, 2")
        a("v_mov_b32 v20, s18")
        a("s_lshr_b32 s18, s52, 1")
        a("s_lshl_b32 s18, s18, 2")
        a("s_add_u32 s18, s18, s10")
        a("s_lshl_b32 s18, s18, 2")
        a("v_mov_b32 v21, s18")
        a("v_mov_b32 v22, 1")
    def poll(which):
        lbl = f"K34_POLL{which}"
        a("s_mov_b32 s71, 0")
        a.label(lbl)
        a(f"buffer_load_dword v23, v21, s[60:63], 0 offen offset:{128*which} sc1")
        a("s_waitcnt vmcnt(0)")
        a("v_readfirstlane_b32 s72, v23")
        a("s_add_u32 s71, s71, 1")
        a("s_cmp_ge_u32 s72, 8")
        a(f"s_cbranch_scc1 {lbl}_OK")
        a("s_cmp_lt_u32 s71, 0x100000")
        a(f"s_cbranch_scc1 {lbl}")
        a.label(lbl + "_OK")
        vm.q = []
    def dma2(st):
        j = st - 36
        k0, k1 = KS_ORDER[2*j], KS_ORDER[2*j+1]
        base = (st & 3) * ST_BYTES
        a(f"s_add_u32 s72, s68, {k0*32*1152}")
        a(f"s_add_u32 s73, s68, {k1*32*1152}")
        a("s_cmp_eq_u32 s53, 0")
        a("s_cselect_b32 s74, s72, s73")
        a(f"s_mov_b32 s75, {k0*1024}")
        a(f"s_mov_b32 s76, {k1*1024}")
        a("s_cselect_b32 s75, s75, s76")
        for blk in range(2):
            for jj in range(2):
                a(f"s_add_u32 m0, s69, {base + 16384 + blk*9216 + jj*1024}")
                a("s_nop 0")
                a(f"buffer_load_dwordx4 v{16+jj}, s[56:59], s{72+blk} offen lds"); vm.issue(("d", st))
        a(f"s_add_u32 m0, s70, {base + 16384 + 8192}")
        a("s_mov_b64 exec, 0xffffffff")
        a("buffer_load_dwordx4 v18, s[56:59], s74 offen lds"); vm.issue(("d", st))
        a("s_mov_b64 exec, -1")
        if st == POLL_A_STAGE: poll(0)
        if st == POLL_B_STAGE: poll(1)
        a("v_add_u32 v10, s75, v3")
        for i in range(4):
            a(f"s_add_u32 m0, s44, {base + i*1024}")
            a("s_nop 0")
            a(f"buffer_load_dwordx4 v10, s[32:35], s{64+i} offen lds"); vm.issue(("d", st))
    def dma(st):
        if st < 36: dma1(st)
        else: dma2(st)
    dma(0); dma(1); dma(2)
    setup2()
    vm.need(("d", 0))
    a("s_barrier")
    for st in range(NSTG):
        if st + 1 < NSTG:
            vm.need(("d", st + 1))
        a("s_barrier")
        if st in (SIG_A, SIG_B):
            lbl = f"K34_SIG{st}"
            a("s_cmp_lg_u32 s17, 4")
            a(f"s_cbranch_scc1 {lbl}")
            a("s_mov_b64 exec, 1")
            a(f"buffer_atomic_add v22, v20, s[60:63], 0 offen offset:{0 if st == SIG_A else 128} sc1")
            a("s_mov_b64 exec, -1")
            a.label(lbl)
        if st + 3 < NSTG:
            dma(st + 3)
    a("s_endpgm")

def k34_compute(a):
    lg = Track(a, "lgkmcnt", 15)
    srd(a, 32, 50, S * F * 2, WS_HID)
    srd(a, 36, 50, 4 * S * D * 2, WS_PART)
    a("s_lshl_b32 s18, s15, 12")
    a("v_add_u32 v4, s18, v3")
    a("v_add_u32 v5, 0x10000, v4")
    a("s_and_b32 s53, s15, 1")
    a("s_lshr_b32 s54, s15, 1")
    a("s_lshl_b32 s18, s53, 13")
    a("s_lshl_b32 s19, s54, 12")
    a("s_add_u32 s18, s18, s19")
    a("v_add_u32 v6, s18, v3")
    a("v_add_u32 v7, 0x10000, v6")
    a("v_lshrrev_b32 v14, 2, v2")
    a("v_and_b32 v15, 3, v2")
    a("v_mul_u32_u24 v8, 160, v14")
    a("v_lshl_add_u32 v8, v15, 3, v8")
    a("v_add_u32 v8, 16384, v8")
    a("s_lshl_b32 s18, s16, 7")
    a("s_xor_b32 s18, s18, 128")
    a("v_add_u32 v10, s18, v8")
    a("v_add_u32 v11, 0x10000, v10")
    a("s_lshl_b32 s18, s16, 5")
    a("v_add_u32 v8, s18, v8")
    a("v_add_u32 v9, 0x10000, v8")
    a("v_mul_u32_u24 v12, 288, v14")
    a("v_lshl_add_u32 v12, v15, 3, v12")
    a("s_mul_i32 s18, s53, 9216")
    a("s_add_u32 s18, s18, 16384")
    a("v_add_u32 v12, s18, v12")
    a("v_add_u32 v13, 0x10000, v12")
    a("s_lshl_b32 s19, s12, 4")
    a("s_lshl_b32 s18, s15, 2")
    a("s_add_u32 s19, s19, s18")
    a("s_mul_i32 s19, s19, 144")
    a("s_mul_i32 s18, s13, 9")
    a("s_cmp_eq_u32 s16, 0")
    a("s_cselect_b32 s40, 4, 1")
    a("s_cselect_b32 s41, 0, 5")
    a("s_cselect_b32 s42, 8, 0")
    for r in (40, 41, 42):
        a(f"s_add_u32 s{r}, s{r}, s18")
        a(f"s_lshr_b32 s{r}, s{r}, 1")
        a(f"s_add_u32 s{r}, s{r}, s19")
        a(f"s_lshl_b32 s{r}, s{r}, 10")
    a("s_lshl_b32 s18, s16, 3")
    a("s_add_u32 s42, s42, s18")
    AF = 16; WR = 48; ACC = 64
    def units_of(st):
        if st < 18: return [(t, b) for t in range(5) for b in range(2)]
        if st < 36: return [(t, b) for t in range(1, 5) for b in range(2)]
        return [(t, 0) for t in range(9)]
    def acc(st, t, b, i):
        if st < 36: return ACC + ((t * 2 + b) * 4 + i) * 4
        return ACC + (t * 4 + i) * 4
    seq = [(st, u) for st in range(NSTG) for u in range(len(units_of(st)))]
    def w_reads(gi):
        if gi >= len(seq): return []
        st, u = seq[gi]
        t, b = units_of(st)[u]
        if st < 36:
            vr, off, hs = (10, b * 5120, 2560) if t == 0 else (8, b * 5120 + (t - 1) * 32, 2560)
        else:
            vr, off, hs = 12, t * 32, 4608
        off += (st & 3) * ST_BYTES
        if (st & 3) >= 2:
            vr += 1; off -= 65536
        r = WR + (gi & 3) * 4
        return [(f"ds_read_b64_tr_b16 v[{r}:{r+1}], v{vr} offset:{off}", ("w", gi)),
                (f"ds_read_b64_tr_b16 v[{r+2}:{r+3}], v{vr} offset:{off+hs}", ("w", gi))]
    def a_read(st, i):
        if st >= NSTG: return []
        off = (st & 3) * ST_BYTES + i * 1024
        vr = 4 if st < 36 else 6
        if (st & 3) >= 2:
            vr += 1; off -= 65536
        r = AF + (st & 1) * 16 + i * 4
        return [(f"ds_read_b128 v[{r}:{r+3}], v{vr} offset:{off}", ("a", st, i))]
    def emit(L):
        for (t, tag) in L:
            a(t); lg.issue(tag)
    pending = []
    def epi1(ph):
        a("s_nop 7")
        def hid(t, i, dst):
            g = acc(0, t, 0, i); u_ = acc(0, t, 1, i)
            for q in range(4):
                a(f"v_max_f32 v{g+q}, 0, v{g+q}")
            for q in range(4):
                a(f"v_mul_f32 v{g+q}, v{g+q}, v{u_+q}")
            a(f"v_cvt_pk_bf16_f32 v{dst}, v{g}, v{g+1}")
            a(f"v_cvt_pk_bf16_f32 v{dst+1}, v{g+2}, v{g+3}")
        if ph == 0:
            for i in range(4):
                dst = 224 + 2 * i
                hid(0, i, dst)
                pending.append([f"s_add_u32 s43, s42, {i*144*1024}",
                                f"buffer_store_dwordx2 v[{dst}:{dst+1}], v3, s[32:35], s43 offen sc1"])
            pbase = 64
        else:
            pbase = 208
        slot = 0
        tmp = []
        for i in range(4):
            for pp, (t0, t1) in enumerate([(1, 2), (3, 4)]):
                dst = pbase + slot * 4; slot += 1
                if ph == 1:
                    pass
                tmp.append((t0, t1, i, pp, dst))
        if ph == 1:
            order = [x for x in tmp if x[3] == 1] + [x for x in tmp if x[3] == 0]
            order = [(t0, t1, i, pp, (224 + 4*i) if pp == 1 else (208 + 4*i)) for (t0, t1, i, pp, d) in order]
        else:
            order = tmp
        for (t0, t1, i, pp, dst) in order:
            hid(t0, i, dst); hid(t1, i, dst + 2)
            pending.append([f"s_add_u32 s43, s{40+ph}, {i*144*1024 + pp*1024}",
                            f"buffer_store_dwordx4 v[{dst}:{dst+3}], v3, s[32:35], s43 offen sc1"])
    PD = 3
    a("s_barrier")
    for i in range(4): emit(a_read(0, i))
    for gi in range(PD): emit(w_reads(gi))
    gi = 0; gi0 = 0
    for st in range(NSTG):
        un = units_of(st); U = len(un)
        first = st in (0, 18, 36)
        for u in range(U):
            if u == U // 2 - 1:
                if st in (SIG_A, SIG_B):
                    a("s_waitcnt vmcnt(0)")
                a("s_barrier")
                if st in STAMP_AT: stamp(a, 1 + STAMP_AT.index(st))
            nxt = w_reads(gi + PD)
            if u >= U - 4:
                nxt += a_read(st + 1, u - (U - 4))
            lg.need(("w", gi))
            if u == 0:
                lg.need(("a", st, 3))
            t, b = un[u]
            r = WR + (gi & 3) * 4
            for i in range(4):
                ar = AF + (st & 1) * 16 + i * 4
                ac = acc(st, t, b, i)
                cs = "0" if first else f"v[{ac}:{ac+3}]"
                a(f"v_mfma_f32_16x16x32_bf16 v[{ac}:{ac+3}], v[{r}:{r+3}], v[{ar}:{ar+3}], {cs}")
                if i < len(nxt): emit([nxt[i]])
            gap = STORE_GAP_A if st < 36 else STORE_GAP_B
            if pending and (gi - gi0) % gap == 0:
                for l in pending.pop(0): a(l)
            gi += 1
        if st == 17: epi1(0); gi0 = gi
        if st == 35:
            assert not pending
            epi1(1); gi0 = gi
        if st + 1 in (SIG_A, SIG_B): assert not pending, (st, len(pending))
    a("s_nop 7")
    a("s_barrier")
    a("s_mul_i32 s19, s15, 18432")
    a("s_xor_b32 s18, s15, 1")
    a("s_mul_i32 s18, s18, 18432")
    a("v_add_u32 v8, s19, v3")
    a("v_add_u32 v9, s18, v3")
    a("s_lshl_b32 s40, s10, 6")
    a("s_lshl_b32 s41, s52, 2")
    a("s_add_u32 s40, s40, s41")
    a("s_lshl_b32 s41, s54, 1")
    a("s_add_u32 s40, s40, s41")
    a("s_add_u32 s40, s40, s53")
    a("s_mul_i32 s40, s40, 36")
    a("s_mul_i32 s41, s14, 9")
    a("s_add_u32 s40, s40, s41")
    a("s_lshl_b32 s40, s40, 10")
    a("s_cmp_eq_u32 s53, 0")
    a("s_cbranch_scc0 K34_EP_B")
    for kg in range(2):
        if kg == 1: a.label("K34_EP_B")
        keep = [2 * kg, 2 * kg + 1]; send = [2 - 2 * kg, 3 - 2 * kg]
        for t in range(9):
            for ii, i in enumerate(send):
                ac = acc(36, t, 0, i)
                a(f"ds_write_b128 v8, v[{ac}:{ac+3}] offset:{(t*2+ii)*1024}")
        a("s_waitcnt lgkmcnt(0)")
        a("s_barrier")
        lg2 = Track(a, "lgkmcnt", 15)
        items = [(t, ii, i) for t in range(9) for ii, i in enumerate(keep)]
        def rd(n):
            t, ii, i = items[n]
            r = 16 + (n % 12) * 4
            a(f"ds_read_b128 v[{r}:{r+3}], v9 offset:{(t*2+ii)*1024}"); lg2.issue(n)
        for n in range(10): rd(n)
        for n, (t, ii, i) in enumerate(items):
            r = 16 + (n % 12) * 4
            ac = acc(36, t, 0, i)
            lg2.need(n)
            for q in range(4):
                a(f"v_add_f32 v{ac+q}, v{ac+q}, v{r+q}")
            if n + 10 < len(items): rd(n + 10)
            dst = 208 + (t % 8) * 4
            a(f"v_cvt_pk_bf16_f32 v{dst+2*ii}, v{ac}, v{ac+1}")
            a(f"v_cvt_pk_bf16_f32 v{dst+2*ii+1}, v{ac+2}, v{ac+3}")
            if ii == 1:
                a(f"buffer_store_dwordx4 v[{dst}:{dst+3}], v3, s[36:39], s40 offen offset:{(t%4)*1024} sc1")
                if t % 4 == 3:
                    a("s_add_u32 s40, s40, 4096")
        stamp_flush(a, 7, 77)
        a("s_endpgm")

def gen_k5(a):
    kernel_header(a, "k5_kernel")
    a("s_cmp_ge_u32 s2, 288")
    a("s_cbranch_scc1 K5_END")
    a("s_load_dwordx2 s[4:5], s[0:1], 96")
    a("s_load_dwordx2 s[6:7], s[0:1], 112")
    a("v_lshrrev_b32 v1, 6, v0")
    a("v_and_b32 v2, 63, v0")
    a("s_nop 0")
    a("v_readfirstlane_b32 s17, v1")
    a("s_lshl_b32 s18, s2, 2")
    a("s_add_u32 s18, s18, s17")
    a("s_mul_i32 s19, s18, 3641")
    a("s_lshr_b32 s19, s19, 16")
    a("s_mul_i32 s16, s19, 18")
    a("s_sub_u32 s16, s18, s16")
    a("s_lshl_b32 s18, s18, 11")
    a("v_lshlrev_b32 v3, 4, v2")
    a("v_and_b32 v4, 15, v2")
    a("v_lshrrev_b32 v5, 4, v2")
    a("s_lshl_b32 s15, s19, 5")
    a("v_add_u32 v4, s15, v4")
    a("s_movk_i32 s15, 1152")
    a("v_mul_lo_u32 v4, v4, s15")
    a("v_lshlrev_b32 v5, 3, v5")
    a("s_lshl_b32 s15, s16, 6")
    a("v_add_u32 v5, s15, v5")
    a("v_add_u32 v4, v4, v5")
    a("s_waitcnt lgkmcnt(0)")
    srd(a, 20, 6, 4 * S * D * 2, WS_PART)
    srd(a, 24, 6, NB_ACT, WS_X1)
    srd(a, 28, 6, 6 * D * 2, WS_MOD)
    srd(a, 32, 4, NB_ACT)
    for sp in range(4):
        a(f"s_add_u32 s15, s18, {sp*S*D*2}")
        for t in range(2):
            r = 16 + (sp * 2 + t) * 4
            a(f"buffer_load_dwordx4 v[{r}:{r+3}], v3, s[20:23], s15 offen offset:{t*1024}")
    a("s_movk_i32 s14, 18432")
    for t in range(2):
        a(f"buffer_load_dwordx2 v[{48+4*t}:{49+4*t}], v4, s[24:27], 0 offen offset:{32*t}")
        a(f"buffer_load_dwordx2 v[{50+4*t}:{51+4*t}], v4, s[24:27], s14 offen offset:{32*t}")
    a("s_movk_i32 s15, 5760")
    a("buffer_load_dwordx2 v[56:57], v5, s[28:31], s15 offen")
    a("buffer_load_dwordx2 v[58:59], v5, s[28:31], s15 offen offset:32")
    a("s_waitcnt vmcnt(6)")
    for t in range(2):
        for d in range(4):
            for sp in range(4):
                r = 16 + (sp * 2 + t) * 4 + d
                lo = 64 + 8 * t + 2 * d
                if sp == 0:
                    a(f"v_lshlrev_b32 v{lo}, 16, v{r}")
                    a(f"v_and_b32 v{lo+1}, 0xffff0000, v{r}")
                else:
                    a(f"v_lshlrev_b32 v60, 16, v{r}")
                    a(f"v_and_b32 v61, 0xffff0000, v{r}")
                    a(f"v_add_f32 v{lo}, v{lo}, v60")
                    a(f"v_add_f32 v{lo+1}, v{lo+1}, v61")
    a("s_waitcnt vmcnt(0)")
    for t in range(2):
        for q in range(4):
            gbr = 56 + 2 * t + (q >> 1)
            if q & 1: a(f"v_and_b32 v{80+q}, 0xffff0000, v{gbr}")
            else: a(f"v_lshlrev_b32 v{80+q}, 16, v{gbr}")
        for h in range(2):
            b = 64 + 8 * t + 4 * h
            a(f"v_cvt_pk_bf16_f32 v62, v{b}, v{b+1}")
            a(f"v_cvt_pk_bf16_f32 v63, v{b+2}, v{b+3}")
            for q in range(4):
                src = 62 + (q >> 1); xr = 48 + 4 * t + 2 * h + (q >> 1)
                if q & 1:
                    a(f"v_and_b32 v84, 0xffff0000, v{src}")
                    a(f"v_and_b32 v85, 0xffff0000, v{xr}")
                else:
                    a(f"v_lshlrev_b32 v84, 16, v{src}")
                    a(f"v_lshlrev_b32 v85, 16, v{xr}")
                a(f"v_mul_f32 v84, v84, v{80+q}")
                a("v_cvt_pk_bf16_f32 v84, v84, v84")
                a("v_lshlrev_b32 v84, 16, v84")
                a(f"v_add_f32 v{b+q}, v84, v85")
            o = 88 + 4 * t + 2 * h
            a(f"v_cvt_pk_bf16_f32 v{o}, v{b}, v{b+1}")
            a(f"v_cvt_pk_bf16_f32 v{o+1}, v{b+2}, v{b+3}")
            so = "0" if h == 0 else "s14"
            a(f"buffer_store_dwordx2 v[{o}:{o+1}], v4, s[32:35], {so} offen offset:{32*t}")
    a.label("K5_END")
    a("s_endpgm")

def main(out):
    a = Asm()
    hdr = open("adaLN_cond__ssm_conv_h3__glu_gated_reglu__prompt.s.ref").read().split("; Override launch geometry")[0]
    launches = [
        ("k1_kernel", 252, 512, K1_LDS),
        ("k2_kernel", 128, 576, K2_LDS),
        ("k34_kernel", 256, 512, G_LDS),
        ("k5_kernel", 288, 256, 0),
    ]
    txt = hdr
    for (n, g, b, l) in launches:
        txt += f"; @launch kernel={n} grid=({g},1,1) block=({b},1,1) lds={l}\n"
    txt += '.amdgcn_target "amdgcn-amd-amdhsa--gfx950"\n.text\n'
    global SV, SK
    SV = 120; SK = 0
    gen_k1(a)
    SV = 128; SK = 1
    gen_k2(a)
    SV = 240; SK = 2
    gen_k34(a)
    gen_k5(a)
    a.label("CODE_END")
    a("s_endpgm")
    txt += a.text()
    txt += '.section .rodata,"a"\n'
    txt += kernel_desc("k1_kernel", 128)
    txt += kernel_desc("k2_kernel", 136 if STAMP else 128)
    txt += kernel_desc("k34_kernel", 248 if STAMP else 240)
    txt += kernel_desc("k5_kernel", 96)
    open(out, "w").write(txt)

if __name__ == "__main__":
    for arg in sys.argv[2:]:
        if arg == "stamp": STAMP = True
        elif "=" in arg:
            k_, v_ = arg.split("="); globals()[k_] = eval(v_)
    main(sys.argv[1] if len(sys.argv) > 1 else "k.s")
```

```python
import sys

S = 2048; D = 576; F = 4608
WS_BASE = int(__import__("os").environ.get("WS_BASE", "0"), 0)
WS_MOD  = WS_BASE + 0x0
WS_CNT  = WS_BASE + 0x9000
WS_Y2T  = WS_BASE + 0x10000
WS_H2F  = WS_BASE + 0x250000
WS_X1   = WS_BASE + 0x490000
WS_HID  = WS_BASE + 0x700000
WS_PART = WS_BASE + 0x1900000
NB_ACT = S * D * 2
WS_END = WS_PART + 4 * S * D * 4
PF_CODE = True
PF_TLB = False
PF_XCD = False
PF_LIST = [0,1,2,3]

class Asm:
    def __init__(self):
        self.lines = []
    def __call__(self, s):
        for l in s.split("\n"):
            l = l.strip()
            if l:
                self.lines.append("    " + l if not l.endswith(":") else l)
    def label(self, l):
        self.lines.append(l + ":")
    def text(self):
        return "\n".join(self.lines) + "\n"

def srd(a, d, base, nbytes, off=0):
    if off:
        a(f"s_add_u32 s{d}, s{base}, {off}")
        a(f"s_addc_u32 s{d+1}, s{base+1}, 0")
    else:
        a(f"s_mov_b32 s{d}, s{base}")
        a(f"s_mov_b32 s{d+1}, s{base+1}")
    a(f"s_mov_b32 s{d+2}, {nbytes}")
    a(f"s_mov_b32 s{d+3}, 0x00020000")

STAMP = False
SV = 120
SK = 0
def stamp(a, idx):
    if not STAMP: return
    if idx == 0:
        a("s_memrealtime s[100:101]")
        a("s_waitcnt lgkmcnt(0)")
        a(f"v_mov_b32 v{SV+7}, s100")
    a("s_memtime s[100:101]")
    a("s_waitcnt lgkmcnt(0)")
    a(f"v_mov_b32 v{SV+idx}, s100")
def stamp_flush(a, n, wg):
    if not STAMP: return
    lbl = f"STAMP_SKIP_{len(a.lines)}"
    a(f"s_cmp_lg_u32 s2, {wg}")
    a(f"s_cbranch_scc1 {lbl}")
    a("s_memrealtime s[100:101]")
    a("s_load_dwordx2 s[72:73], s[0:1], 112")
    a("s_waitcnt lgkmcnt(0)")
    a(f"s_add_u32 s72, s72, {0x8000 + SK*512}")
    a("s_addc_u32 s73, s73, 0")
    a("s_mov_b32 s74, 512")
    a("s_mov_b32 s75, 0x00020000")
    a("v_lshrrev_b32 v1, 6, v0")
    a("v_lshlrev_b32 v1, 5, v1")
    for i in range(n):
        a(f"v_sub_u32 v2, v{SV+i}, v{SV}")
        a(f"buffer_store_dword v2, v1, s[72:75], 0 offen offset:{4*i}")
    a(f"v_sub_u32 v2, s100, v{SV+7}")
    a(f"buffer_store_dword v2, v1, s[72:75], 0 offen offset:28")
    a("s_waitcnt vmcnt(0)")
    a.label(lbl)

def kernel_header(a, name):
    a.lines.append(f".globl {name}")
    a.lines.append(".p2align 8")
    a.lines.append(f".type {name},@function")
    a.label(name)

def kernel_desc(name, vgpr, sgpr=102, accum=None):
    if accum is None:
        accum = (vgpr + 3) // 4 * 4
    return f""".p2align 6
.amdhsa_kernel {name}
  .amdhsa_next_free_vgpr {vgpr}
  .amdhsa_next_free_sgpr {sgpr}
  .amdhsa_accum_offset {accum}
  .amdhsa_group_segment_fixed_size 0
  .amdhsa_kernarg_size 120
  .amdhsa_user_sgpr_count 2
  .amdhsa_user_sgpr_kernarg_segment_ptr 1
  .amdhsa_system_sgpr_workgroup_id_x 1
.end_amdhsa_kernel
"""

K1_CH = 24832
K1_CP = 4160
K1_U = 16640
K1_LDS = 4 * K1_CH + 4 * 1088

def gen_k1(a):
    kernel_header(a, "k1_kernel")
    a("s_cmp_ge_u32 s2, 252")
    a("s_cbranch_scc1 K1_END")
    a("s_cmp_ge_u32 s2, 144")
    a("s_cbranch_scc1 K1_MOD")
    stamp(a, 0)
    a("s_load_dwordx4 s[4:7], s[0:1], 8")
    a("s_load_dwordx4 s[8:11], s[0:1], 24")
    a("s_load_dwordx2 s[12:13], s[0:1], 40")
    a("s_load_dwordx2 s[14:15], s[0:1], 112")
    a("s_and_b32 s3, s2, 7")
    a("s_mul_i32 s3, s3, 18")
    a("s_lshr_b32 s16, s2, 3")
    a("s_add_u32 s3, s3, s16")
    a("v_lshrrev_b32 v1, 6, v0")
    a("v_and_b32 v2, 63, v0")
    a("s_nop 0")
    a("v_readfirstlane_b32 s17, v1")
    a("s_waitcnt lgkmcnt(0)")
    stamp(a, 1)
    srd(a, 20, 4, NB_ACT)
    srd(a, 24, 6, NB_ACT)
    srd(a, 28, 10, NB_ACT)
    srd(a, 32, 14, NB_ACT, WS_Y2T)
    a("s_cmp_ge_u32 s17, 4")
    a("s_cbranch_scc1 K1_LOADER")
    a("s_lshl_b32 s16, s3, 3")
    a("s_add_u32 s12, s12, s16")
    a("s_addc_u32 s13, s13, 0")
    a("s_load_dwordx2 s[44:45], s[12:13], 0")
    a("s_lshl_b32 s46, s3, 2")
    a("s_add_u32 s46, s46, s17")
    a("s_lshl_b32 s46, s46, 12")
    a(f"s_mul_i32 s47, s17, {K1_CH}")
    a("v_lshlrev_b32 v11, 4, v2")
    a("v_add_u32 v5, s46, v11")
    a("s_add_u32 m0, s47, 64")
    a("s_nop 0")
    for i in range(4):
        a(f"buffer_load_dwordx4 v5, s[28:31], 0 offen offset:{i*1024} lds")
    stamp(a, 2)
    for r in range(4):
        a(f"v_mov_b32 v{56+r}, 0")
    a("v_add_u32 v11, s47, v11")
    for i in range(3):
        a(f"ds_write_b128 v11, v[56:59] offset:{K1_U + 5120 + i*1024}")
    a("v_lshrrev_b32 v54, 2, v2")
    a(f"v_mul_u32_u24 v54, {K1_CP}, v54")
    a("v_and_b32 v55, 3, v2")
    a("v_lshlrev_b32 v55, 4, v55")
    a("v_add3_u32 v54, v54, v55, s47")
    a("s_mov_b64 exec, 0xffff")
    a("ds_write_b128 v54, v[56:59]")
    a("s_mov_b64 exec, -1")
    a("v_and_b32 v3, 15, v2")
    a("v_lshrrev_b32 v4, 4, v2")
    a("v_add_u32 v5, 1, v3")
    a("v_and_b32 v5, 3, v5")
    a("v_lshlrev_b32 v6, 3, v4")
    a("v_sub_u32 v6, v3, v6")
    a("v_sub_u32 v6, v6, v5")
    a("v_add_u32 v6, 25, v6")
    a("v_lshlrev_b32 v6, 1, v6")
    a(f"v_mul_u32_u24 v7, {K1_CP}, v5")
    a("v_add3_u32 v6, v6, v7, s47")
    a("v_sub_u32 v7, 15, v3")
    a("v_mul_u32_u24 v7, 160, v7")
    a("v_lshlrev_b32 v8, 4, v4")
    a("v_sub_u32 v7, v7, v8")
    a(f"v_add_u32 v7, {K1_U + 48}, v7")
    a("v_add_u32 v7, s47, v7")
    a("v_sub_u32 v8, 15, v3")
    a("v_mul_u32_u24 v8, 160, v8")
    a("v_lshlrev_b32 v9, 3, v4")
    a("v_sub_u32 v8, v8, v9")
    a(f"v_add_u32 v8, {K1_U + 24}, v8")
    a("v_add_u32 v8, s47, v8")
    a("s_mov_b32 s66, 73728")
    a("v_mul_lo_u32 v9, v3, s66")
    a("v_lshlrev_b32 v10, 3, v4")
    a("s_lshr_b32 s66, s46, 7")
    a("v_add3_u32 v9, v9, v10, s66")
    ACC = 16
    for r in range(32):
        a(f"v_mov_b32 v{ACC+r}, 0")
    a("s_waitcnt lgkmcnt(0)")
    a("s_cmp_lt_u32 s17, 2")
    a("s_cselect_b32 s64, s44, s45")
    a("s_and_b32 s65, s17, 1")
    a("s_cmp_eq_u32 s65, 0")
    a("s_cselect_b32 s65, 16, 0")
    a("s_lshl_b32 s64, s64, s65")
    a("s_and_b32 s64, s64, 0xffff0000")
    a("s_waitcnt vmcnt(0)")
    bases = [-1, 63, 127, 191, 192]
    for i, ub in enumerate(bases):
        r = 48 + 8 * i
        a(f"ds_read_b128 v[{r}:{r+3}], v11 offset:{64 + ub*16}")
        a(f"ds_read_b64 v[{r+4}:{r+5}], v11 offset:{64 + ub*16 + 16}")
    for i, ub in enumerate(bases):
        r = 48 + 8 * i
        a(f"s_waitcnt lgkmcnt({min(15, 2*(4-i) + 3*i)})")
        t = 96 + 12 * (i & 1)
        for q in range(4):
            a(f"v_alignbit_b32 v{t+q}, v{r+q+1}, v{r+q}, 16")
            a(f"v_mov_b32 v{t+4+q}, v{r+q+1}")
            a(f"v_alignbit_b32 v{t+8+q}, v{r+q+2}, v{r+q+1}, 16")
        for j in range(1, 4):
            a(f"ds_write_b128 v11, v[{t+4*(j-1)}:{t+4*(j-1)+3}] offset:{j*K1_CP + 64 + ub*16}")
    a("s_waitcnt lgkmcnt(0)")
    stamp(a, 3)
    AR = 48
    BR = 96
    lg = Track(a, "lgkmcnt", 15)
    phases = []
    for q in range(8):
        st = []
        if q < 4:
            st += [(0, d) for d in range(12 - 4*q, 16 - 4*q)]
        st += [(1, d) for d in range(28 - 4*q, 32 - 4*q)]
        phases.append(st)
    slot_of = {}
    state = {"next": 0, "cnt": 0}
    def a_loads(p, key):
        sl = state["next"] % 12; state["next"] += 1
        slot_of[(key, p)] = sl
        r = AR + sl * 4
        return [(f"ds_read_b64 v[{r}:{r+1}], v6 offset:{32*p}", ("A", key, p)),
                (f"ds_read_b64 v[{r+2}:{r+3}], v6 offset:{32*p+8}", ("A", key, p))]
    def step_loads(steps, i, key, a_only=False, b_only=False):
        nt, dl = steps[i]
        L = []
        if not a_only:
            for ks in range(2):
                r = BR + (i & 1) * 8 + ks * 4
                L.append((f"ds_read_b128 v[{r}:{r+3}], v7 offset:{(16 - 16*nt + dl)*160 + 64 - 64*ks}", ("B", key, i)))
        if not b_only:
            run_start = (i % 4 == 0)
            ps = range(4 * dl - 2, 4 * dl + 4) if run_start else range(4 * dl, 4 * dl + 4)
            for p in ps:
                if p >= 0:
                    L += a_loads(p, (key, i // 4))
        return L
    def emit(L):
        for (t, tag) in L:
            a(t); lg.issue(tag)
    for ph, steps in enumerate(phases):
        emit(step_loads(steps, 0, ph, a_only=True))
        a("s_barrier")
        if ph == 0: stamp(a, 4)
        if ph == 7: stamp(a, 5)
        emit(step_loads(steps, 0, ph, b_only=True))
        for i, (nt, dl) in enumerate(steps):
            nxt = step_loads(steps, i + 1, ph) if i + 1 < len(steps) else []
            mf = []
            for ks in (1, 0):
                for mt in range(4):
                    p = 4 * dl + mt - 2 * ks
                    if p < 0: continue
                    ac = ACC + (nt * 4 + mt) * 4
                    ar = AR + slot_of[((ph, i // 4), p)] * 4
                    br = BR + (i & 1) * 8 + ks * 4
                    mf.append((f"v_mfma_f32_16x16x32_bf16 v[{ac}:{ac+3}], v[{ar}:{ar+3}], v[{br}:{br+3}], v[{ac}:{ac+3}]", p))
            pre = nxt[:2]; rest = nxt[2:]
            emit(pre)
            lg.need(("B", ph, i))
            lg.need(("A", (ph, i // 4), 4 * dl + 3))
            k = 0
            for j, (m, p) in enumerate(mf):
                a(m)
                n_to = (len(rest) * (j + 1) + len(mf) - 1) // len(mf)
                while k < min(n_to, len(rest)):
                    emit([rest[k]]); k += 1
            while k < len(rest):
                emit([rest[k]]); k += 1
    for nt in range(2):
        for mt in range(4):
            r = 48 + (nt * 4 + mt) * 2
            a(f"ds_read_b64 v[{r}:{r+1}], v8 offset:{(16-16*nt)*160 + 96 - 32*mt}")
    a("s_nop 7")
    a("s_waitcnt lgkmcnt(0)")
    for nt in range(2):
        for mt in range(4):
            r = 48 + (nt * 4 + mt) * 2
            ac = ACC + (nt * 4 + mt) * 4
            a(f"v_and_b32 v64, 0xffff0000, v{r+1}")
            a(f"v_lshlrev_b32 v65, 16, v{r+1}")
            a(f"v_and_b32 v66, 0xffff0000, v{r}")
            a(f"v_lshlrev_b32 v67, 16, v{r}")
            for q in range(4):
                a(f"v_fmac_f32 v{ac+q}, s64, v{64+q}")
            a(f"v_cvt_pk_bf16_f32 v{r}, v{ac}, v{ac+1}")
            a(f"v_cvt_pk_bf16_f32 v{r+1}, v{ac+2}, v{ac+3}")
            a(f"s_mov_b32 s66, {(nt*64+mt)*18432}")
            a(f"buffer_store_dwordx2 v[{r}:{r+1}], v9, s[32:35], s66 offen")
    stamp(a, 6)
    stamp_flush(a, 7, 77)
    a("s_endpgm")
    a.label("K1_LOADER")
    NCK = 8
    a("s_sub_u32 s17, s17, 4")
    a("s_lshl_b32 s16, s3, 3")
    a("s_mul_i32 s18, s17, 73728")
    a("s_add_u32 s18, s18, s16")
    a("s_add_u32 s42, s4, s18")
    a("s_addc_u32 s43, s5, 0")
    for i in range(6):
        a(f"s_mov_b32 s{48+i}, 0")
    a("s_cmp_eq_u32 s17, 0")
    a("s_cbranch_scc1 K1_NOHALO")
    a("s_sub_u32 s44, s42, 3456")
    a("s_subb_u32 s45, s43, 0")
    for i in range(3):
        a(f"s_load_dwordx2 s[{48+2*i}:{49+2*i}], s[44:45], {i*1152}")
    a.label("K1_NOHALO")
    srd(a, 36, 8, D * 8)
    a("s_lshl_b32 s18, s17, 6")
    a("v_add_u32 v8, s18, v2")
    a("s_movk_i32 s18, 1152")
    a("v_mul_lo_u32 v8, v8, s18")
    a("v_add_u32 v8, s16, v8")
    vm = Track(a, "vmcnt", 63)
    def issue_chunk(c):
        b = 16 + (c % 3) * 4
        a(f"s_mov_b32 s40, {c*294912}")
        a(f"buffer_load_dwordx2 v[{b}:{b+1}], v8, s[20:23], s40 offen"); vm.issue(f"c{c}")
        a(f"buffer_load_dwordx2 v[{b+2}:{b+3}], v8, s[24:27], s40 offen"); vm.issue(f"c{c}")
    issue_chunk(0)
    a("v_and_b32 v3, 7, v2")
    a("v_bfe_u32 v4, v2, 3, 2")
    a("s_lshl_b32 s18, s3, 5")
    a("v_lshl_add_u32 v5, v4, 3, s18")
    a("buffer_load_dwordx2 v[6:7], v5, s[36:39], 0 offen")
    vm.issue("taps")
    for c in range(1, NCK):
        a(f"s_add_u32 s44, s42, {c*294912 - 3456}")
        a(f"s_addc_u32 s45, s43, 0")
        for i in range(3):
            a(f"s_load_dwordx2 s[{48+6*c+2*i}:{49+6*c+2*i}], s[44:45], {i*1152}")
    a(f"s_mul_i32 s46, s17, 1088")
    a(f"s_add_u32 s46, s46, {4*K1_CH}")
    a("v_lshlrev_b32 v9, 2, v2")
    a("v_add_u32 v9, s46, v9")
    a("v_and_b32 v10, 1, v2")
    a("v_mul_u32_u24 v10, 272, v10")
    a("v_lshrrev_b32 v11, 1, v2")
    a("v_lshl_add_u32 v10, v11, 2, v10")
    a("v_add_u32 v10, 4, v10")
    a("v_add_u32 v10, s46, v10")
    a("v_lshrrev_b32 v11, 1, v4")
    a("v_mul_u32_u24 v12, 272, v11")
    a("v_lshl_add_u32 v12, v3, 5, v12")
    a("v_add_u32 v12, s46, v12")
    a("v_lshlrev_b32 v13, 8, v11")
    a("v_lshl_add_u32 v13, v3, 5, v13")
    a("v_add_u32 v13, s46, v13")
    a("v_and_b32 v14, 1, v4")
    a("v_mul_u32_u24 v14, 0x0202, v14")
    a("v_lshlrev_b32 v14, 16, v14")
    a("v_add_u32 v14, 0x01000c0c, v14")
    a("s_sub_u32 s18, 3, s17")
    a("s_mul_i32 s18, s18, 160")
    a(f"s_add_u32 s18, s18, {K1_U + 112}")
    a(f"s_mov_b32 s19, {K1_CH}")
    a("v_mul_lo_u32 v60, v4, s19")
    a("v_lshlrev_b32 v61, 4, v3")
    a("v_sub_u32 v60, v60, v61")
    a("v_add_u32 v60, s18, v60")
    issue_chunk(1)
    stamp(a, 2)
    vm.need("taps")
    a("v_lshlrev_b32 v56, 16, v6")
    a("v_and_b32 v57, 0xffff0000, v6")
    a("v_lshlrev_b32 v58, 16, v7")
    a("v_and_b32 v59, 0xffff0000, v7")
    a("s_waitcnt lgkmcnt(0)")
    stamp(a, 3)
    for ck in range(NCK):
        b = 16 + (ck % 3) * 4
        for j in range(6):
            a(f"v_writelane_b32 v62, s{48+6*ck+j}, {j}")
        vm.need(f"c{ck}")
        if ck == 0: stamp(a, 4)
        if ck == 1: stamp(a, 6)
        a(f"ds_write2_b32 v9, v{b}, v{b+1} offset0:4 offset1:72")
        a(f"ds_write2_b32 v9, v{b+2}, v{b+3} offset0:136 offset1:200")
        a("s_mov_b64 exec, 0x3f")
        a("ds_write_b32 v10, v62")
        a("s_mov_b64 exec, -1")
        a("s_waitcnt lgkmcnt(0)")
        for i in range(3):
            a(f"ds_read_b128 v[{32+4*i}:{35+4*i}], v12 offset:{16*i}")
        for i in range(2):
            a(f"ds_read_b128 v[{44+4*i}:{47+4*i}], v13 offset:{544+16*i}")
        a("s_waitcnt lgkmcnt(2)")
        for i in range(11):
            a(f"v_perm_b32 v{64+i}, v{33+i}, v{33+i}, v14")
        a("s_waitcnt lgkmcnt(0)")
        for i in range(8):
            a(f"v_perm_b32 v{76+i}, v{44+i}, v{44+i}, v14")
        for i in range(8):
            a(f"v_mul_f32 v{84+i}, v59, v{64+i}")
            a(f"v_fmac_f32 v{84+i}, v58, v{64+i+1}")
            a(f"v_fmac_f32 v{84+i}, v57, v{64+i+2}")
            a(f"v_fmac_f32 v{84+i}, v56, v{64+i+3}")
            a(f"v_mul_f32 v{84+i}, v{84+i}, v{76+i}")
        for q in range(4):
            a(f"v_cvt_pk_bf16_f32 v{92+q}, v{84+7-2*q}, v{84+6-2*q}")
        a(f"ds_write_b128 v60, v[92:95] offset:{(NCK-1-ck)*640}")
        a("s_waitcnt lgkmcnt(0)")
        if ck == 0: stamp(a, 5)
        a("s_barrier")
        if ck + 2 < NCK:
            issue_chunk(ck + 2)
    stamp_flush(a, 7, 77)
    a("s_endpgm")
    a.label("K1_MOD")
    a("s_load_dwordx4 s[4:7], s[0:1], 80")
    a("s_load_dwordx2 s[8:9], s[0:1], 112")
    a("s_load_dwordx4 s[40:43], s[0:1], 56")
    a("s_load_dwordx2 s[44:45], s[0:1], 72")
    a("s_load_dwordx2 s[46:47], s[0:1], 0")
    a("s_load_dwordx4 s[48:51], s[0:1], 8")
    a("s_sub_u32 s3, s2, 144")
    a("v_lshrrev_b32 v1, 6, v0")
    a("s_nop 0")
    a("v_readfirstlane_b32 s17, v1")
    a("s_cmp_ge_u32 s17, 4")
    a("s_cbranch_scc1 K1_PF")
    a("v_and_b32 v1, 3, v0")
    a("v_lshrrev_b32 v2, 2, v0")
    a("v_mul_u32_u24 v3, 18, v2")
    a("s_mov_b32 s16, 62208")
    a("v_mul_lo_u32 v4, v2, s16")
    a("v_lshlrev_b32 v5, 4, v1")
    a("s_lshl_b32 s17, s3, 6")
    a("v_add3_u32 v4, v4, v5, s17")
    a("s_waitcnt lgkmcnt(0)")
    srd(a, 20, 4, D * 2)
    srd(a, 24, 6, D * 6 * D * 2)
    srd(a, 28, 8, 6 * D * 2, WS_MOD)
    for i in range(9):
        a(f"buffer_load_ushort v{10+i}, v3, s[20:23], 0 offen offset:{2*i}")
    for i in range(9):
        a(f"s_mov_b32 s18, {i*6912}")
        a(f"buffer_load_dwordx4 v[{20+4*i}:{23+4*i}], v4, s[24:27], s18 offen")
    for r in range(8):
        a(f"v_mov_b32 v{60+r}, 0")
    a("s_waitcnt vmcnt(9)")
    a("s_mov_b32 s19, 0xbfb8aa3b")
    for i in range(9):
        a(f"v_lshlrev_b32 v{10+i}, 16, v{10+i}")
        a(f"v_mul_f32 v70, s19, v{10+i}")
        a("v_exp_f32 v70, v70")
        a("s_nop 0")
        a("v_add_f32 v70, 1.0, v70")
        a("v_rcp_f32 v70, v70")
        a("s_nop 0")
        a(f"v_mul_f32 v70, v70, v{10+i}")
        a("v_cvt_pk_bf16_f32 v70, v70, v70")
        a(f"v_lshlrev_b32 v{10+i}, 16, v70")
    for i in range(9):
        a(f"s_waitcnt vmcnt({8-i})")
        for q in range(4):
            a(f"v_lshlrev_b32 v70, 16, v{20+4*i+q}")
            a(f"v_and_b32 v71, 0xffff0000, v{20+4*i+q}")
            a(f"v_fmac_f32 v{60+2*q}, v70, v{10+i}")
            a(f"v_fmac_f32 v{61+2*q}, v71, v{10+i}")
    a("v_lshlrev_b32 v5, 5, v0")
    a("ds_write_b128 v5, v[60:63]")
    a("ds_write_b128 v5, v[64:67] offset:16")
    a("s_waitcnt lgkmcnt(0)")
    a("s_barrier")
    a("v_and_b32 v6, 31, v0")
    a("v_lshrrev_b32 v7, 5, v0")
    a("v_lshlrev_b32 v8, 10, v7")
    a("v_lshl_add_u32 v8, v6, 2, v8")
    for i in range(8):
        a(f"ds_read_b32 v{10+i}, v8 offset:{i*128}")
    a("s_waitcnt lgkmcnt(0)")
    for i in range(1, 8):
        a(f"v_add_f32 v10, v10, v{10+i}")
    a("v_lshlrev_b32 v9, 2, v0")
    a("ds_write_b32 v9, v10 offset:8192")
    a("s_waitcnt lgkmcnt(0)")
    a("s_barrier")
    a("v_lshlrev_b32 v8, 2, v6")
    for i in range(8):
        a(f"ds_read_b32 v{10+i}, v8 offset:{8192 + i*128}")
    a("s_waitcnt lgkmcnt(0)")
    for i in range(1, 8):
        a(f"v_add_f32 v10, v10, v{10+i}")
    a("v_cvt_pk_bf16_f32 v10, v10, v10")
    a("v_lshlrev_b32 v9, 1, v6")
    a("v_add_u32 v9, s17, v9")
    a("v_cmp_gt_u32 vcc, 32, v0")
    a("s_and_saveexec_b64 s[32:33], vcc")
    a("s_cbranch_execz K1_END")
    a("buffer_store_short v10, v9, s[28:31], 0 offen")
    a("s_endpgm")
    a.label("K1_PF")
    a("v_subrev_u32 v1, 256, v0")
    a("s_lshl_b32 s16, s3, 8")
    a("v_add_u32 v1, s16, v1")
    a("v_lshlrev_b32 v1, 4, v1")
    a("s_waitcnt lgkmcnt(0)")
    srd(a, 20, 46, NB_ACT)
    srd(a, 24, 40, D * F * 2)
    srd(a, 28, 42, D * F * 2)
    srd(a, 32, 44, D * F * 2)
    srd(a, 52, 48, NB_ACT)
    srd(a, 56, 50, NB_ACT)
    srd(a, 64, 8, 104 * 256, WS_CNT)
    a("s_cmp_lg_u32 s3, 0")
    a("s_cbranch_scc1 K1_NOZ")
    a("v_subrev_u32 v2, 256, v0")
    a("v_lshlrev_b32 v2, 8, v2")
    a("v_mov_b32 v3, 0")
    a("buffer_store_dword v3, v2, s[64:67], 0 offen")
    a.label("K1_NOZ")
    a("v_subrev_u32 v2, 256, v0")
    a("s_lshr_b32 s16, s3, 3")
    a("s_lshl_b32 s16, s16, 8")
    a("v_add_u32 v2, s16, v2")
    a("v_lshrrev_b32 v3, 1, v2")
    a("s_movk_i32 s16, 1152")
    a("v_mul_lo_u32 v3, v3, s16")
    a("v_and_b32 v2, 1, v2")
    a("v_mul_u32_u24 v2, 140, v2")
    a("s_and_b32 s16, s3, 7")
    a("s_mul_i32 s16, s16, 144")
    a("v_add3_u32 v3, v3, v2, s16")
    a(f"s_mov_b32 s18, {1664*1152}")
    a("buffer_load_dword v70, v3, s[52:55], 0 offen")
    a("buffer_load_dword v71, v3, s[56:59], 0 offen")
    a("buffer_load_dword v72, v3, s[52:55], s18 offen")
    a("buffer_load_dword v73, v3, s[56:59], s18 offen")
    if PF_CODE:
        a("s_getpc_b64 s[60:61]")
        a.label("K1_PC")
        a("s_sub_u32 s60, s60, K1_PC-k1_kernel")
        a("s_subb_u32 s61, s61, 0")
        a("s_mov_b32 s62, CODE_END-k1_kernel")
        a("s_mov_b32 s63, 0x00020000")
        a("v_subrev_u32 v2, 256, v0")
        a("s_lshr_b32 s16, s3, 3")
        a("s_lshl_b32 s16, s16, 8")
        a("v_add_u32 v2, s16, v2")
        a("v_lshlrev_b32 v3, 4, v2")
        a("buffer_load_dwordx4 v[76:79], v3, s[60:63], 0 offen")
        a("s_mov_b32 s18, 53248")
        a("buffer_load_dwordx4 v[80:83], v3, s[60:63], s18 offen")
    if PF_TLB:
        srd(a, 64, 8, WS_END)
        a("v_lshlrev_b32 v3, 15, v2")
        a("buffer_load_dword v84, v3, s[64:67], 0 offen")
    PASS = 108 * 256 * 16
    n = 0
    lin = [((20, NB_ACT), (24, D*F*2), (28, D*F*2), (32, D*F*2))[i] for i in PF_LIST]
    for (sr, nb) in lin:
        for i in range((nb + PASS - 1) // PASS):
            a(f"s_mov_b32 s18, {i*PASS}")
            r = 4 + 4 * (n % 16); n += 1
            a(f"buffer_load_dwordx4 v[{r}:{r+3}], v1, s[{sr}:{sr+3}], s18 offen")
    if PF_XCD:
        a("v_subrev_u32 v2, 256, v0")
        a("s_lshr_b32 s16, s3, 3")
        a("s_lshl_b32 s16, s16, 8")
        a("v_add_u32 v2, s16, v2")
        a("v_mul_u32_u24 v3, 3641, v2")
        a("v_lshrrev_b32 v3, 19, v3")
        a("v_mul_u32_u24 v74, 144, v3")
        a("v_sub_u32 v74, v2, v74")
        a("v_mul_u32_u24 v3, 9216, v3")
        a("v_lshl_add_u32 v3, v74, 4, v3")
        a("s_and_b32 s16, s3, 7")
        a("s_lshr_b32 s16, s16, 1")
        a("s_mul_i32 s16, s16, 2304")
        a("v_add_u32 v3, s16, v3")
        for i in range(26):
            a(f"s_mov_b32 s18, {i*23*9216}")
            for sr in (24, 28):
                r = 4 + 4 * (n % 16); n += 1
                a(f"buffer_load_dwordx4 v[{r}:{r+3}], v3, s[{sr}:{sr+3}], s18 offen")
    a("s_waitcnt vmcnt(0)")
    a.label("K1_END")
    a("s_endpgm")

class Track:
    def __init__(self, a, name, maxn):
        self.a = a; self.name = name; self.maxn = maxn
        self.q = []
    def issue(self, tag):
        self.q.append(tag)
    def need(self, tag):
        idx = [i for i, t in enumerate(self.q) if t == tag]
        if not idx: return
        n = len(self.q) - 1 - idx[-1]
        n = min(n, self.maxn)
        self.a(f"s_waitcnt {self.name}({n})")
        self.q = self.q[len(self.q) - n:] if n else []
    def drain(self):
        self.a(f"s_waitcnt {self.name}(0)")
        self.q = []

def bf16_round(a, v, tmp=None):
    a(f"v_cvt_pk_bf16_f32 v{v}, v{v}, v{v}")
    a(f"v_lshlrev_b32 v{v}, 16, v{v}")

K2_LDS = 18432 + 4096
def gen_k2(a):
    kernel_header(a, "k2_kernel")
    a("s_cmp_ge_u32 s2, 128")
    a("s_cbranch_scc1 K2_END")
    stamp(a, 0)
    a("s_load_dwordx2 s[4:5], s[0:1], 0")
    a("s_load_dwordx2 s[6:7], s[0:1], 112")
    a("v_lshrrev_b32 v1, 6, v0")
    a("v_and_b32 v2, 63, v0")
    a("s_nop 0")
    a("v_readfirstlane_b32 s17, v1")
    a("v_and_b32 v3, 15, v2")
    a("v_lshrrev_b32 v4, 4, v2")
    a("s_waitcnt lgkmcnt(0)")
    stamp(a, 1)
    srd(a, 20, 4, NB_ACT)
    srd(a, 24, 6, NB_ACT, WS_Y2T)
    srd(a, 28, 6, 6 * D * 2, WS_MOD)
    srd(a, 32, 6, NB_ACT, WS_X1)
    srd(a, 36, 6, NB_ACT, WS_H2F)
    a("v_lshrrev_b32 v5, 1, v2")
    a("v_lshrrev_b32 v6, 4, v5")
    a("v_bfe_u32 v7, v5, 2, 2")
    a("v_and_b32 v8, 3, v5")
    a("v_lshlrev_b32 v7, 3, v7")
    a("v_lshl_add_u32 v7, v6, 2, v7")
    a("v_add_u32 v7, v7, v8")
    a("v_lshlrev_b32 v7, 5, v7")
    a("v_and_b32 v8, 1, v2")
    a("v_lshl_add_u32 v7, v8, 4, v7")
    a("s_mul_i32 s18, s2, 18432")
    a("s_lshl_b32 s19, s17, 11")
    a("s_add_u32 s18, s18, s19")
    a("s_mov_b32 m0, s19")
    a("s_nop 0")
    a("buffer_load_dwordx4 v7, s[24:27], s18 offen lds")
    a("buffer_load_dwordx4 v7, s[24:27], s18 offen offset:1024 lds")
    a("s_lshl_b32 s18, s2, 4")
    a("v_add_u32 v8, s18, v3")
    a("s_movk_i32 s18, 1152")
    a("v_mul_lo_u32 v8, v8, s18")
    a("v_lshlrev_b32 v9, 4, v4")
    a("s_lshl_b32 s18, s17, 7")
    a("v_add_u32 v9, s18, v9")
    a("v_add_u32 v8, v8, v9")
    a("buffer_load_dwordx4 v[12:15], v8, s[20:23], 0 offen")
    a("buffer_load_dwordx4 v[16:19], v8, s[20:23], 0 offen offset:64")
    for p in range(5):
        for kk in range(2):
            r = 20 + 8 * p + 4 * kk
            if p * 1152 + 64 * kk < 4096:
                a(f"buffer_load_dwordx4 v[{r}:{r+3}], v9, s[28:31], 0 offen offset:{p*1152 + 64*kk}")
            else:
                a("s_movk_i32 s18, 4608")
                a(f"buffer_load_dwordx4 v[{r}:{r+3}], v9, s[28:31], s18 offen offset:{64*kk}")
    a("v_lshlrev_b32 v10, 3, v2")
    a("v_add_u32 v10, s19, v10")
    a("v_lshlrev_b32 v11, 3, v3")
    a("v_add_u32 v11, 18432, v11")
    a("s_lshl_b32 s18, s17, 7")
    a("v_add_u32 v60, s18, v11")
    stamp(a, 2)
    a("s_waitcnt vmcnt(10)")
    stamp(a, 3)
    a("ds_read_b64_tr_b16 v[96:97], v10")
    a("ds_read_b64_tr_b16 v[98:99], v10 offset:512")
    a("ds_read_b64_tr_b16 v[100:101], v10 offset:1024")
    a("ds_read_b64_tr_b16 v[102:103], v10 offset:1536")
    for i in range(8):
        a(f"v_lshlrev_b32 v{64+2*i}, 16, v{12+i}")
        a(f"v_and_b32 v{65+2*i}, 0xffff0000, v{12+i}")
    def stats(src, rnd):
        a(f"v_add_f32 v62, v{src}, v{src+1}")
        a(f"v_mul_f32 v63, v{src}, v{src}")
        a(f"v_fmac_f32 v63, v{src+1}, v{src+1}")
        for i in range(2, 16):
            a(f"v_add_f32 v62, v62, v{src+i}")
            a(f"v_fmac_f32 v63, v{src+i}, v{src+i}")
        for sw in ("v_permlane16_swap_b32", "v_permlane32_swap_b32"):
            a("v_mov_b32 v104, v62")
            a("v_mov_b32 v105, v63")
            a("s_nop 1")
            a(f"{sw} v62, v104")
            a(f"{sw} v63, v105")
            a("s_nop 1")
            a("v_add_f32 v62, v62, v104")
            a("v_add_f32 v63, v63, v105")
        a(f"ds_write_b64 v60, v[62:63] offset:{rnd*2048}")
        a("s_waitcnt lgkmcnt(0)")
        a("s_barrier")
        for w in range(9):
            a(f"ds_read_b64 v[{106+2*w}:{107+2*w}], v11 offset:{rnd*2048 + w*128}")
        a("s_waitcnt lgkmcnt(0)")
        for w in range(1, 9):
            a(f"v_add_f32 v106, v106, v{106+2*w}")
            a(f"v_add_f32 v107, v107, v{107+2*w}")
        a("s_mov_b32 s18, 0x3ae38e39")
        a("v_mul_f32 v62, s18, v106")
        a("v_mul_f32 v63, s18, v107")
        a("v_fma_f32 v63, -v62, v62, v63")
        a("v_max_f32 v63, 0, v63")
        bf16_round(a, 62)
        bf16_round(a, 63)
        a("v_add_f32 v63, 0x3727c5ac, v63")
        bf16_round(a, 63)
        a("v_sqrt_f32 v63, v63")
        a("s_nop 0")
        bf16_round(a, 63)
        a("v_rcp_f32 v63, v63")
        a("s_nop 0")
    stats(64, 0)
    a("s_waitcnt vmcnt(0)")
    stamp(a, 4)
    def punpack(dst, p, e):
        r = 20 + 8 * p + 4 * (e >> 3) + ((e & 7) >> 1)
        if e & 1: a(f"v_and_b32 v{dst}, 0xffff0000, v{r}")
        else: a(f"v_lshlrev_b32 v{dst}, 16, v{r}")
    for e in range(16):
        x = 64 + e
        yr = 96 + (e >> 1)
        punpack(104, 1, e)
        punpack(105, 0, e)
        punpack(106, 2, e)
        if e & 1: a(f"v_and_b32 v107, 0xffff0000, v{yr}")
        else: a(f"v_lshlrev_b32 v107, 16, v{yr}")
        a("v_add_f32 v104, 1.0, v104")
        a(f"v_sub_f32 v108, v{x}, v62")
        a("v_mul_f32 v108, v108, v63")
        a("v_fma_f32 v108, v108, v104, v105")
        a("v_mul_f32 v108, v108, v107")
        a(f"v_fma_f32 v{80+e}, v108, v106, v{x}")
    for i in range(8):
        a(f"v_cvt_pk_bf16_f32 v{12+i}, v{80+2*i}, v{81+2*i}")
    for i in range(8):
        a(f"v_lshlrev_b32 v{80+2*i}, 16, v{12+i}")
        a(f"v_and_b32 v{81+2*i}, 0xffff0000, v{12+i}")
    a("buffer_store_dwordx4 v[12:15], v8, s[32:35], 0 offen")
    a("buffer_store_dwordx4 v[16:19], v8, s[32:35], 0 offen offset:64")
    stats(80, 1)
    stamp(a, 5)
    for e in range(16):
        punpack(104, 4, e)
        punpack(105, 3, e)
        a("v_add_f32 v104, 1.0, v104")
        a(f"v_sub_f32 v108, v{80+e}, v62")
        a("v_mul_f32 v108, v108, v63")
        a(f"v_fma_f32 v{64+e}, v108, v104, v105")
    for i in range(8):
        a(f"v_cvt_pk_bf16_f32 v{96+i}, v{64+2*i}, v{65+2*i}")
    a("s_mul_i32 s18, s2, 18432")
    a("s_add_u32 s18, s18, s19")
    a("v_lshlrev_b32 v9, 4, v2")
    a("buffer_store_dwordx4 v[96:99], v9, s[36:39], s18 offen")
    a("buffer_store_dwordx4 v[100:103], v9, s[36:39], s18 offen offset:1024")
    if STAMP: a("s_waitcnt vmcnt(0)")
    stamp(a, 6)
    stamp_flush(a, 7, 77)
    a.label("K2_END")
    a("s_endpgm")

ST_BYTES = 34816
G_LDS = 4 * ST_BYTES
NST = 18
def gen_gemm(a, mode):
    nm = "k3" if mode == 1 else "k4"
    kernel_header(a, nm + "_kernel")
    a("s_cmp_ge_u32 s2, 256")
    a(f"s_cbranch_scc1 {nm.upper()}_END")
    stamp(a, 0)
    if mode == 1:
        a("s_load_dwordx4 s[4:7], s[0:1], 56")
    else:
        a("s_load_dwordx2 s[4:5], s[0:1], 72")
    a("s_load_dwordx2 s[8:9], s[0:1], 112")
    a("v_lshrrev_b32 v1, 6, v0")
    a("v_and_b32 v2, 63, v0")
    a("s_nop 0")
    a("v_readfirstlane_b32 s17, v1")
    a("s_and_b32 s10, s2, 7")
    a("s_lshr_b32 s11, s2, 3")
    a("s_and_b32 s12, s10, 1")
    a("s_lshr_b32 s13, s10, 1")
    if mode == 1:
        a("s_lshl_b32 s12, s12, 2")
        a("s_and_b32 s14, s11, 3")
        a("s_add_u32 s12, s12, s14")
        a("s_lshl_b32 s13, s13, 3")
        a("s_lshr_b32 s14, s11, 2")
        a("s_add_u32 s13, s13, s14")
    else:
        a("s_lshl_b32 s12, s12, 3")
        a("s_and_b32 s14, s11, 7")
        a("s_add_u32 s12, s12, s14")
        a("s_lshr_b32 s14, s11, 3")
    a("s_and_b32 s15, s17, 3")
    a("s_waitcnt lgkmcnt(0)")
    if mode == 1:
        srd(a, 20, 4, D * F * 2)
        srd(a, 24, 6, D * F * 2)
        srd(a, 28, 8, NB_ACT, WS_H2F)
        srd(a, 32, 8, S * F * 2, WS_HID)
        a("s_cmp_lt_u32 s15, 2")
        a("s_cselect_b32 s36, s4, s6")
        a("s_cselect_b32 s37, s5, s7")
        a(f"s_mov_b32 s38, {D*F*2}")
        a("s_mov_b32 s39, 0x00020000")
        pitch = 9216
    else:
        srd(a, 20, 4, D * F * 2)
        srd(a, 28, 8, S * F * 2, WS_HID)
        srd(a, 32, 8, 4 * S * D * 4, WS_PART)
        pitch = 1152
    a("v_lshlrev_b32 v3, 4, v2")
    if mode == 1:
        a("s_lshl_b32 s18, s15, 12")
    else:
        a("s_and_b32 s18, s15, 1")
        a("s_lshl_b32 s18, s18, 13")
        a("s_lshr_b32 s19, s15, 1")
        a("s_lshl_b32 s19, s19, 12")
        a("s_add_u32 s18, s18, s19")
    a("v_add_u32 v4, s18, v3")
    a("v_lshrrev_b32 v5, 2, v2")
    a("v_mul_u32_u24 v5, 288, v5")
    a("v_and_b32 v6, 3, v2")
    a("v_lshl_add_u32 v5, v6, 3, v5")
    a("v_add_u32 v5, 16384, v5")
    if mode == 1:
        a("s_and_b32 s16, s13, 1")
        a("s_lshl_b32 s18, s16, 5")
        a("v_add_u32 v6, s18, v5")
        a("s_cmp_eq_u32 s16, 0")
        a("s_cselect_b32 s18, 256, 0")
        a("v_add_u32 v7, s18, v5")
    else:
        a("s_and_b32 s18, s15, 1")
        a("s_mul_i32 s18, s18, 9216")
        a("v_add_u32 v6, s18, v5")
    a("s_cmp_ge_u32 s17, 4")
    a(f"s_cbranch_scc1 {nm.upper()}_TG1")
    for tg in range(2):
        if tg == 1:
            a.label(f"{nm.upper()}_TG1")
        gemm_body(a, mode, tg, pitch)
    a.label(f"{nm.upper()}_END")
    a("s_endpgm")

def gemm_body(a, mode, tg, pitch):
    nt = 5 if tg == 0 else 4
    vm = Track(a, "vmcnt", 63)
    lg = Track(a, "lgkmcnt", 15)
    if tg == 0:
        a("v_mov_b32 v8, v3")
        for i in range(4):
            if mode == 1:
                a("s_lshl_b32 s18, s12, 4")
                a("s_lshl_b32 s19, s15, 2")
                a("s_add_u32 s18, s18, s19")
                a(f"s_add_u32 s18, s18, {i}")
                a(f"s_mul_i32 s{40+i}, s18, 18432")
            else:
                a("s_and_b32 s18, s15, 1")
                a("s_lshl_b32 s18, s18, 2")
                a("s_lshl_b32 s19, s12, 3")
                a("s_add_u32 s18, s18, s19")
                a(f"s_add_u32 s18, s18, {i}")
                a("s_mul_i32 s18, s18, 144")
                a("s_mul_i32 s19, s13, 36")
                a("s_add_u32 s18, s18, s19")
                a("s_lshr_b32 s19, s15, 1")
                a("s_add_u32 s18, s18, s19")
                a(f"s_lshl_b32 s{40+i}, s18, 10")
        a("s_lshl_b32 s44, s15, 12")
        astep = 1024 if mode == 1 else 2048
        def dma(st):
            base = (st & 3) * ST_BYTES
            for i in range(4):
                a(f"s_add_u32 m0, s44, {base + i*1024}")
                a("s_nop 0")
                a(f"buffer_load_dwordx4 v8, s[28:31], s{40+i} offen lds")
                vm.issue(("d", st))
            a(f"v_add_u32 v8, {astep}, v8")
    else:
        def qaddr(dst):
            a(f"v_mul_u32_u24 v12, 3641, v{dst}")
            a("v_lshrrev_b32 v12, 16, v12")
            a("v_mul_u32_u24 v13, 18, v12")
            a(f"v_sub_u32 v13, v{dst}, v13")
            if mode == 1:
                a("v_lshrrev_b32 v14, 4, v12")
                a("v_bfe_u32 v15, v12, 2, 2")
                a("v_and_b32 v12, 3, v12")
                a("v_lshl_add_u32 v12, v15, 3, v12")
                a("v_lshl_add_u32 v12, v14, 2, v12")
            a(f"v_mul_u32_u24 v12, {pitch}, v12")
            a(f"v_lshl_add_u32 v{dst}, v13, 4, v12")
        a("s_lshl_b32 s18, s15, 7")
        a("v_add_u32 v8, s18, v2")
        a("v_add_u32 v9, 64, v8")
        a("s_and_b32 s18, s15, 1")
        a("s_lshl_b32 s18, s18, 5")
        a("s_add_u32 s18, s18, 512")
        a("v_add_u32 v10, s18, v2")
        qaddr(8); qaddr(9); qaddr(10)
        if mode == 1:
            a("s_mul_i32 s40, s13, 288")
        else:
            a(f"s_mul_i32 s40, s13, {1152*1152}")
            a("s_mul_i32 s18, s14, 288")
            a("s_add_u32 s40, s40, s18")
        a("s_lshl_b32 s44, s15, 11")
        a("s_lshr_b32 s45, s15, 1")
        a("s_mul_i32 s45, s45, 9216")
        a("s_and_b32 s18, s15, 1")
        a("s_lshl_b32 s18, s18, 9")
        a("s_add_u32 s45, s45, s18")
        if mode == 2:
            a("s_lshr_b32 s46, s15, 1")
            a(f"s_mul_i32 s46, s46, {32*pitch}")
        wstep = 32 * pitch if mode == 1 else 64 * pitch
        def dma(st):
            base = (st & 3) * ST_BYTES + 16384
            if mode == 2:
                a(f"s_add_u32 s41, s40, {32*pitch}")
                a("s_add_u32 s42, s40, s46")
            for blk in range(2):
                for j in range(2):
                    a(f"s_add_u32 m0, s44, {base + blk*9216 + j*1024}")
                    a("s_nop 0")
                    if mode == 1:
                        a(f"buffer_load_dwordx4 v{8+j}, s[{20+4*blk}:{23+4*blk}], s40 offen lds")
                    else:
                        a(f"buffer_load_dwordx4 v{8+j}, s[20:23], s{40+blk} offen lds")
                    vm.issue(("d", st))
            a(f"s_add_u32 m0, s45, {base + 8192}")
            a("s_mov_b64 exec, 0xffffffff")
            if mode == 1:
                a("buffer_load_dwordx4 v10, s[36:39], s40 offen lds")
            else:
                a("buffer_load_dwordx4 v10, s[20:23], s42 offen lds")
            vm.issue(("d", st))
            a("s_mov_b64 exec, -1")
            a(f"s_add_u32 s40, s40, {wstep}")
    AF = 16
    WR = 48
    ACC = 64
    nblk = 2 if mode == 1 else 1
    units = [(t, b) for t in range(nt) for b in range(nblk)]
    U = len(units)
    def acc(t, b, i): return ACC + ((t * nblk + b) * 4 + i) * 4
    nacc = U * 16
    for r in range(nacc):
        a(f"v_mov_b32 v{ACC+r}, 0")
    def w_addr(t, b):
        if mode == 1:
            if tg == 0:
                if t == 0: return 7, b * 9216
                return 6, b * 9216 + (t - 1) * 32
            return 6, b * 9216 + (4 + t) * 32
        else:
            return 6, (t if tg == 0 else 5 + t) * 32
    def read_w(gu):
        st, u = divmod(gu, U)
        if st >= NST: return
        t, b = units[u]
        vr, off = w_addr(t, b)
        off += (st & 3) * ST_BYTES
        r = WR + (gu & 3) * 4
        if off + 4608 >= 65536:
            vr2 = {6: 12, 7: 13}[vr]; off -= 65536 - 0
            vr = vr2
        a(f"ds_read_b64_tr_b16 v[{r}:{r+1}], v{vr} offset:{off}")
        lg.issue(("w", gu))
        a(f"ds_read_b64_tr_b16 v[{r+2}:{r+3}], v{vr} offset:{off+4608}")
        lg.issue(("w", gu))
    def read_a(st, i):
        if st >= NST: return
        off = (st & 3) * ST_BYTES + i * 1024
        vr = 4
        if off >= 65536 - 16384:
            vr = 14; off -= 65536
        r = AF + (st & 1) * 16 + i * 4
        a(f"ds_read_b128 v[{r}:{r+3}], v{vr} offset:{off}")
        lg.issue(("a", st, i))
    a("v_add_u32 v12, 0x10000, v6")
    if mode == 1 and tg == 0:
        a("v_add_u32 v13, 0x10000, v7")
    a("v_add_u32 v14, 0x10000, v4")
    dma(0); dma(1); dma(2)
    PD = 3
    first = True
    for st in range(NST):
        vm.need(("d", min(st + 1, NST - 1)))
        a("s_barrier")
        if st in (0, 3, 9, 15):
            stamp(a, {0:1, 3:2, 9:3, 15:4}[st])
        if st + 3 < NST:
            dma(st + 3)
        if st == 0:
            for i in range(4): read_a(0, i)
            for gu in range(PD): read_w(gu)
        for u in range(U):
            gu = st * U + u
            read_w(gu + PD)
            if u >= U - 4:
                read_a(st + 1, u - (U - 4))
            lg.need(("w", gu))
            if u == 0:
                lg.need(("a", st, 3))
            t, b = units[u]
            r = WR + (gu & 3) * 4
            for i in range(4):
                ar = AF + (st & 1) * 16 + i * 4
                ac = acc(t, b, i)
                a(f"v_mfma_f32_16x16x32_bf16 v[{ac}:{ac+3}], v[{r}:{r+3}], v[{ar}:{ar+3}], v[{ac}:{ac+3}]")
    a("s_nop 7")
    stamp(a, 5)
    if mode == 1:
        a("s_mul_i32 s18, s13, 9")
        a("s_add_u32 s18, s18, s16")
        a("s_lshr_b32 s18, s18, 1")
        a("s_lshl_b32 s19, s12, 4")
        a("s_lshl_b32 s40, s15, 2")
        a("s_add_u32 s19, s19, s40")
        a("s_mul_i32 s19, s19, 144")
        a("s_add_u32 s40, s19, s18")
        a("s_lshl_b32 s40, s40, 10")
        if tg == 0:
            a("s_mul_i32 s41, s13, 9")
            a("s_cmp_eq_u32 s16, 0")
            a("s_cselect_b32 s42, 8, 0")
            a("s_add_u32 s41, s41, s42")
            a("s_lshr_b32 s41, s41, 1")
            a("s_add_u32 s41, s41, s19")
            a("s_lshl_b32 s41, s41, 10")
            a("s_lshl_b32 s42, s16, 3")
            a("s_add_u32 s41, s41, s42")
        def hid(t, i, dst):
            g = acc(t, 0, i); u_ = acc(t, 1, i)
            for q in range(4):
                a(f"v_max_f32 v{g+q}, 0, v{g+q}")
            for q in range(4):
                a(f"v_mul_f32 v{g+q}, v{g+q}, v{u_+q}")
            a(f"v_cvt_pk_bf16_f32 v{dst}, v{g}, v{g+1}")
            a(f"v_cvt_pk_bf16_f32 v{dst+1}, v{g+2}, v{g+3}")
        slot = 0
        for i in range(4):
            pairs = [(1, 2), (3, 4)] if tg == 0 else [(0, 1), (2, 3)]
            for pp, (t0, t1) in enumerate(pairs):
                dst = 16 + (slot % 8) * 4; slot += 1
                hid(t0, i, dst); hid(t1, i, dst + 2)
                po = (pp + (0 if tg == 0 else 2)) * 1024
                a(f"s_add_u32 s42, s40, {i*144*1024 + po}")
                a(f"buffer_store_dwordx4 v[{dst}:{dst+3}], v3, s[32:35], s42 offen sc1")
            if tg == 0:
                dst = 16 + (slot % 8) * 4; slot += 1
                hid(0, i, dst)
                a(f"s_add_u32 s42, s41, {i*144*1024}")
                a(f"buffer_store_dwordx2 v[{dst}:{dst+1}], v3, s[32:35], s42 offen sc1")
    else:
        a("s_barrier")
        a("s_lshr_b32 s18, s15, 1")
        a(f"s_add_u32 s18, s18, {tg*2}")
        a("s_lshl_b32 s18, s18, 1")
        a("s_and_b32 s16, s15, 1")
        a("s_add_u32 s19, s18, s16")
        a("s_mul_i32 s19, s19, 10240")
        a("s_xor_b32 s40, s16, 1")
        a("s_add_u32 s18, s18, s40")
        a("s_mul_i32 s18, s18, 10240")
        a("v_add_u32 v8, s19, v3")
        a("v_add_u32 v9, s18, v3")
        a("s_cmp_eq_u32 s16, 0")
        lbl = f"K4_EP{tg}"
        a(f"s_cbranch_scc0 {lbl}_B")
        for kg in range(2):
            if kg == 1: a.label(f"{lbl}_B")
            keep = [2 * kg, 2 * kg + 1]; send = [2 - 2 * kg, 3 - 2 * kg]
            for t in range(nt):
                for ii, i in enumerate(send):
                    ac = acc(t, 0, i)
                    a(f"ds_write_b128 v8, v[{ac}:{ac+3}] offset:{(t*2+ii)*1024}")
            a("s_waitcnt lgkmcnt(0)")
            a("s_barrier")
            a("s_lshl_b32 s40, s13, 7")
            a("s_lshl_b32 s41, s12, 3")
            a("s_add_u32 s40, s40, s41")
            a("s_lshr_b32 s41, s15, 1")
            a("s_lshl_b32 s41, s41, 2")
            a("s_add_u32 s40, s40, s41")
            a("s_mul_i32 s40, s40, 36")
            a("s_mul_i32 s41, s14, 9")
            a("s_add_u32 s40, s40, s41")
            a("s_lshl_b32 s40, s40, 10")
            for t in range(nt):
                for ii, i in enumerate(keep):
                    r = 16 + ((t * 2 + ii) % 10) * 4
                    a(f"ds_read_b128 v[{r}:{r+3}], v9 offset:{(t*2+ii)*1024}")
            for t in range(nt):
                for ii, i in enumerate(keep):
                    r = 16 + ((t * 2 + ii) % 10) * 4
                    ac = acc(t, 0, i)
                    a(f"s_waitcnt lgkmcnt({min(15, 2*nt - 1 - (t*2+ii))})")
                    for q in range(4):
                        a(f"v_add_f32 v{ac+q}, v{ac+q}, v{r+q}")
                    a(f"s_add_u32 s42, s40, {(i*36 + t + (0 if tg == 0 else 5))*1024}")
                    a(f"buffer_store_dwordx4 v[{ac}:{ac+3}], v3, s[32:35], s42 offen sc1")
            if STAMP: a("s_waitcnt vmcnt(0)")
            stamp(a, 6)
            stamp_flush(a, 7, 77)
            a("s_endpgm")
    if mode == 1:
        stamp_flush(a, 7, 77)
        a("s_endpgm")

KS_A = [9*m + j for m in range(4) for j in (2, 3, 4, 5, 6)]
KS_B = [9*m + j for m in range(4) for j in (0, 1, 7, 8)]
KS_ORDER = KS_A + KS_B
NSTG = 54
STAMP_AT = [35, 53]
DEFER = True
SIG_A = 29
SIG_B = 41
STORE_GAP_A = 6
STORE_GAP_B = 4
POLL_A_STAGE = 36
POLL_B_STAGE = 46
LN_SCR = 3 * ST_BYTES
def gen_k34(a):
    kernel_header(a, "k34_kernel")
    a("s_cmp_ge_u32 s2, 256")
    a("s_cbranch_scc1 K34_END")
    stamp(a, 0)
    a("s_load_dwordx4 s[4:7], s[0:1], 56")
    a("s_load_dwordx2 s[8:9], s[0:1], 72")
    a("s_load_dwordx4 s[48:51], s[0:1], 104")
    a("s_load_dwordx2 s[78:79], s[0:1], 0")
    a("s_load_dwordx2 s[80:81], s[0:1], 96")
    a("v_lshrrev_b32 v1, 6, v0")
    a("v_and_b32 v2, 63, v0")
    a("s_nop 0")
    a("v_readfirstlane_b32 s17, v1")
    a("s_and_b32 s10, s2, 7")
    a("s_lshr_b32 s11, s2, 3")
    a("s_and_b32 s18, s10, 1")
    a("s_lshr_b32 s10, s10, 1")
    a("s_lshl_b32 s12, s18, 2")
    a("s_and_b32 s14, s11, 3")
    a("s_add_u32 s12, s12, s14")
    a("s_lshl_b32 s13, s10, 3")
    a("s_lshr_b32 s14, s11, 2")
    a("s_add_u32 s13, s13, s14")
    a("s_lshl_b32 s52, s18, 3")
    a("s_and_b32 s14, s11, 7")
    a("s_add_u32 s52, s52, s14")
    a("s_lshr_b32 s14, s11, 3")
    a("s_and_b32 s15, s17, 3")
    a("s_and_b32 s16, s13, 1")
    a("v_lshlrev_b32 v3, 4, v2")
    a("s_waitcnt lgkmcnt(0)")
    srd(a, 84, 50, NB_ACT, WS_X1)
    srd(a, 88, 50, 6 * D * 2, WS_MOD)
    srd(a, 60, 50, 104 * 256, WS_CNT)
    a("s_cmp_ge_u32 s17, 4")
    a("s_cbranch_scc1 K34_LOADER")
    k34_compute(a)
    a.label("K34_LOADER")
    k34_loader(a)
    a.label("K34_END")
    a("s_endpgm")

def ln_phase(a, tag):
    srd(a, 92, 78, NB_ACT)
    srd(a, 96, 50, NB_ACT, WS_Y2T)
    a("s_lshl_b32 s18, s12, 4")
    a("s_lshr_b32 s19, s13, 1")
    a("s_add_u32 s82, s18, s19")
    a("s_lshl_b32 s18, s12, 8")
    a("s_lshl_b32 s19, s13, 3")
    a("s_add_u32 s83, s18, s19")
    a("v_and_b32 v24, 7, v2")
    a("v_lshrrev_b32 v25, 3, v2")
    a("v_lshlrev_b32 v26, 5, v2")
    a("s_mul_i32 s18, s82, 18432")
    a("s_lshl_b32 s19, s16, 4")
    a("s_add_u32 s18, s18, s19")
    a("s_lshl_b32 s19, s17, 11")
    a("s_add_u32 s19, s19, s18")
    a("s_lshl_b32 s77, s17, 10")
    a(f"s_add_u32 m0, s77, {LN_SCR}")
    a("s_nop 0")
    a("buffer_load_dwordx4 v26, s[96:99], s19 offen lds")
    a("v_add_u32 v27, s83, v24")
    a("s_movk_i32 s19, 1152")
    a("v_mul_lo_u32 v27, v27, s19")
    a("v_lshlrev_b32 v28, 4, v25")
    a("s_lshl_b32 s19, s17, 7")
    a("v_add_u32 v28, s19, v28")
    a("v_add_u32 v27, v27, v28")
    a("s_movk_i32 s76, 4608")
    def loads(rnd):
        b = 32 + 24 * rnd
        co = "" if rnd == 0 else " offset:1024"
        a(f"buffer_load_dwordx4 v[{b}:{b+3}], v27, s[92:95], 0 offen{co}")
        for p in range(5):
            r = b + 4 + 4 * p
            off = p * 1152 + 1024 * rnd
            if off < 4096: a(f"buffer_load_dwordx4 v[{r}:{r+3}], v28, s[88:91], 0 offen offset:{off}")
            else: a(f"buffer_load_dwordx4 v[{r}:{r+3}], v28, s[88:91], s76 offen offset:{off-4608}") if off >= 4608 else a(f"s_movk_i32 s19, 3456\nbuffer_load_dwordx4 v[{r}:{r+3}], v28, s[88:91], s19 offen offset:{off-3456}")
    loads(0)
    a("s_cmp_lg_u32 s17, 0")
    a(f"s_cbranch_scc1 LN_L1_{tag}")
    a(f"s_add_u32 s19, s18, {8*2048}")
    a(f"s_mov_b32 m0, {LN_SCR + 8192}")
    a("s_nop 0")
    a("buffer_load_dwordx4 v26, s[96:99], s19 offen lds")
    loads(1)
    a.label(f"LN_L1_{tag}")
    a("v_lshrrev_b32 v29, 4, v2")
    a("v_lshlrev_b32 v29, 8, v29")
    a("v_bfe_u32 v30, v2, 1, 1")
    a("v_lshl_add_u32 v29, v30, 7, v29")
    a("v_bfe_u32 v30, v2, 2, 2")
    a("v_lshl_add_u32 v29, v30, 4, v29")
    a("v_and_b32 v30, 1, v2")
    a("v_lshl_add_u32 v29, v30, 3, v29")
    a(f"s_add_u32 s19, s77, {LN_SCR}")
    a("v_add_u32 v29, s19, v29")
    a("v_lshlrev_b32 v31, 3, v24")
    a(f"v_add_u32 v31, {LN_SCR + 10240}, v31")
    a("s_lshl_b32 s19, s17, 6")
    a("v_add_u32 v30, s19, v31")
    a("s_waitcnt vmcnt(0)")
    a("ds_read_b64_tr_b16 v[96:97], v29")
    a("ds_read_b64_tr_b16 v[98:99], v29 offset:64")
    def unpack_x(rnd):
        b = 32 + 24 * rnd
        for i in range(4):
            a(f"v_lshlrev_b32 v{80+8*rnd+2*i}, 16, v{b+i}")
            a(f"v_and_b32 v{81+8*rnd+2*i}, 0xffff0000, v{b+i}")
    def part(src, first):
        if first:
            a(f"v_add_f32 v104, v{src}, v{src+1}")
            a(f"v_mul_f32 v105, v{src}, v{src}")
            a(f"v_fmac_f32 v105, v{src+1}, v{src+1}")
            rng = range(2, 8)
        else:
            rng = range(8)
        for i in rng:
            a(f"v_add_f32 v104, v104, v{src+i}")
            a(f"v_fmac_f32 v105, v{src+i}, v{src+i}")
    def reduce(rnd):
        a("s_nop 1")
        a("v_add_f32_dpp v104, v104, v104 row_ror:8 row_mask:0xf bank_mask:0xf")
        a("v_add_f32_dpp v105, v105, v105 row_ror:8 row_mask:0xf bank_mask:0xf")
        for sw in ("v_permlane16_swap_b32", "v_permlane32_swap_b32"):
            a("v_mov_b32 v106, v104")
            a("v_mov_b32 v107, v105")
            a("s_nop 1")
            a(f"{sw} v104, v106")
            a(f"{sw} v105, v107")
            a("s_nop 1")
            a("v_add_f32 v104, v104, v106")
            a("v_add_f32 v105, v105, v107")
        a(f"ds_write_b64 v30, v[104:105] offset:{rnd*512}")
        a("s_waitcnt lgkmcnt(0)")
        a("s_barrier")
        for w in range(8):
            a(f"ds_read_b64 v[{108+2*w}:{109+2*w}], v31 offset:{rnd*512 + w*64}")
        a("s_waitcnt lgkmcnt(0)")
        for w in range(1, 8):
            a(f"v_add_f32 v108, v108, v{108+2*w}")
            a(f"v_add_f32 v109, v109, v{109+2*w}")
        a("s_mov_b32 s18, 0x3ae38e39")
        a("v_mul_f32 v104, s18, v108")
        a("v_mul_f32 v105, s18, v109")
        a("v_fma_f32 v105, -v104, v104, v105")
        a("v_max_f32 v105, 0, v105")
        bf16_round(a, 104)
        bf16_round(a, 105)
        a("v_add_f32 v105, 0x3727c5ac, v105")
        bf16_round(a, 105)
        a("v_sqrt_f32 v105, v105")
        a("s_nop 0")
        bf16_round(a, 105)
        a("v_rcp_f32 v105, v105")
        a("s_nop 0")
    def only_w0(name):
        a("s_cmp_lg_u32 s17, 0")
        a(f"s_cbranch_scc1 {name}_{tag}")
    unpack_x(0); part(80, True)
    only_w0("LN_A")
    a(f"ds_read_b64_tr_b16 v[100:101], v29 offset:8192")
    a(f"ds_read_b64_tr_b16 v[102:103], v29 offset:{8192+64}")
    unpack_x(1); part(88, False)
    a.label(f"LN_A_{tag}")
    reduce(0)
    def punpack(dst, p, e, rnd):
        r = 32 + 24 * rnd + 4 + 4 * p + (e >> 1)
        if e & 1: a(f"v_and_b32 v{dst}, 0xffff0000, v{r}")
        else: a(f"v_lshlrev_b32 v{dst}, 16, v{r}")
    def elem1(rnd):
        b = 32 + 24 * rnd
        for e in range(8):
            x = 80 + 8 * rnd + e
            yr = 96 + 4 * rnd + (e >> 1)
            punpack(110, 1, e, rnd); punpack(111, 0, e, rnd); punpack(112, 2, e, rnd)
            if e & 1: a(f"v_and_b32 v113, 0xffff0000, v{yr}")
            else: a(f"v_lshlrev_b32 v113, 16, v{yr}")
            a("v_add_f32 v110, 1.0, v110")
            a(f"v_sub_f32 v114, v{x}, v104")
            a("v_mul_f32 v114, v114, v105")
            a("v_fma_f32 v114, v114, v110, v111")
            a("v_mul_f32 v114, v114, v113")
            a(f"v_fma_f32 v{x}, v114, v112, v{x}")
        for i in range(4):
            a(f"v_cvt_pk_bf16_f32 v{b+i}, v{80+8*rnd+2*i}, v{81+8*rnd+2*i}")
        unpack_x(rnd)
        co = "" if rnd == 0 else " offset:1024"
        a(f"buffer_store_dwordx4 v[{b}:{b+3}], v27, s[84:87], 0 offen{co} sc1")
    elem1(0)
    only_w0("LN_B")
    elem1(1)
    a.label(f"LN_B_{tag}")
    part(80, True)
    only_w0("LN_C")
    part(88, False)
    a.label(f"LN_C_{tag}")
    reduce(1)
    srd(a, 92, 50, NB_ACT, WS_H2F)
    a("v_lshrrev_b32 v26, 2, v25")
    a("v_lshlrev_b32 v26, 10, v26")
    a("v_and_b32 v28, 3, v25")
    a("v_lshl_add_u32 v26, v28, 8, v26")
    a("v_lshl_add_u32 v26, v24, 4, v26")
    a("s_mul_i32 s18, s82, 18432")
    a("s_lshl_b32 s19, s16, 7")
    a("s_add_u32 s18, s18, s19")
    a("s_lshl_b32 s19, s17, 11")
    a("s_add_u32 s19, s19, s18")
    def elem2(rnd):
        for e in range(8):
            x = 80 + 8 * rnd + e
            punpack(110, 4, e, rnd); punpack(111, 3, e, rnd)
            a("v_add_f32 v110, 1.0, v110")
            a(f"v_sub_f32 v114, v{x}, v104")
            a("v_mul_f32 v114, v114, v105")
            a(f"v_fma_f32 v{x}, v114, v110, v111")
        for i in range(4):
            a(f"v_cvt_pk_bf16_f32 v{96+4*rnd+i}, v{80+8*rnd+2*i}, v{81+8*rnd+2*i}")
        if rnd == 1:
            a(f"s_add_u32 s19, s18, {8*2048}")
        a(f"buffer_store_dwordx4 v[{96+4*rnd}:{99+4*rnd}], v26, s[92:95], s19 offen sc1")
    elem2(0)
    only_w0("LN_D")
    elem2(1)
    a.label(f"LN_D_{tag}")
    a("s_waitcnt vmcnt(0)")
    a("s_barrier")

def final_phase(a, tag):
    srd(a, 92, 80, NB_ACT)
    srd(a, 96, 50, 4 * S * D * 2, WS_PART)
    a("v_and_b32 v24, 15, v2")
    a("v_lshrrev_b32 v25, 4, v2")
    a("s_lshl_b32 s18, s52, 7")
    a("s_lshl_b32 s19, s10, 5")
    a("s_add_u32 s18, s18, s19")
    a("v_add_u32 v24, s18, v24")
    a("s_movk_i32 s18, 1152")
    a("v_mul_lo_u32 v24, v24, s18")
    a("v_lshlrev_b32 v25, 3, v25")
    a("s_mul_i32 s18, s14, 288")
    a("s_lshl_b32 s19, s17, 5")
    a("s_add_u32 s18, s18, s19")
    a("v_add_u32 v25, s18, v25")
    a("v_add_u32 v24, v24, v25")
    a("s_movk_i32 s76, 18432")
    a("s_movk_i32 s77, 5760")
    def pre(rnd):
        o = 256 * rnd
        b = 32 + 8 * rnd
        a(f"buffer_load_dwordx2 v[{b}:{b+1}], v24, s[84:87], 0 offen offset:{o}")
        a(f"buffer_load_dwordx2 v[{b+2}:{b+3}], v24, s[84:87], s76 offen offset:{o}")
        a(f"buffer_load_dwordx2 v[{b+4}:{b+5}], v25, s[88:91], s77 offen offset:{o}")
    def only_w0(name):
        a("s_cmp_lg_u32 s17, 0")
        a(f"s_cbranch_scc1 {name}_{tag}")
    pre(0)
    only_w0("FN_A")
    pre(1)
    a.label(f"FN_A_{tag}")
    a("s_lshl_b32 s18, s52, 2")
    a("s_add_u32 s18, s18, s14")
    a("s_lshl_b32 s18, s18, 2")
    a("s_add_u32 s18, s18, s10")
    a("s_mul_i32 s18, s18, 36864")
    a("s_lshl_b32 s19, s17, 10")
    a("s_add_u32 s82, s18, s19")
    a("s_lshl_b32 s19, s17, 11")
    a("v_add_u32 v26, s19, v3")
    a("s_barrier")
    def fin(rnd):
        b = 32 + 8 * rnd
        for j in range(1, 4):
            a(f"s_add_u32 s18, s10, {j}")
            a("s_and_b32 s18, s18, 3")
            a("s_mul_i32 s18, s18, 9216")
            a("s_add_u32 s18, s18, s82")
            if rnd: a("s_add_u32 s18, s18, 8192")
            a(f"buffer_load_dwordx4 v[{48+4*j}:{51+4*j}], v3, s[96:99], s18 offen")
        a(f"ds_read_b128 v[64:67], v26 offset:{rnd*16384}")
        a(f"ds_read_b128 v[68:71], v26 offset:{rnd*16384+1024}")
        a("s_waitcnt vmcnt(0) lgkmcnt(0)")
        for j in range(1, 4):
            for d in range(4):
                r = 48 + 4 * j + d
                a(f"v_lshlrev_b32 v72, 16, v{r}")
                a(f"v_and_b32 v73, 0xffff0000, v{r}")
                a(f"v_add_f32 v{64+2*d}, v{64+2*d}, v72")
                a(f"v_add_f32 v{65+2*d}, v{65+2*d}, v73")
        for q in range(4):
            gbr = b + 4 + (q >> 1)
            if q & 1: a(f"v_and_b32 v{80+q}, 0xffff0000, v{gbr}")
            else: a(f"v_lshlrev_b32 v{80+q}, 16, v{gbr}")
        for h in range(2):
            bb = 64 + 4 * h
            a(f"v_cvt_pk_bf16_f32 v74, v{bb}, v{bb+1}")
            a(f"v_cvt_pk_bf16_f32 v75, v{bb+2}, v{bb+3}")
            for q in range(4):
                src = 74 + (q >> 1); xr = b + 2 * h + (q >> 1)
                if q & 1:
                    a(f"v_and_b32 v84, 0xffff0000, v{src}")
                    a(f"v_and_b32 v85, 0xffff0000, v{xr}")
                else:
                    a(f"v_lshlrev_b32 v84, 16, v{src}")
                    a(f"v_lshlrev_b32 v85, 16, v{xr}")
                a(f"v_mul_f32 v84, v84, v{80+q}")
                a("v_cvt_pk_bf16_f32 v84, v84, v84")
                a("v_lshlrev_b32 v84, 16, v84")
                a(f"v_add_f32 v{bb+q}, v84, v85")
            o = 88 + 4 * rnd + 2 * h
            a(f"v_cvt_pk_bf16_f32 v{o}, v{bb}, v{bb+1}")
            a(f"v_cvt_pk_bf16_f32 v{o+1}, v{bb+2}, v{bb+3}")
            so = "0" if h == 0 else "s76"
            a(f"buffer_store_dwordx2 v[{o}:{o+1}], v24, s[92:95], {so} offen offset:{256*rnd}")
    fin(0)
    only_w0("FN_B")
    fin(1)
    a.label(f"FN_B_{tag}")

def k34_loader(a):
    vm = Track(a, "vmcnt", 63)
    srd(a, 20, 4, D * F * 2)
    srd(a, 24, 6, D * F * 2)
    srd(a, 28, 50, NB_ACT, WS_H2F)
    srd(a, 32, 50, S * F * 2, WS_HID)
    srd(a, 56, 8, D * F * 2)
    a("s_cmp_lt_u32 s15, 2")
    a("s_cselect_b32 s36, s4, s6")
    a("s_cselect_b32 s37, s5, s7")
    a(f"s_mov_b32 s38, {D*F*2}")
    a("s_mov_b32 s39, 0x00020000")
    a("s_lshr_b32 s53, s15, 1")
    def qaddr1(dst):
        a(f"v_mul_u32_u24 v12, 6554, v{dst}")
        a("v_lshrrev_b32 v12, 16, v12")
        a("v_mul_u32_u24 v13, 10, v12")
        a(f"v_sub_u32 v13, v{dst}, v13")
        a("v_lshrrev_b32 v14, 4, v12")
        a("v_bfe_u32 v15, v12, 2, 2")
        a("v_and_b32 v12, 3, v12")
        a("v_lshl_add_u32 v12, v15, 3, v12")
        a("v_lshl_add_u32 v12, v14, 2, v12")
        a("v_mul_u32_u24 v12, 9216, v12")
        a(f"v_lshl_add_u32 v{dst}, v13, 4, v12")
    def qaddr2(dst):
        a(f"v_mul_u32_u24 v12, 3641, v{dst}")
        a("v_lshrrev_b32 v12, 16, v12")
        a("v_mul_u32_u24 v13, 18, v12")
        a(f"v_sub_u32 v13, v{dst}, v13")
        a("v_mul_u32_u24 v12, 1152, v12")
        a(f"v_lshl_add_u32 v{dst}, v13, 4, v12")
    a("s_lshl_b32 s18, s15, 6")
    a("v_add_u32 v8, s18, v2")
    a("s_and_b32 s18, s15, 1")
    a("s_lshl_b32 s18, s18, 5")
    a("s_add_u32 s19, s18, 256")
    a("v_add_u32 v9, s19, v2")
    qaddr1(8); qaddr1(9)
    a("s_mul_i32 s45, s13, 288")
    a("s_lshl_b32 s19, s16, 7")
    a("s_add_u32 s46, s45, s19")
    a("s_xor_b32 s19, s19, 128")
    a("s_add_u32 s45, s45, s19")
    a("s_lshl_b32 s47, s15, 10")
    a("s_mul_i32 s54, s53, 5120")
    a("s_and_b32 s18, s15, 1")
    a("s_lshl_b32 s18, s18, 9")
    a("s_add_u32 s54, s54, s18")
    a("s_lshl_b32 s44, s15, 12")
    def dmaW(st):
        base = (st & 3) * ST_BYTES
        if st < 36:
            ph = st // 18; ks = st % 18
            a(f"s_add_u32 s55, s{45+ph}, {ks*32*9216}")
            for blk in range(2):
                a(f"s_add_u32 m0, s47, {base + 16384 + blk*5120}")
                a("s_nop 0")
                a(f"buffer_load_dwordx4 v8, s[{20+4*blk}:{23+4*blk}], s55 offen lds"); vm.issue(("d", st))
            a(f"s_add_u32 m0, s54, {base + 16384 + 4096}")
            a("s_mov_b64 exec, 0xffffffff")
            a("buffer_load_dwordx4 v9, s[36:39], s55 offen lds"); vm.issue(("d", st))
            a("s_mov_b64 exec, -1")
        else:
            j = st - 36
            k0, k1 = KS_ORDER[2*j], KS_ORDER[2*j+1]
            a(f"s_add_u32 s72, s68, {k0*32*1152}")
            a(f"s_add_u32 s73, s68, {k1*32*1152}")
            a("s_cmp_eq_u32 s53, 0")
            a("s_cselect_b32 s74, s72, s73")
            for blk in range(2):
                for jj in range(2):
                    a(f"s_add_u32 m0, s69, {base + 16384 + blk*9216 + jj*1024}")
                    a("s_nop 0")
                    a(f"buffer_load_dwordx4 v{16+jj}, s[56:59], s{72+blk} offen lds"); vm.issue(("d", st))
            a(f"s_add_u32 m0, s70, {base + 16384 + 8192}")
            a("s_mov_b64 exec, 0xffffffff")
            a("buffer_load_dwordx4 v18, s[56:59], s74 offen lds"); vm.issue(("d", st))
            a("s_mov_b64 exec, -1")
    def dmaA(st):
        base = (st & 3) * ST_BYTES
        if st < 36:
            a(f"v_add_u32 v10, {(st % 18)*1024}, v3")
            sr, so = 28, 40
        else:
            j = st - 36
            k0, k1 = KS_ORDER[2*j], KS_ORDER[2*j+1]
            a("s_cmp_eq_u32 s53, 0")
            a(f"s_mov_b32 s75, {k0*1024}")
            a(f"s_mov_b32 s76, {k1*1024}")
            a("s_cselect_b32 s75, s75, s76")
            a("v_add_u32 v10, s75, v3")
            sr, so = 32, 64
        for i in range(4):
            a(f"s_add_u32 m0, s44, {base + i*1024}")
            a("s_nop 0")
            a(f"buffer_load_dwordx4 v10, s[{sr}:{sr+3}], s{so+i} offen lds"); vm.issue(("d", st))
    epoch = [0]
    def poll(name, vaddr, off, shift_s, target, all_waves=True):
        lbl = f"K34_POLL{name}"
        epoch[0] += 1
        a("s_mov_b32 s71, 0")
        a("s_cmp_lg_u32 s17, 4")
        a(f"s_cbranch_scc1 {lbl}_W")
        a.label(lbl)
        a(f"buffer_load_dword v23, v{vaddr}, s[60:63], 0 offen offset:{off} sc1")
        a("s_waitcnt vmcnt(0)")
        a("v_readfirstlane_b32 s72, v23")
        a("s_add_u32 s71, s71, 1")
        a(f"s_lshr_b32 s72, s72, {shift_s}")
        a("s_and_b32 s72, s72, 0xff")
        a(f"s_cmp_ge_u32 s72, {target}")
        a(f"s_cbranch_scc1 {lbl}_OK")
        a("s_sleep 2")
        a("s_cmp_lt_u32 s71, 0x100000")
        a(f"s_cbranch_scc1 {lbl}")
        a.label(lbl + "_OK")
        if all_waves:
            a(f"v_mov_b32 v23, {epoch[0]}")
            a("ds_write_b32 v7, v23")
            a(f"s_branch {lbl}_GO")
            a.label(lbl + "_W")
            a("ds_read_b32 v23, v7")
            a("s_waitcnt lgkmcnt(0)")
            a("v_readfirstlane_b32 s72, v23")
            a("s_add_u32 s71, s71, 1")
            a(f"s_cmp_eq_u32 s72, {epoch[0]}")
            a(f"s_cbranch_scc1 {lbl}_GO")
            a("s_sleep 1")
            a("s_cmp_lt_u32 s71, 0x400000")
            a(f"s_cbranch_scc1 {lbl}_W")
            a.label(lbl + "_GO")
        else:
            a.label(lbl + "_W")
    def signal(name, vaddr, off, vval):
        lbl = f"K34_SIG{name}"
        a("s_cmp_lg_u32 s17, 4")
        a(f"s_cbranch_scc1 {lbl}")
        a("s_mov_b64 exec, 1")
        a(f"buffer_atomic_add v{vval}, v{vaddr}, s[60:63], 0 offen offset:{off} sc1")
        a("s_mov_b64 exec, -1")
        a.label(lbl)
    a(f"v_mov_b32 v7, {4*ST_BYTES}")
    a("v_mov_b32 v23, 0")
    a("ds_write_b32 v7, v23")
    dmaW(0); dmaW(1); dmaW(2)
    ln_phase(a, "L")
    vm.q = []
    a("s_add_u32 s18, s12, 32")
    a("s_lshl_b32 s18, s18, 8")
    a("v_mov_b32 v19, s18")
    a("v_mov_b32 v22, 1")
    signal("LN", 19, 0, 22)
    for i in range(4):
        a("s_lshl_b32 s18, s12, 4")
        a("s_lshl_b32 s19, s15, 2")
        a("s_add_u32 s18, s18, s19")
        a(f"s_add_u32 s18, s18, {i}")
        a(f"s_mul_i32 s{40+i}, s18, 18432")
    poll("LN", 19, 0, 0, 32)
    dmaA(0); dmaA(1); dmaA(2)
    for i in range(4):
        a("s_and_b32 s18, s15, 1")
        a("s_lshl_b32 s18, s18, 2")
        a("s_lshl_b32 s19, s52, 3")
        a("s_add_u32 s18, s18, s19")
        a(f"s_add_u32 s18, s18, {i}")
        a("s_mul_i32 s18, s18, 144")
        a("s_mul_i32 s19, s10, 36")
        a("s_add_u32 s18, s18, s19")
        a(f"s_lshl_b32 s{64+i}, s18, 10")
    a("s_lshl_b32 s18, s15, 7")
    a("v_add_u32 v16, s18, v2")
    a("v_add_u32 v17, 64, v16")
    a("s_and_b32 s18, s15, 1")
    a("s_lshl_b32 s18, s18, 5")
    a("s_add_u32 s18, s18, 512")
    a("v_add_u32 v18, s18, v2")
    qaddr2(16); qaddr2(17); qaddr2(18)
    a(f"s_mul_i32 s68, s10, {1152*1152}")
    a("s_mul_i32 s18, s14, 288")
    a("s_add_u32 s68, s68, s18")
    a("s_lshl_b32 s69, s15, 11")
    a("s_mul_i32 s70, s53, 9216")
    a("s_and_b32 s18, s15, 1")
    a("s_lshl_b32 s18, s18, 9")
    a("s_add_u32 s70, s70, s18")
    a("s_lshl_b32 s18, s12, 2")
    a("s_add_u32 s18, s18, s10")
    a("s_lshl_b32 s18, s18, 8")
    a("v_mov_b32 v20, s18")
    a("s_lshr_b32 s18, s52, 1")
    a("s_lshl_b32 s18, s18, 2")
    a("s_add_u32 s18, s18, s10")
    a("s_lshl_b32 s18, s18, 8")
    a("v_mov_b32 v21, s18")
    a("v_mov_b32 v11, 0x100")
    vm.need(("d", 0))
    a("s_barrier")
    for st in range(NSTG):
        if st + 1 < NSTG:
            vm.need(("d", st + 1))
        a("s_barrier")
        if st == SIG_A: signal("A", 20, 0, 22)
        if st == SIG_B: signal("B", 20, 0, 11)
        n = st + 3
        if n < NSTG:
            dmaW(n)
            if n in (POLL_A_STAGE, POLL_B_STAGE) and DEFER:
                pass
            else:
                if n - 1 in (POLL_A_STAGE, POLL_B_STAGE) and DEFER:
                    poll(f"{n}", 21, 0, 0 if n - 1 == POLL_A_STAGE else 8, 8)
                    dmaA(n - 1)
                elif n in (POLL_A_STAGE, POLL_B_STAGE):
                    poll(f"{n}", 21, 0, 0 if n == POLL_A_STAGE else 8, 8)
                dmaA(n)
    a("s_barrier")
    a("s_barrier")
    a("s_barrier")
    a("s_lshl_b32 s18, s52, 2")
    a("s_add_u32 s18, s18, s14")
    a("s_add_u32 s18, s18, 40")
    a("s_lshl_b32 s18, s18, 8")
    a("v_mov_b32 v19, s18")
    signal("F", 19, 0, 22)
    poll("F", 19, 0, 0, 4, all_waves=False)
    final_phase(a, "L")
    a("s_endpgm")

def k34_compute(a):
    lg = Track(a, "lgkmcnt", 15)
    ln_phase(a, "C")
    stamp(a, 1)
    srd(a, 32, 50, S * F * 2, WS_HID)
    srd(a, 36, 50, 4 * S * D * 2, WS_PART)
    a("s_lshl_b32 s18, s15, 12")
    a("v_add_u32 v4, s18, v3")
    a("v_add_u32 v5, 0x10000, v4")
    a("s_and_b32 s53, s15, 1")
    a("s_lshr_b32 s54, s15, 1")
    a("s_lshl_b32 s18, s53, 13")
    a("s_lshl_b32 s19, s54, 12")
    a("s_add_u32 s18, s18, s19")
    a("v_add_u32 v6, s18, v3")
    a("v_add_u32 v7, 0x10000, v6")
    a("v_lshrrev_b32 v14, 2, v2")
    a("v_and_b32 v15, 3, v2")
    a("v_mul_u32_u24 v8, 160, v14")
    a("v_lshl_add_u32 v8, v15, 3, v8")
    a("v_add_u32 v8, 16384, v8")
    a("s_lshl_b32 s18, s16, 7")
    a("s_xor_b32 s18, s18, 128")
    a("v_add_u32 v10, s18, v8")
    a("v_add_u32 v11, 0x10000, v10")
    a("s_lshl_b32 s18, s16, 5")
    a("v_add_u32 v8, s18, v8")
    a("v_add_u32 v9, 0x10000, v8")
    a("v_mul_u32_u24 v12, 288, v14")
    a("v_lshl_add_u32 v12, v15, 3, v12")
    a("s_mul_i32 s18, s53, 9216")
    a("s_add_u32 s18, s18, 16384")
    a("v_add_u32 v12, s18, v12")
    a("v_add_u32 v13, 0x10000, v12")
    a("s_lshl_b32 s19, s12, 4")
    a("s_lshl_b32 s18, s15, 2")
    a("s_add_u32 s19, s19, s18")
    a("s_mul_i32 s19, s19, 144")
    a("s_mul_i32 s18, s13, 9")
    a("s_cmp_eq_u32 s16, 0")
    a("s_cselect_b32 s40, 4, 1")
    a("s_cselect_b32 s41, 0, 5")
    a("s_cselect_b32 s42, 8, 0")
    for r in (40, 41, 42):
        a(f"s_add_u32 s{r}, s{r}, s18")
        a(f"s_lshr_b32 s{r}, s{r}, 1")
        a(f"s_add_u32 s{r}, s{r}, s19")
        a(f"s_lshl_b32 s{r}, s{r}, 10")
    a("s_lshl_b32 s18, s16, 3")
    a("s_add_u32 s42, s42, s18")
    AF = 16; WR = 48; ACC = 64
    def units_of(st):
        if st < 18: return [(t, b) for t in range(5) for b in range(2)]
        if st < 36: return [(t, b) for t in range(1, 5) for b in range(2)]
        return [(t, 0) for t in range(9)]
    def acc(st, t, b, i):
        if st < 36: return ACC + ((t * 2 + b) * 4 + i) * 4
        return ACC + (t * 4 + i) * 4
    seq = [(st, u) for st in range(NSTG) for u in range(len(units_of(st)))]
    def w_reads(gi):
        if gi >= len(seq): return []
        st, u = seq[gi]
        t, b = units_of(st)[u]
        if st < 36:
            vr, off, hs = (10, b * 5120, 2560) if t == 0 else (8, b * 5120 + (t - 1) * 32, 2560)
        else:
            vr, off, hs = 12, t * 32, 4608
        off += (st & 3) * ST_BYTES
        if (st & 3) >= 2:
            vr += 1; off -= 65536
        r = WR + (gi & 3) * 4
        return [(f"ds_read_b64_tr_b16 v[{r}:{r+1}], v{vr} offset:{off}", ("w", gi)),
                (f"ds_read_b64_tr_b16 v[{r+2}:{r+3}], v{vr} offset:{off+hs}", ("w", gi))]
    def a_read(st, i):
        if st >= NSTG: return []
        off = (st & 3) * ST_BYTES + i * 1024
        vr = 4 if st < 36 else 6
        if (st & 3) >= 2:
            vr += 1; off -= 65536
        r = AF + (st & 1) * 16 + i * 4
        return [(f"ds_read_b128 v[{r}:{r+3}], v{vr} offset:{off}", ("a", st, i))]
    def emit(L):
        for (t, tag) in L:
            a(t); lg.issue(tag)
    pending = []
    def epi1(ph):
        a("s_nop 7")
        def hid(t, i, dst):
            g = acc(0, t, 0, i); u_ = acc(0, t, 1, i)
            for q in range(4):
                a(f"v_max_f32 v{g+q}, 0, v{g+q}")
            for q in range(4):
                a(f"v_mul_f32 v{g+q}, v{g+q}, v{u_+q}")
            a(f"v_cvt_pk_bf16_f32 v{dst}, v{g}, v{g+1}")
            a(f"v_cvt_pk_bf16_f32 v{dst+1}, v{g+2}, v{g+3}")
        if ph == 0:
            for i in range(4):
                dst = 224 + 2 * i
                hid(0, i, dst)
                pending.append([f"s_add_u32 s43, s42, {i*144*1024}",
                                f"buffer_store_dwordx2 v[{dst}:{dst+1}], v3, s[32:35], s43 offen sc1"])
            order = [(t0, t1, i, pp, 64 + (i*2+pp)*4) for i in range(4) for pp, (t0, t1) in enumerate([(1, 2), (3, 4)])]
        else:
            order = [(3, 4, i, 1, 224 + 4*i) for i in range(4)] + [(1, 2, i, 0, 208 + 4*i) for i in range(4)]
        for (t0, t1, i, pp, dst) in order:
            hid(t0, i, dst); hid(t1, i, dst + 2)
            pending.append([f"s_add_u32 s43, s{40+ph}, {i*144*1024 + pp*1024}",
                            f"buffer_store_dwordx4 v[{dst}:{dst+3}], v3, s[32:35], s43 offen sc1"])
    PD = 3
    a("s_barrier")
    stamp(a, 2)
    for i in range(4): emit(a_read(0, i))
    for gi in range(PD): emit(w_reads(gi))
    gi = 0; gi0 = 0
    for st in range(NSTG):
        un = units_of(st); U = len(un)
        first = st in (0, 18, 36)
        for u in range(U):
            if u == U // 2 - 1:
                if st in (SIG_A, SIG_B):
                    a("s_waitcnt vmcnt(0)")
                a("s_barrier")
                if st in STAMP_AT: stamp(a, 3 + STAMP_AT.index(st))
            nxt = w_reads(gi + PD)
            if u >= U - 4:
                nxt += a_read(st + 1, u - (U - 4))
            lg.need(("w", gi))
            if u == 0:
                lg.need(("a", st, 3))
            t, b = un[u]
            r = WR + (gi & 3) * 4
            for i in range(4):
                ar = AF + (st & 1) * 16 + i * 4
                ac = acc(st, t, b, i)
                cs = "0" if first else f"v[{ac}:{ac+3}]"
                a(f"v_mfma_f32_16x16x32_bf16 v[{ac}:{ac+3}], v[{r}:{r+3}], v[{ar}:{ar+3}], {cs}")
                if i < len(nxt): emit([nxt[i]])
            gap = STORE_GAP_A if st < 36 else STORE_GAP_B
            if pending and (gi - gi0) % gap == 0:
                for l in pending.pop(0): a(l)
            gi += 1
        if st == 17: epi1(0); gi0 = gi
        if st == 35:
            assert not pending
            epi1(1); gi0 = gi
        if st + 1 in (SIG_A, SIG_B): assert not pending, (st, len(pending))
    a("s_nop 7")
    a("s_barrier")
    a("s_mul_i32 s19, s15, 18432")
    a("s_add_u32 s19, s19, 32768")
    a("s_xor_b32 s18, s15, 1")
    a("s_mul_i32 s18, s18, 18432")
    a("s_add_u32 s18, s18, 32768")
    a("v_add_u32 v8, s19, v3")
    a("v_add_u32 v9, s18, v3")
    a("s_lshl_b32 s41, s54, 1")
    a("s_add_u32 s41, s41, s53")
    a("s_lshl_b32 s40, s52, 2")
    a("s_add_u32 s40, s40, s14")
    a("s_lshl_b32 s40, s40, 2")
    a("s_add_u32 s40, s40, s41")
    a("s_lshl_b32 s40, s40, 2")
    a("s_add_u32 s40, s40, s10")
    a("s_mul_i32 s40, s40, 9216")
    a("s_cmp_eq_u32 s53, 0")
    a("s_cbranch_scc0 K34_EP_B")
    for kg in range(2):
        if kg == 1: a.label("K34_EP_B")
        keep = [2 * kg, 2 * kg + 1]; send = [2 - 2 * kg, 3 - 2 * kg]
        for t in range(9):
            for ii, i in enumerate(send):
                ac = acc(36, t, 0, i)
                a(f"ds_write_b128 v8, v[{ac}:{ac+3}] offset:{(t*2+ii)*1024}")
        a("s_waitcnt lgkmcnt(0)")
        a("s_barrier")
        lg2 = Track(a, "lgkmcnt", 15)
        items = [(t, ii, i) for t in range(9) for ii, i in enumerate(keep)]
        def rd(n):
            t, ii, i = items[n]
            r = 16 + (n % 12) * 4
            a(f"ds_read_b128 v[{r}:{r+3}], v9 offset:{(t*2+ii)*1024}"); lg2.issue(n)
        for n in range(10): rd(n)
        for n, (t, ii, i) in enumerate(items):
            r = 16 + (n % 12) * 4
            ac = acc(36, t, 0, i)
            lg2.need(n)
            for q in range(4):
                a(f"v_add_f32 v{ac+q}, v{ac+q}, v{r+q}")
            if n + 10 < len(items): rd(n + 10)
        a("s_cmp_eq_u32 s41, s10")
        a(f"s_cbranch_scc1 K34_KEEP{kg}")
        for t in range(9):
            dst = 208 + (t % 8) * 4
            for ii, i in enumerate(keep):
                ac = acc(36, t, 0, i)
                a(f"v_cvt_pk_bf16_f32 v{dst+2*ii}, v{ac}, v{ac+1}")
                a(f"v_cvt_pk_bf16_f32 v{dst+2*ii+1}, v{ac+2}, v{ac+3}")
            a(f"buffer_store_dwordx4 v[{dst}:{dst+3}], v3, s[36:39], s40 offen offset:{(t%4)*1024} sc1")
            if t % 4 == 3:
                a("s_add_u32 s40, s40, 4096")
        a("s_branch K34_F1")
        a.label(f"K34_KEEP{kg}")
        for t in range(9):
            for ii, i in enumerate(keep):
                ac = acc(36, t, 0, i)
                a(f"ds_write_b128 v3, v[{ac}:{ac+3}] offset:{(t*2+ii)*1024}")
        if kg == 0: a("s_branch K34_F1")
    a.label("K34_F1")
    a("s_waitcnt vmcnt(0) lgkmcnt(0)")
    a("s_barrier")
    stamp(a, 5)
    final_phase(a, "C")
    stamp(a, 6)
    stamp_flush(a, 7, 77)
    a("s_endpgm")

def gen_k5(a):
    kernel_header(a, "k5_kernel")
    a("s_cmp_ge_u32 s2, 288")
    a("s_cbranch_scc1 K5_END")
    stamp(a, 0)
    a("s_load_dwordx2 s[4:5], s[0:1], 96")
    a("s_load_dwordx2 s[6:7], s[0:1], 112")
    a("v_lshrrev_b32 v1, 6, v0")
    a("v_and_b32 v2, 63, v0")
    a("s_nop 0")
    a("v_readfirstlane_b32 s17, v1")
    a("s_lshl_b32 s18, s2, 2")
    a("s_add_u32 s18, s18, s17")
    a("s_mul_i32 s19, s18, 3641")
    a("s_lshr_b32 s19, s19, 16")
    a("s_mul_i32 s16, s19, 18")
    a("s_sub_u32 s16, s18, s16")
    a("s_lshl_b32 s18, s18, 11")
    a("v_lshlrev_b32 v3, 4, v2")
    a("v_and_b32 v4, 15, v2")
    a("v_lshrrev_b32 v5, 4, v2")
    a("s_lshl_b32 s15, s19, 5")
    a("v_add_u32 v4, s15, v4")
    a("s_movk_i32 s15, 1152")
    a("v_mul_lo_u32 v4, v4, s15")
    a("v_lshlrev_b32 v5, 3, v5")
    a("s_lshl_b32 s15, s16, 6")
    a("v_add_u32 v5, s15, v5")
    a("v_add_u32 v4, v4, v5")
    a("s_waitcnt lgkmcnt(0)")
    stamp(a, 1)
    srd(a, 20, 6, 4 * S * D * 2, WS_PART)
    srd(a, 24, 6, NB_ACT, WS_X1)
    srd(a, 28, 6, 6 * D * 2, WS_MOD)
    srd(a, 32, 4, NB_ACT)
    for sp in range(4):
        a(f"s_add_u32 s15, s18, {sp*S*D*2}")
        for t in range(2):
            r = 16 + (sp * 2 + t) * 4
            a(f"buffer_load_dwordx4 v[{r}:{r+3}], v3, s[20:23], s15 offen offset:{t*1024}")
    a("s_movk_i32 s14, 18432")
    for t in range(2):
        a(f"buffer_load_dwordx2 v[{48+4*t}:{49+4*t}], v4, s[24:27], 0 offen offset:{32*t}")
        a(f"buffer_load_dwordx2 v[{50+4*t}:{51+4*t}], v4, s[24:27], s14 offen offset:{32*t}")
    a("s_movk_i32 s15, 5760")
    a("buffer_load_dwordx2 v[56:57], v5, s[28:31], s15 offen")
    a("buffer_load_dwordx2 v[58:59], v5, s[28:31], s15 offen offset:32")
    stamp(a, 2)
    a("s_waitcnt vmcnt(6)")
    stamp(a, 3)
    for t in range(2):
        for d in range(4):
            for sp in range(4):
                r = 16 + (sp * 2 + t) * 4 + d
                lo = 64 + 8 * t + 2 * d
                if sp == 0:
                    a(f"v_lshlrev_b32 v{lo}, 16, v{r}")
                    a(f"v_and_b32 v{lo+1}, 0xffff0000, v{r}")
                else:
                    a(f"v_lshlrev_b32 v60, 16, v{r}")
                    a(f"v_and_b32 v61, 0xffff0000, v{r}")
                    a(f"v_add_f32 v{lo}, v{lo}, v60")
                    a(f"v_add_f32 v{lo+1}, v{lo+1}, v61")
    a("s_waitcnt vmcnt(0)")
    for t in range(2):
        for q in range(4):
            gbr = 56 + 2 * t + (q >> 1)
            if q & 1: a(f"v_and_b32 v{80+q}, 0xffff0000, v{gbr}")
            else: a(f"v_lshlrev_b32 v{80+q}, 16, v{gbr}")
        for h in range(2):
            b = 64 + 8 * t + 4 * h
            a(f"v_cvt_pk_bf16_f32 v62, v{b}, v{b+1}")
            a(f"v_cvt_pk_bf16_f32 v63, v{b+2}, v{b+3}")
            for q in range(4):
                src = 62 + (q >> 1); xr = 48 + 4 * t + 2 * h + (q >> 1)
                if q & 1:
                    a(f"v_and_b32 v84, 0xffff0000, v{src}")
                    a(f"v_and_b32 v85, 0xffff0000, v{xr}")
                else:
                    a(f"v_lshlrev_b32 v84, 16, v{src}")
                    a(f"v_lshlrev_b32 v85, 16, v{xr}")
                a(f"v_mul_f32 v84, v84, v{80+q}")
                a("v_cvt_pk_bf16_f32 v84, v84, v84")
                a("v_lshlrev_b32 v84, 16, v84")
                a(f"v_add_f32 v{b+q}, v84, v85")
            o = 88 + 4 * t + 2 * h
            a(f"v_cvt_pk_bf16_f32 v{o}, v{b}, v{b+1}")
            a(f"v_cvt_pk_bf16_f32 v{o+1}, v{b+2}, v{b+3}")
            so = "0" if h == 0 else "s14"
            a(f"buffer_store_dwordx2 v[{o}:{o+1}], v4, s[32:35], {so} offen offset:{32*t}")
    stamp(a, 4)
    if STAMP: a("s_waitcnt vmcnt(0)")
    stamp(a, 5)
    stamp(a, 6)
    stamp_flush(a, 7, 77)
    a.label("K5_END")
    a("s_endpgm")

def main(out):
    a = Asm()
    hdr = open("adaLN_cond__ssm_conv_h3__glu_gated_reglu__prompt.s.ref").read().split("; Override launch geometry")[0]
    launches = [
        ("k1_kernel", 252, 512, K1_LDS),
        ("k34_kernel", 256, 512, G_LDS + 64),
    ]
    txt = hdr
    for (n, g, b, l) in launches:
        txt += f"; @launch kernel={n} grid=({g},1,1) block=({b},1,1) lds={l}\n"
    txt += '.amdgcn_target "amdgcn-amd-amdhsa--gfx950"\n.text\n'
    global SV, SK
    SV = 120; SK = 0
    gen_k1(a)
    SV = 240; SK = 1
    gen_k34(a)
    a.label("CODE_END")
    a("s_endpgm")
    txt += a.text()
    txt += '.section .rodata,"a"\n'
    txt += kernel_desc("k1_kernel", 128)
    txt += kernel_desc("k34_kernel", 248 if STAMP else 240)
    open(out, "w").write(txt)

if __name__ == "__main__":
    for arg in sys.argv[2:]:
        if arg == "stamp": STAMP = True
        elif "=" in arg:
            k_, v_ = arg.split("="); globals()[k_] = eval(v_)
    main(sys.argv[1] if len(sys.argv) > 1 else "k.s")
```
